```python
import torch

def _softmax(x, axis=-1):
    return torch.softmax(x, dim=axis)
def _gelu(x):
    return torch.nn.functional.gelu(x, approximate="tanh")
def _silu(x):
    return torch.nn.functional.silu(x)
def _sigmoid(x):
    return torch.sigmoid(x)
def _layernorm(x, axis=-1, eps=1e-5):
    m = x.mean(dim=axis, keepdim=True)
    v = x.var(dim=axis, keepdim=True, unbiased=False)
    return (x - m) / torch.sqrt(v + eps)
def _scatter_add(tgt, idx, src, axis=0):
    return tgt.clone().index_add_(axis, idx, src)
def _segment_sum(src, seg, n):
    out = torch.zeros((n,) + src.shape[1:], dtype=src.dtype)
    return out.index_add_(0, seg, src)
def _pad(x, pw):
    flat = tuple(v for pair in reversed(pw) for v in pair)
    return torch.nn.functional.pad(x, flat)

kernel_name = 'gated_mix__ssm_conv_s4__swiglu_ffn__prompt'

def setup_inputs():

    _w = (lambda a: (lambda t: t.to(torch.bfloat16) if t.is_floating_point() else t)(torch.as_tensor(a)))
    def _A_setup():
        B, L, D, N = 1, 2048, 1024, 128
        A_re = -(lambda _x: torch.exp(torch.as_tensor(_x)))((lambda *s: torch.randn(*s, dtype=torch.bfloat16) * 6.4)(D, N))
        A_im = torch.pi * (lambda *s: torch.randn(*s, dtype=torch.bfloat16) * 0.05)(D, N)
        B_re = (lambda *s: torch.randn(*s, dtype=torch.bfloat16) * 0.1)(D, N)
        B_im = (lambda *s: torch.randn(*s, dtype=torch.bfloat16) * 0.1)(D, N)
        C_re = (lambda *s: torch.randn(*s, dtype=torch.bfloat16) * 0.1)(D, N)
        C_im = (lambda *s: torch.randn(*s, dtype=torch.bfloat16) * 0.1)(D, N)
        log_dt = (lambda *s: torch.randn(*s, dtype=torch.bfloat16) * 0.05)(D) * 0.5 - 4.0
        Dskip = (lambda *s: torch.randn(*s, dtype=torch.bfloat16) * 0.05)(D)
        return {
            "u": _w((lambda *s: torch.randn(*s, dtype=torch.bfloat16) * 0.05)(B, L, D)),
            "A_re": _w(A_re),
            "A_im": _w(A_im),
            "B_re": _w(B_re),
            "B_im": _w(B_im),
            "C_re": _w(C_re),
            "C_im": _w(C_im),
            "log_dt": _w(log_dt),
            "Dskip": _w(Dskip),
        }
    _A_in = _A_setup()

    def _B_setup():
        B, S, D, F = 1, 2048, 1024, 3584
        return {
            "x": _w((lambda *s: torch.randn(*s, dtype=torch.bfloat16) * 0.05)(B, S, D)),
            "w_gate": _w((lambda *s: torch.randn(*s, dtype=torch.bfloat16) * 0.05)(D, F)),
            "w_up": _w((lambda *s: torch.randn(*s, dtype=torch.bfloat16) * 0.05)(D, F)),
            "w_down": _w((lambda *s: torch.randn(*s, dtype=torch.bfloat16) * 0.05)(F, D)),
        }
    _B_in = _B_setup()

    return {
        "A_u": _A_in["u"],
        "A_A_re": _A_in["A_re"],
        "A_A_im": _A_in["A_im"],
        "A_B_re": _A_in["B_re"],
        "A_B_im": _A_in["B_im"],
        "A_C_re": _A_in["C_re"],
        "A_C_im": _A_in["C_im"],
        "A_log_dt": _A_in["log_dt"],
        "A_Dskip": _A_in["Dskip"],
        "B_x": _B_in["x"],
        "B_w_gate": _B_in["w_gate"],
        "B_w_up": _B_in["w_up"],
        "B_w_down": _B_in["w_down"],
        "gate_w": _w((lambda *s: torch.randn(*s, dtype=torch.bfloat16) * 0.05)(1024) * 16.0),
    }

def reference(A_u, A_A_re, A_A_im, A_B_re, A_B_im, A_C_re, A_C_im, A_log_dt, A_Dskip, B_x, B_w_gate, B_w_up, B_w_down, gate_w):
    def _A_ref(u, A_re, A_im, B_re, B_im, C_re, C_im, log_dt, Dskip):
        Bsz, L, D = u.shape
        dt = torch.exp(log_dt)[:, None]
        A = A_re + 1j * A_im
        Bc = B_re + 1j * B_im
        Cc = C_re + 1j * C_im
        logdA = dt * A
        dB = dt * Bc
        l = (lambda x, dt: x.to(dt))(torch.arange(L), A_re.dtype)
        P = torch.exp(logdA[:, :, None] * l[None, None, :])
        K = torch.einsum("dn,dnl,dn->dl", Cc, P, dB).real
        L2 = 2 * L
        Kp = _pad(K, ((0, 0), (0, L)))
        up = (lambda x, *d: x.permute(*d))(u, 0, 2, 1)
        up = _pad(up, ((0, 0), (0, 0), (0, L)))
        Kf = (lambda x, axes=(-2,-1): torch.fft.rfft2(x.float(), dim=axes))(Kp[:, None, :], axes=(-2, -1))
        Uf = (lambda x, axes=(-2,-1): torch.fft.rfft2(x.float(), dim=axes))(up[:, :, None, :], axes=(-2, -1))
        Yf = Uf * Kf[None, :, :, :]
        y = (lambda x, s, axes=(-2,-1): torch.fft.irfft2(x, s=s, dim=axes).to(torch.bfloat16))(Yf, (1, L2), axes=(-2, -1))[:, :, 0, :L]
        y = (lambda x, *d: x.permute(*d))(y, 0, 2, 1) + u * Dskip[None, None, :]
        return y

    def _B_ref(x, w_gate, w_up, w_down):
        g = _silu(x @ w_gate)
        u = x @ w_up
        return (g * u) @ w_down

    x = A_u
    g = _sigmoid((x * gate_w).sum(-1, keepdims=True))
    a = _A_ref(x, A_A_re, A_A_im, A_B_re, A_B_im, A_C_re, A_C_im, A_log_dt, A_Dskip)
    b = _B_ref(x, B_w_gate, B_w_up, B_w_down)
    return g * a + (1 - g) * b
```

```python
class A:
    def __init__(self):
        self.l = []
        self.uid = 0
    def __call__(self, s):
        for line in s.strip("\n").split("\n"):
            self.l.append("    " + line.strip())
    def label(self, s):
        self.l.append(s + ":")
    def raw(self, s):
        self.l.append(s)
    def newlabel(self, p="L"):
        self.uid += 1
        return "%s_%d" % (p, self.uid)
    def text(self):
        return "\n".join(self.l) + "\n"

def rng(kind, base, n):
    if n == 1:
        return "%s%d" % (kind, base)
    return "%s[%d:%d]" % (kind, base, base + n - 1)
def v(b, n=1): return rng("v", b, n)
def a(b, n=1): return rng("a", b, n)
def s(b, n=1): return rng("s", b, n)

def kernel_begin(A_, name):
    A_.raw(".text")
    A_.raw(".globl %s" % name)
    A_.raw(".p2align 8")
    A_.raw(".type %s,@function" % name)
    A_.label(name)

def kernel_desc(A_, name, nvgpr, accum, nsgpr=102):
    A_.raw('.section .rodata,"a"')
    A_.raw(".p2align 6")
    A_.raw(".amdhsa_kernel %s" % name)
    A_.raw("  .amdhsa_next_free_vgpr %d" % nvgpr)
    A_.raw("  .amdhsa_next_free_sgpr %d" % nsgpr)
    A_.raw("  .amdhsa_accum_offset %d" % accum)
    A_.raw("  .amdhsa_group_segment_fixed_size 0")
    A_.raw("  .amdhsa_kernarg_size 136")
    A_.raw("  .amdhsa_user_sgpr_count 2")
    A_.raw("  .amdhsa_user_sgpr_kernarg_segment_ptr 1")
    A_.raw("  .amdhsa_system_sgpr_workgroup_id_x 1")
    A_.raw("  .amdhsa_float_denorm_mode_32 3")
    A_.raw(".end_amdhsa_kernel")

def srd(A_, d, base, nbytes):
    A_("s_mov_b32 s%d, s%d" % (d, base))
    A_("s_and_b32 s%d, s%d, 0xffff" % (d + 1, base + 1))
    A_("s_mov_b32 s%d, 0x%x" % (d + 2, nbytes))
    A_("s_mov_b32 s%d, 0x20000" % (d + 3))

KA = dict(u=0, A_re=8, A_im=16, B_re=24, B_im=32, C_re=40, C_im=48, log_dt=56, Dskip=64, x_unused=72,
          wg=80, wu=88, wd=96, gw=104, out=112, dbg=120, ws=128)
WS_H = 0
WS_H_SIZE = 2048 * 3584 * 2
WS_AT = 16 << 20
WS_G = 20 << 20
WS_STAMP = 32 << 20
```

```python
from asmlib import *

def stamp_begin(o):
    o("s_memtime s[60:61]\ns_memrealtime s[68:69]")
def stamp_mid1(o): o("s_memtime s[62:63]\ns_memrealtime s[72:73]")
def stamp_mid2(o): o("s_memtime s[64:65]\ns_memrealtime s[74:75]")
def stamp_end(o, sWave, ws_lo, off=0, nw_shift=2):
    o(f"""
    s_waitcnt vmcnt(0)
    s_memtime s[66:67]
    s_memrealtime s[70:71]
    s_waitcnt lgkmcnt(0)
    s_sub_u32 s70, s70, s68
    s_sub_u32 s62, s62, s60
    s_sub_u32 s64, s64, s60
    s_sub_u32 s66, s66, s60
    s_add_u32 s76, s{ws_lo}, {WS_STAMP + off}
    s_addc_u32 s77, s{ws_lo+1}, 0
    s_lshl_b32 s78, s2, {nw_shift}
    s_add_u32 s78, s78, s{sWave}
    s_lshl_b32 s78, s78, 5
    s_sub_u32 s72, s72, s68
    s_sub_u32 s74, s74, s68
    v_mov_b32 v8, s72
    v_mov_b32 v9, s74
    v_mov_b32 v10, s70
    v_mov_b32 v11, s68
    v_mov_b32 v2, s62
    v_mov_b32 v3, s64
    v_mov_b32 v4, s66
    s_getreg_b32 s79, hwreg(HW_REG_XCC_ID)
    s_getreg_b32 s80, hwreg(HW_REG_HW_ID)
    s_and_b32 s79, s79, 15
    s_lshl_b32 s80, s80, 4
    s_or_b32 s79, s79, s80
    v_mov_b32 v5, s79
    v_mov_b32 v6, s78
    global_store_dwordx4 v6, v[2:5], s[76:77]
    global_store_dwordx4 v6, v[8:11], s[76:77] offset:16
    """)

def gemm1(o, name="gemm1_kernel", stamp=False, opt=None):
    opt = opt or {}
    kernel_begin(o, name)
    XB = 65536
    accA = opt.get("accA", False)
    def acc(mb, nb):
        i = nb * 8 + mb
        if accA: return ("a", 4 * i)
        if i < 56: return ("v", 32 + 4 * i)
        return ("a", 128 + 4 * (i - 56))
    def accs(mb, nb):
        k, b = acc(mb, nb); return rng(k, b, 4)
    fk = "v" if accA else "a"
    fo = 32 if accA else 0
    def fa(set_, mb): return fo + set_ * 64 + mb * 4
    def fb(set_, nb): return fo + set_ * 64 + 32 + nb * 4
    vW = [2, 3, 4, 5]
    vX = [6, 7]
    vWd = [8, 9, 10, 11]
    vXd = [12, 13, 14, 15]
    vS = 1
    sX, sWs, sH = 8, 12, 20
    sWave, sTT, sFT = 24, 25, 26
    sWoff, sXoff, sXoff2 = 27, 28, 29
    sWm0, sXm0 = 30, 31
    sCnt, sXd, sXs, sRs = 32, 33, 34, 35
    sXe, sNeg, sPos = 44, 45, 46
    sRot, sTx, sTw, sTmp = 47, 48, 49, 50
    rotm = opt.get('rot', 1)
    o(f"""
    s_cmp_ge_u32 s2, {opt.get("nwg", 224)}
    s_cbranch_scc1 {name}_aux
    s_load_dwordx2 s[4:5], s[0:1], {KA['u']}
    s_load_dwordx4 s[40:43], s[0:1], {KA['wg']}
    s_load_dwordx2 s[6:7], s[0:1], {KA['ws']}
    """)
    if stamp: stamp_begin(o)
    o(f"""
    v_lshrrev_b32 v1, 6, v0
    v_and_b32 v0, 63, v0
    s_and_b32 s3, s2, 7
    v_readfirstlane_b32 s{sWave}, v1
    s_lshr_b32 s36, s2, 3
    s_and_b32 s37, s3, 1
    s_lshl_b32 s37, s37, 2
    s_and_b32 s38, s36, 3
    s_add_u32 s{sTT}, s37, s38
    s_lshr_b32 s37, s3, 1
    s_mul_i32 s37, s37, 7
    s_lshr_b32 s38, s36, 2
    s_add_u32 s{sFT}, s37, s38
    v_lshlrev_b32 v{vS}, 4, v0
    """)
    o(f"""
    v_lshrrev_b32 v17, 4, v0
    v_and_b32 v18, 15, v0
    v_lshlrev_b32 v19, 2, v17
    v_xor_b32 v18, v18, v19
    v_lshlrev_b32 v18, 4, v18
    v_mul_u32_u24 v19, 7168, v17
    v_add_u32 v18, v18, v19
    s_and_b32 s36, s{sWave}, 1
    s_mul_i32 s37, s36, {16*7168}
    s_lshl_b32 s38, s{sFT}, 8
    s_add_u32 s37, s37, s38
    v_add_u32 v{vWd[0]}, s37, v18
    v_xor_b32 v18, 32, v{vWd[0]}
    v_add_u32 v{vWd[1]}, {1*(28672-1024)}, v{vWd[0]}
    v_add_u32 v{vWd[2]}, {2*(28672-1024)}, v18
    v_add_u32 v{vWd[3]}, {3*(28672-1024)}, v18
    """)
    o(f"""
    v_lshrrev_b32 v18, 3, v0
    v_lshlrev_b32 v18, 11, v18
    v_and_b32 v19, 7, v0
    v_xor_b32 v19, v19, v17
    v_lshlrev_b32 v19, 4, v19
    v_add_u32 v18, v18, v19
    s_lshl_b32 s37, s{sTT}, 8
    s_lshl_b32 s38, s{sWave}, 6
    s_add_u32 s37, s37, s38
    s_lshl_b32 s37, s37, 11
    v_add_u32 v{vXd[0]}, s37, v18
    v_xor_b32 v18, 64, v{vXd[0]}
    v_add_u32 v{vXd[1]}, {8*2048-1024}, v18
    v_add_u32 v{vXd[2]}, {2*(8*2048-1024)}, v{vXd[0]}
    v_add_u32 v{vXd[3]}, {3*(8*2048-1024)}, v18
    """)
    o(f"""
    v_lshlrev_b32 v18, 11, v17
    v_bfe_u32 v19, v0, 2, 2
    v_lshlrev_b32 v20, 8, v19
    v_add_u32 v18, v18, v20
    v_lshlrev_b32 v19, 1, v19
    v_and_b32 v20, 1, v17
    v_xor_b32 v19, v19, v20
    s_lshl_b32 s37, s36, 2
    v_xor_b32 v19, s37, v19
    v_lshlrev_b32 v19, 5, v19
    v_add_u32 v18, v18, v19
    v_and_b32 v19, 3, v0
    v_lshlrev_b32 v19, 3, v19
    v_add_u32 v{vW[0]}, v18, v19
    """)
    for m in range(1, 4): o(f"v_xor_b32 v{vW[m]}, {32*m}, v{vW[0]}")
    o(f"""
    s_lshr_b32 s37, s{sWave}, 1
    s_lshl_b32 s37, s37, 14
    s_add_u32 s37, s37, {XB}
    v_and_b32 v18, 15, v0
    v_lshlrev_b32 v18, 7, v18
    v_add_u32 v18, s37, v18
    v_bfe_u32 v20, v0, 1, 3
    v_xor_b32 v19, v17, v20
    v_lshlrev_b32 v19, 4, v19
    v_add_u32 v{vX[0]}, v18, v19
    v_xor_b32 v{vX[1]}, 64, v{vX[0]}
    """)
    o("s_waitcnt lgkmcnt(0)")
    srd(o, sX, 4, 2048 * 2048)
    o(f"""
    s_cmp_lt_u32 s{sWave}, 2
    s_cselect_b32 s40, s40, s42
    s_cselect_b32 s41, s41, s43
    """)
    srd(o, sWs, 40, 1024 * 7168)
    srd(o, sH, 6, WS_H_SIZE)
    o(f"""
    s_add_u32 s{sRot}, s{sTT}, s{sFT}
    s_and_b32 s{sRot}, s{sRot}, {rotm}
    s_mov_b32 s{sTx}, 0
    s_mov_b32 s{sTw}, 0
    s_lshl_b32 s{sXoff}, s{sRot}, 7
    s_mul_i32 s{sWoff}, s{sRot}, {64*7168}
    s_lshl_b32 s{sWm0}, s{sWave}, 12
    s_lshl_b32 s{sXm0}, s{sWave}, 13
    s_add_u32 s{sXm0}, s{sXm0}, {XB}
    """)
    advW0 = [f"s_add_u32 s{sWoff}, s{sWoff}, {32*7168}"]
    advW1 = [f"s_add_u32 s{sTw}, s{sTw}, 1", f"s_xor_b32 s{sTmp}, s{sTw}, s{sRot}", f"s_mul_i32 s{sWoff}, s{sTmp}, {64*7168}"]
    advX = [f"s_add_u32 s{sTx}, s{sTx}, 1", f"s_xor_b32 s{sTmp}, s{sTx}, s{sRot}", f"s_lshl_b32 s{sXoff}, s{sTmp}, 7"]
    def dmaW(j): return f"buffer_load_dwordx4 v{vWd[j]}, s[{sWs}:{sWs+3}], s{sWoff} offen offset:{1024*j} lds"
    def dmaX(j, half): return f"buffer_load_dwordx4 v{vXd[j]}, s[{sX}:{sX+3}], s{sXoff2 if half else sXoff} offen offset:{1024*j} lds"
    def grpW(slot):
        o(f"s_add_u32 m0, s{sWm0}, {slot*16384}")
        o("s_nop 0")
        for j in range(4): o(dmaW(j))
        for x in (advW1 if slot & 1 else advW0): o(x)
    def grpX(slot, half):
        o(f"s_add_u32 m0, s{sXm0}, {slot*32768 + half*4096}")
        o(f"s_add_u32 s{sXoff2}, s{sXoff}, 65536")
        for j in range(4): o(dmaX(j, half))
        if half:
            for x in advX: o(x)
    grpX(0, 0); grpW(0); grpX(0, 1); grpW(1); grpX(1, 0); grpW(2); grpX(1, 1); grpW(3); grpX(2, 0)
    for mb in range(8):
        for nb in range(8):
            k, b = acc(mb, nb)
            for r in range(4):
                o(f"v_mov_b32 v{b+r}, 0" if k == "v" else f"v_accvgpr_write_b32 a{b+r}, 0")
    def reads(set_, sl, ks2):
        Aa = []
        for mb in range(8):
            for r2 in range(2):
                Aa.append(f"ds_read_b64_tr_b16 {rng(fk, fa(set_, mb)+2*r2, 2)}, v{vW[mb&3]} offset:{sl*16384 + (mb>>2)*8192 + r2*1024}")
        Bb = [f"ds_read_b128 {rng(fk, fb(set_, nb), 4)}, v{vX[ks2]} offset:{nb*2048}" for nb in range(8)]
        L = []
        for i in range(8): L += Aa[2*i:2*i+2] + [Bb[i]]
        return L
    o(f"""
    s_mov_b32 s{sCnt}, 0
    s_add_u32 s{sXs}, s{sXm0}, {2*32768}
    s_add_u32 s{sXe}, s{sXm0}, {3*32768}
    s_mov_b32 s{sNeg}, {(-65536) & 0xffffffff}
    s_mov_b32 s{sPos}, 32768
    s_mov_b32 s{sRs}, 0
    s_waitcnt vmcnt(24)
    s_barrier
    """)
    if stamp: stamp_mid1(o)
    for r in reads(0, 0, 0): o(r)
    o(".p2align 3")
    o.label(f"{name}_loop")
    order = []
    if opt.setdefault("order", "nb") == "snake":
        for mb in range(8):
            for nb in (range(8) if mb % 2 == 0 else range(7, -1, -1)): order.append((mb, nb))
    elif opt["order"] == "mb":
        order = [(mb, nb) for mb in range(8) for nb in range(8)]
    elif opt["order"] == "nb":
        order = [(mb, nb) for nb in range(8) for mb in range(8)]
    elif opt["order"] == "diag":
        order = [((i + j) % 8, j) for i in range(8) for j in range(8)]
    def substep(set_, fill):
        o("s_waitcnt lgkmcnt(0)")
        for i, (mb, nb) in enumerate(order):
            o(f"v_mfma_f32_16x16x32_bf16 {accs(mb,nb)}, {rng(fk,fa(set_,mb),4)}, {rng(fk,fb(set_,nb),4)}, {accs(mb,nb)}")
            if i == 1:
                o("s_waitcnt vmcnt(%d)" % opt.get("vm", 16))
                o("s_barrier")
            for ins in fill.get(i, []): o(ins)
    nodma = opt.get("nodma", False); nord = opt.get("noread", False)
    def mkfill(rd, dW, dX):
        f = {}
        def add(i, x): f.setdefault(i, []).append(x)
        for k, x in enumerate(rd):
            if not nord: add(4 + 2 * k, x)
        add(3, dW[0])
        for k, x in enumerate(dW[1:]):
            if not nodma and not opt.get("noW"): add(5 + 8 * k, x)
        add(33, dX[0])
        for k, x in enumerate(dX[1:]):
            if not nodma and not opt.get("noX"): add(35 + 8 * k, x)
        return f
    def dmW(slotoff): return [f"s_add_u32 m0, s{sWm0}, {slotoff}"] + [dmaW(j) for j in range(4)]
    def dmX(half): return [f"s_add_u32 m0, s{sXs}, {half*4096}"] + [dmaX(j, half) for j in range(4)]
    def ext(f, i, L): f.setdefault(i, []).extend(L)
    f = mkfill(reads(1, 1, 1), dmW(0), dmX(1))
    ext(f, 31, [f"s_add_u32 s{sXoff2}, s{sXoff}, 65536", f"s_add_u32 s{sWoff}, s{sWoff}, {32*7168}"])
    ext(f, 60, advX[0:2]);
    ext(f, 52, [f"s_add_u32 s{sXs}, s{sXs}, 32768"])
    ext(f, 61, advX[2:] + [f"s_cmp_eq_u32 s{sXs}, s{sXe}", f"s_cselect_b32 s{sXs}, s{sXm0}, s{sXs}"])
    ext(f, 53, [f"s_add_u32 s{sRs}, s{sRs}, 1", f"s_cmp_eq_u32 s{sRs}, 3"])
    ext(f, 54, [f"s_cselect_b32 s{sXd}, s{sNeg}, s{sPos}", f"s_cselect_b32 s{sRs}, 0, s{sRs}"])
    for m in range(4): ext(f, 55 + m, [f"v_xor_b32 v{vW[m]}, 0x8000, v{vW[m]}"])
    ext(f, 62, [f"v_add_u32 v{vX[0]}, s{sXd}, v{vX[0]}", f"s_cmp_ge_u32 s{sCnt}, 13"])
    ext(f, 63, [f"v_add_u32 v{vX[1]}, s{sXd}, v{vX[1]}", f"s_cselect_b32 s{sX+2}, 0, s{sX+2}"])
    substep(0, f)
    f = mkfill(reads(0, 0, 0), dmW(16384), dmX(0))
    ext(f, 31, advW1[0:2]); ext(f, 37, advW1[2:] + [f"s_xor_b32 s{sWm0}, s{sWm0}, 0x8000"])
    ext(f, 62, [f"s_add_u32 s{sCnt}, s{sCnt}, 1", f"s_cmp_lt_u32 s{sCnt}, 16"])
    ext(f, 63, [f"s_cbranch_scc1 {name}_loop"])
    substep(1, f)
    if stamp: stamp_mid2(o)
    o(f"""
    s_lshr_b32 s36, s{sWave}, 1
    s_lshl_b32 s36, s36, 3
    s_lshl_b32 s37, s{sTT}, 4
    s_add_u32 s36, s36, s37
    s_mul_i32 s36, s36, 112
    s_and_b32 s37, s{sWave}, 1
    s_lshl_b32 s37, s37, 1
    s_add_u32 s36, s36, s37
    s_lshl_b32 s37, s{sFT}, 2
    s_add_u32 s36, s36, s37
    s_lshl_b32 s36, s36, 10
    s_mov_b32 s38, 0xbfb8aa3b
    s_mov_b32 s39, 0xbfb8aa3b
    s_nop 7
    """)
    T = 2
    n = 0
    for nb in range(8):
        for pr in range(2):
            st = 24 + 4 * (n & 1); n += 1
            gk, gb = acc(2 * pr, nb); uk, ub = acc(4 + 2 * pr, nb)
            if gk == "a":
                gt = 32 if accA else 32
                for r in range(8): o(f"v_accvgpr_read_b32 v{gt+r}, a{gb+r}")
                gb = gt
            if uk == "a":
                for r in range(8): o(f"v_accvgpr_read_b32 v{10+r}, a{ub+r}")
                ub = 10
            for p in range(4): o(f"v_pk_mul_f32 {v(T+2*p,2)}, {v(gb+2*p,2)}, s[38:39]")
            for r in range(8): o(f"v_exp_f32 v{T+r}, v{T+r}")
            for p in range(4): o(f"v_pk_mul_f32 {v(gb+2*p,2)}, {v(gb+2*p,2)}, {v(ub+2*p,2)}")
            for p in range(4): o(f"v_pk_add_f32 {v(T+2*p,2)}, {v(T+2*p,2)}, 1.0 op_sel_hi:[1,0]")
            for r in range(8): o(f"v_rcp_f32 v{T+r}, v{T+r}")
            o("s_nop 0")
            for p in range(4): o(f"v_pk_mul_f32 {v(gb+2*p,2)}, {v(gb+2*p,2)}, {v(T+2*p,2)}")
            for p in range(4): o(f"v_cvt_pk_bf16_f32 v{st+p}, v{gb+2*p}, v{gb+2*p+1}")
            o(f"buffer_store_dwordx4 {v(st,4)}, v{vS}, s[{sH}:{sH+3}], s36 offen offset:{pr*1024}")
        o(f"s_add_u32 s36, s36, {112*1024}")
    if stamp: stamp_end(o, sWave, 6)
    o.label(f"{name}_end")
    o("s_endpgm")
    o.label(f"{name}_aux")
    o(f"s_cmp_ge_u32 s2, 256\ns_cbranch_scc1 {name}_end2\ns_sub_u32 s3, s2, 224")
    from prep import prep_body
    prep_body(o, name, 3, opt)
    o.label(f"{name}_end2")
    o("s_endpgm")
    if accA: kernel_desc(o, name, 160 + 256, 160)
    else: kernel_desc(o, name, 256 + 160, 256)
    return f"; @launch kernel={name} grid=(256,1,1) block=(256,1,1) lds=163840"
```

```python
from asmlib import *
from gemm1b import stamp_begin, stamp_mid1, stamp_mid2, stamp_end

def gemm2_body(o, name, sId, stamp=False, opt=None, wait_flags=None, ldmod=""):
    opt = opt or {}
    vA = [2, 3, 4, 5]
    vWd = [6, 7, 8, 9]
    vH = [10, 11]
    ACC = 32
    FA = 64
    FH = 96
    def acc(mb, nb): return ACC + (nb * 4 + mb) * 4
    def fa(st, mb): return FA + st * 16 + mb * 4
    def fh(stg, ks, nb): return FH + ((stg & 1) * 8 + ks * 2 + nb) * 4
    sH, sWs, sO, sAT, sG = 8, 12, 16, 20, 52
    sWave, sTT, sDT, sRot = 24, 25, 26, 27
    sHoff, sWoff, sM0, sCnt, sTmp = 28, 29, 30, 31, 32
    rotm = opt.get("rot2", 3)
    o(f"""
    s_load_dwordx2 s[4:5], s[0:1], {KA['wd']}
    s_load_dwordx2 s[40:41], s[0:1], {KA['out']}
    s_load_dwordx2 s[6:7], s[0:1], {KA['ws']}
    """)
    if stamp: stamp_begin(o)
    o(f"""
    v_lshrrev_b32 v1, 6, v0
    v_and_b32 v0, 63, v0
    s_and_b32 s3, s{sId}, 7
    v_readfirstlane_b32 s{sWave}, v1
    s_lshr_b32 s36, s{sId}, 3
    s_lshr_b32 s37, s3, 1
    s_lshl_b32 s37, s37, 2
    s_and_b32 s38, s36, 3
    s_add_u32 s{sTT}, s37, s38
    s_and_b32 s37, s3, 1
    s_lshl_b32 s37, s37, 3
    s_lshr_b32 s38, s36, 2
    s_add_u32 s{sDT}, s37, s38
    s_add_u32 s{sRot}, s{sTT}, s{sDT}
    s_and_b32 s{sRot}, s{sRot}, {rotm}
    v_lshrrev_b32 v17, 4, v0
    """)
    o(f"""
    s_lshl_b32 s36, s{sTT}, 3
    s_lshl_b32 s37, s{sWave}, 1
    s_add_u32 s36, s36, s37
    s_mul_i32 s36, s36, {112*1024}
    v_lshlrev_b32 v18, 4, v0
    v_add_u32 v{vH[0]}, s36, v18
    v_add_u32 v{vH[1]}, {112*1024}, v{vH[0]}
    """)
    o(f"""
    v_lshrrev_b32 v18, 3, v0
    v_lshlrev_b32 v18, 11, v18
    v_and_b32 v19, 7, v0
    v_lshlrev_b32 v20, 1, v17
    v_xor_b32 v19, v19, v20
    v_lshlrev_b32 v19, 4, v19
    v_add_u32 v18, v18, v19
    s_lshl_b32 s36, s{sWave}, 16
    s_lshl_b32 s37, s{sDT}, 7
    s_add_u32 s36, s36, s37
    v_add_u32 v{vWd[0]}, s36, v18
    """)
    for j in range(1, 4): o(f"v_add_u32 v{vWd[j]}, {j*(16384-1024)}, v{vWd[0]}")
    o(f"""
    v_lshlrev_b32 v18, 9, v17
    v_bfe_u32 v19, v0, 2, 2
    v_lshlrev_b32 v20, 7, v19
    v_add_u32 v18, v18, v20
    v_bfe_u32 v19, v0, 3, 2
    v_lshlrev_b32 v19, 5, v19
    v_add_u32 v18, v18, v19
    v_and_b32 v19, 3, v0
    v_lshlrev_b32 v19, 3, v19
    v_add_u32 v{vA[0]}, v18, v19
    """)
    for m in range(1, 4): o(f"v_xor_b32 v{vA[m]}, {32*m}, v{vA[0]}")
    o("s_waitcnt lgkmcnt(0)")
    srd(o, sWs, 4, 3584 * 2048)
    srd(o, sH, 6, WS_H_SIZE)
    srd(o, sO, 40, 2048 * 2048)
    o(f"s_add_u32 s42, s6, {WS_AT}\ns_addc_u32 s43, s7, 0")
    srd(o, sAT, 42, 1024 * 4096)
    o(f"s_add_u32 s42, s6, {WS_G}\ns_addc_u32 s43, s7, 0")
    srd(o, sG, 42, 2048 * 4)
    o(f"s_lshl_b32 s{sM0}, s{sWave}, 12")
    def dmaW(j): return f"buffer_load_dwordx4 v{vWd[j]}, s[{sWs}:{sWs+3}], s{sWoff} offen offset:{1024*j} lds"
    def ldH(stg, ks, nb): return f"buffer_load_dwordx4 {v(fh(stg,ks,nb),4)}, v{vH[nb]}, s[{sH}:{sH+3}], s{sHoff} offen offset:{1024*ks}"
    def setW(add, cnt=True):
        return [f"s_add_u32 s{sTmp}, s{sCnt}, {add}", f"s_xor_b32 s{sTmp}, s{sTmp}, s{sRot}", f"s_lshl_b32 s{sWoff}, s{sTmp}, 18"]
    def setH(add):
        return [f"s_add_u32 s{sTmp}, s{sCnt}, {add}", f"s_xor_b32 s{sTmp}, s{sTmp}, s{sRot}", f"s_lshl_b32 s{sHoff}, s{sTmp}, 12"]
    o(f"s_mov_b32 s{sCnt}, 0")
    def pro_W(stage, js):
        for x in setW(stage): o(x)
        o(f"s_add_u32 m0, s{sM0}, {(stage&3)*16384}\ns_nop 0")
        for j in js: o(dmaW(j))
    pro_W(0, [0, 1, 2, 3]); pro_W(1, [0])
    for t in (-2, -1):
        for x in setH(t + 2): o(x)
        for ks in range(4):
            if ks < 3: pro_W(t + 3, [ks + 1])
            else: pro_W(t + 4, [0])
            o(ldH(t + 2, ks, 0)); o(ldH(t + 2, ks, 1))
    for r in range(32): o(f"v_mov_b32 v{ACC+r}, 0")
    def readsA(st, slot, ks):
        return [f"ds_read_b64_tr_b16 {v(fa(st,mb)+2*r2,2)}, v{vA[mb]} offset:{slot*16384 + ks*4096 + r2*2048}" for mb in range(4) for r2 in range(2)]
    o("s_waitcnt vmcnt(25)\ns_barrier")
    if stamp: stamp_mid1(o)
    for x in readsA(0, 0, 0): o(x)
    o(".p2align 3")
    o.label(f"{name}_loop")
    for t in range(4):
        for ks in range(4):
            st = ks & 1
            o("s_waitcnt vmcnt(21) lgkmcnt(0)")
            if ks == 3: o("s_barrier")
            rd = readsA(st ^ 1, t if ks < 3 else (t + 1) & 3, (ks + 1) & 3)
            pre = []
            if ks == 3: pre = setW(t + 4) + [f"s_add_u32 m0, s{sM0}, {t*16384}"]
            if ks == 0: pre = setH(t + 2)
            i = 0
            for nb in range(2):
                for mb in range(4):
                    o(f"v_mfma_f32_16x16x32_bf16 {v(acc(mb,nb),4)}, {v(fa(st,mb),4)}, {v(fh(t,ks,nb),4)}, {v(acc(mb,nb),4)}")
                    o(rd[i])
                    if i == 0:
                        for x in pre: o(x)
                    if i == 1: o(dmaW((ks + 1) & 3))
                    if i == 4: o(ldH(t, ks, 0))
                    if i == 7: o(ldH(t, ks, 1))
                    i += 1
            if t == 1 and ks == 3:
                o(f"s_cmp_ge_u32 s{sCnt}, 24\ns_cselect_b32 s{sH+2}, 0, s{sH+2}")
    o(f"""
    s_add_u32 s{sCnt}, s{sCnt}, 4
    s_cmp_lt_u32 s{sCnt}, 28
    s_cbranch_scc1 {name}_loop
    """)
    if stamp: stamp_mid2(o)
    if wait_flags: wait_flags(o, sDT)
    o(f"""
    v_and_b32 v18, 15, v0
    v_lshlrev_b32 v19, 12, v18
    v_lshlrev_b32 v20, 4, v17
    v_add_u32 v19, v19, v20
    s_lshl_b32 s36, s{sDT}, 18
    s_lshl_b32 s37, s{sTT}, 8
    s_lshl_b32 s38, s{sWave}, 6
    s_add_u32 s37, s37, s38
    s_add_u32 s36, s36, s37
    s_lshl_b32 s39, s37, 1
    v_lshlrev_b32 v20, 2, v18
    buffer_load_dword v12, v20, s[{sG}:{sG+3}], s39 offen
    buffer_load_dword v13, v20, s[{sG}:{sG+3}], s39 offen offset:64
    """)
    for mb in range(4):
        o(f"buffer_load_dwordx4 {v(FH+4*mb,4)}, v19, s[{sAT}:{sAT+3}], s36 offen {ldmod}")
        if mb < 3: o(f"s_add_u32 s36, s36, 65536")
    o(f"""
    v_lshlrev_b32 v21, 11, v18
    v_lshlrev_b32 v22, 3, v17
    v_add_u32 v21, v21, v22
    s_lshl_b32 s38, s37, 10
    s_lshl_b32 s39, s{sDT}, 7
    s_add_u32 s38, s38, s39
    s_add_u32 s39, s38, {16*2048}
    v_lshlrev_b32 v22, 3, v17
    v_sub_u32 v22, v18, v22
    s_waitcnt vmcnt(4)
    """)
    SEL = FH + 16
    for nb in range(2):
        g = 12 + nb
        o(f"""
        v_sub_f32 v14, 1.0, v{g}
        v_cvt_pk_bf16_f32 v14, v14, v14
        v_lshlrev_b32 v14, 16, v14
        v_lshrrev_b32 v15, 16, v{g}
        v_and_b32 v16, 0xffff0000, v{g}
        v_add_u32 v23, {16*nb}, v22
        v_and_b32 v24, 1, v23
        v_cmp_eq_u32 vcc, 1, v24
        v_ashrrev_i32 v23, 1, v23
        s_nop 1
        v_cndmask_b32 v15, v15, v16, vcc
        """)
        for q in range(4):
            o(f"v_cmp_eq_u32 vcc, {q}, v23\ns_nop 1\nv_cndmask_b32 v{SEL+4*nb+q}, 0, v15, vcc")
        for mb in range(4):
            for r in range(4): o(f"v_mul_f32 v{acc(mb,nb)+r}, v14, v{acc(mb,nb)+r}")
    o("s_waitcnt vmcnt(0)\ns_nop 1")
    for nb in range(2):
        for mb in range(4):
            o(f"v_mfma_f32_16x16x32_bf16 {v(acc(mb,nb),4)}, {v(FH+4*mb,4)}, {v(SEL+4*nb,4)}, {v(acc(mb,nb),4)}")
    o("s_nop 7")
    for nb in range(2):
        for mb in range(4):
            b = acc(mb, nb)
            o(f"v_cvt_pk_bf16_f32 v{b}, v{b}, v{b+1}\nv_cvt_pk_bf16_f32 v{b+1}, v{b+2}, v{b+3}")
            o(f"buffer_store_dwordx2 {v(b,2)}, v21, s[{sO}:{sO+3}], s{38+nb} offen offset:{32*mb}")
    if stamp: stamp_end(o, sWave, 6, off=1 << 20)

def gemm2(o, name="gemm2_kernel", stamp=False, opt=None):
    kernel_begin(o, name)
    o(f"s_cmp_ge_u32 s2, 256\ns_cbranch_scc1 {name}_end")
    gemm2_body(o, name, 2, stamp, opt)
    o.label(f"{name}_end")
    o("s_endpgm")
    kernel_desc(o, name, 160, 160)
    return f"; @launch kernel={name} grid=(256,1,1) block=(256,1,1) lds=65536"
```

```python
from asmlib import *
from ssm import WS_UT
RSX = 2080
GWOFF = 64 * RSX

def prep_body(o, name, sJ, opt=None):
    opt = opt or {}
    sWave = 24
    sX, sU, sG, sGW = 8, 12, 16, 20
    o(f"""
    s_load_dwordx2 s[4:5], s[0:1], {KA['u']}
    s_load_dwordx2 s[40:41], s[0:1], {KA['gw']}
    s_load_dwordx2 s[6:7], s[0:1], {KA['ws']}
    v_lshrrev_b32 v1, 6, v0
    v_and_b32 v0, 63, v0
    v_lshlrev_b32 v2, 4, v0
    v_readfirstlane_b32 s{sWave}, v1
    v_lshrrev_b32 v3, 4, v0
    v_and_b32 v4, 15, v0
    s_waitcnt lgkmcnt(0)
    """)
    srd(o, sX, 4, 2048 * 2048)
    srd(o, sGW, 40, 2048)
    o(f"s_add_u32 s42, s6, {WS_UT}\ns_addc_u32 s43, s7, 0")
    srd(o, sU, 42, 1024 * 4096)
    o(f"s_add_u32 s42, s6, {WS_G}\ns_addc_u32 s43, s7, 0")
    srd(o, sG, 42, 2048 * 4)
    o(f"""
    s_lshl_b32 s25, s{sWave}, 11
    s_add_u32 s25, s25, {GWOFF}
    s_mov_b32 m0, s25
    s_lshl_b32 s26, s{sJ}, 17
    s_lshl_b32 s27, s{sWave}, 15
    s_add_u32 s26, s26, s27
    buffer_load_dwordx4 v2, s[{sGW}:{sGW+3}], 0 offen lds
    buffer_load_dwordx4 v2, s[{sGW}:{sGW+3}], 0 offen offset:1024 lds
    s_mul_i32 s27, s{sWave}, {16*RSX}
    """)
    for r in range(16):
        o(f"""
        s_add_u32 m0, s27, {r*RSX}
        s_add_u32 s28, s26, {r*2048}
        buffer_load_dwordx4 v2, s[{sX}:{sX+3}], s28 offen lds
        buffer_load_dwordx4 v2, s[{sX}:{sX+3}], s28 offen offset:1024 lds
        """)
    vXR, vGR, vT0, vT1, vSt = 5, 6, 7, 8, 9
    o(f"""
    v_mul_u32_u24 v10, {RSX}, v4
    v_lshl_add_u32 v10, v3, 4, v10
    v_add_u32 v{vXR}, s27, v10
    v_lshlrev_b32 v10, 4, v3
    v_add_u32 v{vGR}, s25, v10
    v_lshlrev_b32 v11, 12, v4
    v_add_u32 v{vSt}, v10, v11
    v_bfe_u32 v10, v0, 2, 2
    v_lshl_add_u32 v10, v3, 3, v10
    v_mul_u32_u24 v10, {RSX}, v10
    v_and_b32 v11, 3, v0
    v_lshl_add_u32 v10, v11, 3, v10
    s_lshl_b32 s29, s{sWave}, 9
    v_add_u32 v{vT0}, s29, v10
    v_add_u32 v{vT1}, {32*RSX}, v{vT0}
    v_mov_b32 v12, 0x3f803f80
    v_mov_b32 v13, 0x3f803f80
    v_mov_b32 v14, 0x3f803f80
    v_mov_b32 v15, 0x3f803f80
    s_lshl_b32 s30, s{sWave}, 20
    s_lshl_b32 s31, s{sJ}, 7
    s_add_u32 s30, s30, s31
    s_waitcnt vmcnt(0)
    s_barrier
    """)
    TB = 64
    for q in range(4):
        for blk in range(4 * q, 4 * q + 4):
            for th in range(2):
                r = TB + ((blk & 3) * 2 + th) * 4 + (q & 1) * 32
                for r2 in range(2):
                    o(f"ds_read_b64_tr_b16 {v(r+2*r2,2)}, v{vT1 if th else vT0} offset:{blk*32 + r2*4*RSX}")
        o("s_waitcnt lgkmcnt(0)")
        for blk in range(4 * q, 4 * q + 4):
            for th in range(2):
                r = TB + ((blk & 3) * 2 + th) * 4 + (q & 1) * 32
                o(f"buffer_store_dwordx4 {v(r,4)}, v{vSt}, s[{sU}:{sU+3}], s30 offen offset:{64*th}")
            o(f"s_add_u32 s30, s30, {16*4096}")
        if q >= 1 and q < 3: o("s_waitcnt vmcnt(8)")
    ACC = 16; XR = [20, 24]; GR = [28, 32]; XU = 36; GU = 44; PA = [52, 56]
    def rd(i):
        o(f"ds_read_b128 {v(XR[i&1],4)}, v{vXR} offset:{64*i}\nds_read_b128 {v(GR[i&1],4)}, v{vGR} offset:{64*i}")
    rd(0)
    for i in range(32):
        if i < 31:
            rd(i + 1); o("s_waitcnt lgkmcnt(2)")
        else: o("s_waitcnt lgkmcnt(0)")
        for k in range(4):
            o(f"v_lshlrev_b32 v{XU+2*k}, 16, v{XR[i&1]+k}\nv_and_b32 v{XU+2*k+1}, 0xffff0000, v{XR[i&1]+k}")
            o(f"v_lshlrev_b32 v{GU+2*k}, 16, v{GR[i&1]+k}\nv_and_b32 v{GU+2*k+1}, 0xffff0000, v{GR[i&1]+k}")
        for k in range(4): o(f"v_pk_mul_f32 {v(XU+2*k,2)}, {v(XU+2*k,2)}, {v(GU+2*k,2)}")
        for k in range(4): o(f"v_cvt_pk_bf16_f32 v{PA[i&1]+k}, v{XU+2*k}, v{XU+2*k+1}")
        o("s_nop 1")
        o(f"v_mfma_f32_16x16x32_bf16 {v(ACC,4)}, {v(PA[i&1],4)}, v[12:15], {v(ACC,4) if i else '0'}")
    o(f"""
    s_mov_b32 s38, 0xbfb8aa3b
    v_lshlrev_b32 v10, 4, v3
    v_cmp_eq_u32 vcc, 0, v4
    s_lshl_b32 s30, s{sJ}, 8
    s_lshl_b32 s31, s{sWave}, 6
    s_add_u32 s30, s30, s31
    v_cndmask_b32 v10, -1, v10, vcc
    s_nop 4
    """)
    for r in range(4):
        x = ACC + r
        o(f"""
        v_cvt_pk_bf16_f32 v{x}, v{x}, v{x}
        v_lshlrev_b32 v{x}, 16, v{x}
        v_mul_f32 v{x}, s38, v{x}
        v_exp_f32 v{x}, v{x}
        s_nop 0
        v_add_f32 v{x}, 1.0, v{x}
        v_rcp_f32 v{x}, v{x}
        s_nop 0
        v_cvt_pk_bf16_f32 v{x}, v{x}, v{x}
        v_lshlrev_b32 v{x}, 16, v{x}
        """)
    o(f"""
    s_and_saveexec_b64 s[44:45], vcc
    buffer_store_dwordx4 {v(ACC,4)}, v10, s[{sG}:{sG+3}], s30 offen
    """)
```

```python
from asmlib import *
from gemm1b import stamp_begin, stamp_mid1, stamp_mid2, stamp_end

WS_UT = 24 << 20
LOG2E = 0x3fb8aa3b
INV2PI = 0x3e22f983
KOFF = 16
KSTR = 4640
UOFF = 9280
USTR = 4224
TOFF = UOFF + 8448
WSTR = 19456
RS = 528

def conv_order():
    rem = [(i, a_) for i in range(8) for a_ in range(8 - i)]
    last = {b: -99 for b in range(8)}
    out = []
    cnt = {b: b + 1 for b in range(8)}
    t = 0
    while rem:
        ok = [p for p in rem if t - last[p[0] + p[1]] >= 3]
        cand = ok or rem
        best = min(cand, key=lambda p: (-cnt[p[0] + p[1]], max(p), p))
        rem.remove(best); out.append(best)
        last[best[0] + best[1]] = t; cnt[best[0] + best[1]] -= 1; t += 1
    return out

def ssm_body(o, name, sId, stamp=False, opt=None, stmod="", signal=None):
    opt = opt or {}
    sWave, sD, sBase = 24, 25, 26
    sU, sAT = 8, 12
    o(f"""
    s_load_dwordx8 s[40:47], s[0:1], {KA['A_re']}
    s_load_dwordx8 s[48:55], s[0:1], {KA['C_re']}
    s_load_dwordx2 s[6:7], s[0:1], {KA['ws']}
    """)
    if stamp: stamp_begin(o)
    o(f"""
    v_lshrrev_b32 v1, 6, v0
    v_and_b32 v0, 63, v0
    s_lshl_b32 s{sD}, s{sId}, 2
    v_readfirstlane_b32 s{sWave}, v1
    v_lshlrev_b32 v10, 2, v0
    v_lshlrev_b32 v12, 4, v0
    s_add_u32 s{sD}, s{sD}, s{sWave}
    s_mul_i32 s{sBase}, s{sWave}, {WSTR}
    s_lshl_b32 s36, s{sD}, 8
    s_lshl_b32 s37, s{sD}, 1
    v_add_u32 v10, s36, v10
    v_mov_b32 v11, s37
    s_waitcnt lgkmcnt(0)
    global_load_ushort v8, v11, s[52:53]
    global_load_dword v2, v10, s[40:41]
    global_load_dword v3, v10, s[42:43]
    global_load_dword v4, v10, s[44:45]
    global_load_dword v5, v10, s[46:47]
    global_load_dword v6, v10, s[48:49]
    global_load_dword v7, v10, s[50:51]
    global_load_ushort v9, v11, s[54:55]
    s_add_u32 s4, s6, {WS_UT - 16}
    s_addc_u32 s5, s7, 0
    """)
    srd(o, sU, 4, 1024 * 4096 + 16)
    o(f"s_add_u32 s4, s6, {WS_AT}\ns_addc_u32 s5, s7, 0")
    srd(o, sAT, 4, 1024 * 4096)
    o(f"""
    s_lshl_b32 s36, s{sD}, 12
    s_add_u32 s37, s36, 16
    s_add_u32 s38, s36, 12
    s_add_u32 m0, s{sBase}, {UOFF + 64}
    s_nop 0
    """)
    for j in range(4): o(f"buffer_load_dwordx4 v12, s[{sU}:{sU+3}], s37 offen offset:{1024*j} lds")
    o(f"s_add_u32 m0, s{sBase}, {UOFF + USTR + 64}\ns_nop 0")
    for j in range(4): o(f"buffer_load_dwordx4 v12, s[{sU}:{sU+3}], s38 offen offset:{1024*j} lds")
    vStW, vStR, vT0, vT1a, vT1b, vT2 = 13, 14, 15, 16, 17, 18
    vG = [19, 20, 21, 22]
    vKW, vKZ, vKR, vUR, vUZ, vOut, vOW, vOR = 23, 24, 25, 26, 27, 28, 29, 30
    g, j_, t1, t2 = 32, 33, 34, 35
    o(f"""
    v_lshrrev_b32 v{g}, 4, v0
    v_and_b32 v{j_}, 15, v0
    v_lshlrev_b32 v{t1}, 3, v0
    v_add_u32 v{vStW}, s{sBase}, v{t1}
    v_add_u32 v{vKZ}, {KOFF + 2*2040}, v{vStW}
    v_mul_u32_u24 v{t1}, {RS}, v{j_}
    v_lshl_add_u32 v{t1}, v{g}, 4, v{t1}
    v_add_u32 v{vStR}, s{sBase}, v{t1}
    s_add_u32 s39, s{sBase}, {TOFF}
    """)
    o(f"""
    v_lshrrev_b32 v{t1}, 1, v{g}
    v_lshlrev_b32 v{t1}, 8, v{t1}
    v_and_b32 v{t2}, 1, v{g}
    v_lshl_add_u32 v{t1}, v{t2}, 3, v{t1}
    v_lshl_add_u32 v{t1}, v{j_}, 4, v{t1}
    v_add_u32 v{vT0}, s39, v{t1}
    """)
    o(f"""
    v_lshlrev_b32 v{t1}, 7, v{g}
    v_add_u32 v{t1}, s39, v{t1}
    v_cmp_gt_u32 vcc, 2, v{g}
    v_lshlrev_b32 v{t2}, 2, v{j_}
    v_lshlrev_b32 v{vT1b}, 3, v{j_}
    v_cndmask_b32 v{t2}, v{t2}, v{vT1b}, vcc
    v_add3_u32 v{vT1a}, v{t1}, v{t2}, 0
    v_add_u32 v{vT1a}, 512, v{vT1a}
    v_cndmask_b32 v{t2}, 64, 4, vcc
    v_add_u32 v{vT1b}, v{vT1a}, v{t2}
    v_lshl_add_u32 v{vT2}, v{j_}, 1, v{t1}
    v_add_u32 v{vT2}, 1024, v{vT2}
    """)
    o(f"v_lshlrev_b32 v{t1}, 1, v0\nv_add_u32 v{vG[0]}, s39, v{t1}")
    for e in (1, 2, 3):
        o(f"""
        v_bfe_u32 v{t2}, v0, {e}, 1
        v_add3_u32 v{t2}, v0, v{t2}, {(1 << (e-1)) - 1}
        v_lshrrev_b32 v{t2}, {e}, v{t2}
        v_lshl_add_u32 v{vG[e]}, v{t2}, 1, s39
        """)
    o(f"""
    s_add_u32 s36, s{sBase}, {KOFF + 2*(2046 - 64*31)}
    v_sub_u32 v{vKW}, s36, v{t1}
    """)
    o(f"""
    v_and_b32 v{t1}, 1, v0
    v_mul_u32_u24 v{t2}, {KSTR}, v{t1}
    v_lshl_add_u32 v{t2}, v{g}, 4, v{t2}
    v_lshrrev_b32 v{vKR}, 1, v{j_}
    v_lshlrev_b32 v{vKR}, 6, v{vKR}
    v_sub_u32 v{vKR}, v{t2}, v{vKR}
    s_add_u32 s36, s{sBase}, {KOFF + 448}
    v_add_u32 v{vKR}, s36, v{vKR}
    """)
    o(f"""
    v_mul_u32_u24 v{t2}, {USTR + 4}, v{t1}
    v_lshlrev_b32 v{vUR}, 2, v{j_}
    v_lshl_add_u32 v{vUR}, v{g}, 4, v{vUR}
    v_sub_u32 v{vUR}, v{vUR}, v{t2}
    s_add_u32 s36, s{sBase}, {UOFF + USTR + 8}
    v_add_u32 v{vUR}, s36, v{vUR}
    """)
    o(f"""
    v_subrev_u32 v{t1}, 16, v0
    v_min_u32 v{t1}, 16, v{t1}
    v_lshlrev_b32 v{t1}, 2, v{t1}
    v_add_u32 v{t1}, {USTR}, v{t1}
    v_lshlrev_b32 v{t2}, 2, v0
    v_cmp_gt_u32 vcc, 16, v0
    s_add_u32 s36, s{sBase}, {UOFF}
    s_nop 0
    v_cndmask_b32 v{t1}, v{t1}, v{t2}, vcc
    v_add_u32 v{vUZ}, s36, v{t1}
    """)
    o(f"""
    v_lshlrev_b32 v{t1}, 7, v{g}
    v_lshl_add_u32 v{t1}, v{j_}, 2, v{t1}
    v_add_u32 v{vOW}, s{sBase}, v{t1}
    v_add_u32 v{vOR}, s{sBase}, v12
    """)
    free = list(range(36, 160, 4))
    def alloc(): return free.pop(0)
    def rel(x): free.insert(0, x)
    def cmul(a_, b_, dst=None):
        d = alloc() if dst is None else dst
        for h in (0, 2):
            o(f"v_pk_mul_f32 {v(d+h,2)}, {v(a_+h,2)}, {v(b_+h,2)} op_sel:[0,0] op_sel_hi:[1,0]")
        for h in (0, 2):
            o(f"v_pk_fma_f32 {v(d+h,2)}, {v(a_+h,2)}, {v(b_+h,2)}, {v(d+h,2)} op_sel:[1,1,0] op_sel_hi:[0,1,1] neg_lo:[1,0,0]")
        return d
    pk = [160, 162, 164, 166]; pkc = [0]
    def put(x, row):
        p = pk[pkc[0] & 3]; pkc[0] += 1
        o(f"v_cvt_pk_bf16_f32 v{p}, v{x}, v{x+1}\nv_cvt_pk_bf16_f32 v{p+1}, v{x+2}, v{x+3}")
        o(f"ds_write_b64 v{vStW}, {v(p,2)} offset:{row*RS}")
    Z = alloc(); Bv = alloc(); Cv = alloc(); dtp = alloc()
    if opt.get("nokgen"): o(f"s_branch {name}_skipk")
    o(f"""
    s_mov_b32 s56, {LOG2E}
    s_mov_b32 s57, {INV2PI}
    s_waitcnt vmcnt(13)
    v_lshlrev_b32 v8, 16, v8
    v_mul_f32 v8, s56, v8
    v_exp_f32 v8, v8
    v_lshlrev_b32 v{Z}, 16, v2
    v_and_b32 v{Z+2}, 0xffff0000, v2
    v_cvt_pk_bf16_f32 v8, v8, v8
    v_lshlrev_b32 v{Z+1}, 16, v3
    v_and_b32 v{Z+3}, 0xffff0000, v3
    v_lshlrev_b32 v{dtp}, 16, v8
    v_pk_mul_f32 {v(Z,2)}, {v(Z,2)}, {v(dtp,2)} op_sel_hi:[1,0]
    v_pk_mul_f32 {v(Z+2,2)}, {v(Z+2,2)}, {v(dtp,2)} op_sel_hi:[1,0]
    v_pk_mul_f32 {v(Z,2)}, {v(Z,2)}, s[56:57]
    v_pk_mul_f32 {v(Z+2,2)}, {v(Z+2,2)}, s[56:57]
    """)
    def direct(e, conj=False):
        d = alloc(); t = alloc()
        for h in (0, 2):
            o(f"v_ldexp_f32 v{t+h}, v{Z+h}, {e}\nv_ldexp_f32 v{t+h+1}, v{Z+h+1}, {e}")
        for h in (0, 2): o(f"v_fract_f32 v{t+h+1}, v{t+h+1}")
        for h in (0, 2): o(f"v_exp_f32 v{t+h}, v{t+h}")
        for h in (0, 2): o(f"v_cos_f32 v{d+h}, v{t+h+1}\nv_sin_f32 v{d+h+1}, v{t+h+1}")
        o("s_nop 0")
        for h in (0, 2):
            o(f"v_pk_mul_f32 {v(d+h,2)}, {v(d+h,2)}, {v(t+h,2)} op_sel_hi:[1,0]" + (" neg_hi:[1,0]" if conj else ""))
        rel(t)
        return d
    G8 = direct(3, True)
    o(f"""
    s_waitcnt vmcnt(9)
    v_lshlrev_b32 v{Bv}, 16, v4
    v_and_b32 v{Bv+2}, 0xffff0000, v4
    v_lshlrev_b32 v{Bv+1}, 16, v5
    v_and_b32 v{Bv+3}, 0xffff0000, v5
    v_lshlrev_b32 v{Cv}, 16, v6
    v_and_b32 v{Cv+2}, 0xffff0000, v6
    v_lshlrev_b32 v{Cv+1}, 16, v7
    v_and_b32 v{Cv+3}, 0xffff0000, v7
    """)
    W = cmul(Bv, Cv)
    for h in (0, 2): o(f"v_pk_mul_f32 {v(W+h,2)}, {v(W+h,2)}, {v(dtp,2)} op_sel_hi:[1,0] neg_hi:[1,0]")
    rel(Bv); rel(Cv); rel(dtp)
    G16 = cmul(G8, G8)
    Y = {0: W}
    put(W, 0)
    Y[1] = cmul(W, G8); G32 = cmul(G16, G16); put(Y[1], 1)
    rel(G8)
    Y[2] = cmul(Y[0], G16); Y[3] = cmul(Y[1], G16); G64 = cmul(G32, G32); put(Y[2], 2); put(Y[3], 3)
    rel(G16)
    for k in range(4):
        Y[4 + k] = cmul(Y[k], G32); put(Y[4 + k], 4 + k)
    rel(G32)
    tmp = [alloc(), alloc()]
    for k in range(8):
        x = cmul(Y[k], G64, tmp[k & 1]); put(x, 8 + k)
    for k in range(8): rel(Y[k])
    rel(G64)
    FY = 168
    FX = 200
    KA_ = 232
    for ks in range(8): o(f"ds_read_b128 {v(FY+4*ks,4)}, v{vStR} offset:{64*ks}")
    E1 = direct(0); E128 = direct(7)
    o(f"v_mov_b32 v{pk[0]}, 0x3f80\nv_mov_b32 v{pk[0]+1}, 0x3f80\nds_write_b64 v{vStW}, {v(pk[0],2)}")
    pkc[0] = 1
    E = {1: E1}
    put(E1, 1); put(E128, 8)
    E[2] = cmul(E1, E1); put(E[2], 2)
    E[3] = cmul(E[2], E1); E[4] = cmul(E[2], E[2]); put(E[3], 3); put(E[4], 4)
    E[5] = cmul(E[4], E1); E[6] = cmul(E[4], E[2]); E[7] = cmul(E[4], E[3]); put(E[5], 5); put(E[6], 6); put(E[7], 7)
    for r in range(1, 8):
        x = cmul(E[r], E128, tmp[r & 1]); put(x, 8 + r)
    for r in (1, 3, 5, 7): rel(E[r])
    def readX():
        for ks in range(8): o(f"ds_read_b128 {v(FX+4*ks,4)}, v{vStR} offset:{64*ks}")
    def mfX(blk, first):
        for ks in range(8):
            c = v(KA_+4*blk, 4) if (ks or first) else "0"
            o(f"v_mfma_f32_16x16x32_bf16 {v(KA_+4*blk,4)}, {v(FX+4*ks,4)}, {v(FY+4*ks,4)}, {c}")
    readX()
    o(f"""
    s_waitcnt vmcnt(8)
    v_lshlrev_b32 v9, 16, v9
    v_cmp_eq_u32 vcc, 0, v0
    v_mov_b32 v{KA_+1}, 0
    v_mov_b32 v{KA_+2}, 0
    v_mov_b32 v{KA_+3}, 0
    v_cndmask_b32 v{KA_}, 0, v9, vcc
    """)
    H = {1: E128}
    H[2] = cmul(H[1], H[1]); put(H[2], 0)
    H[3] = cmul(H[2], H[1]); H[4] = cmul(H[2], H[2]); put(H[3], 4); put(H[4], 8)
    o("s_waitcnt lgkmcnt(3)")
    mfX(0, True)
    H[5] = cmul(H[4], H[1]); H[6] = cmul(H[4], H[2]); H[7] = cmul(H[4], H[3]); put(H[5], 10); put(H[6], 12); put(H[7], 14)
    n = 0
    for h in (2, 3):
        for e in (1, 2, 3):
            x = cmul(H[h], E[2 * e], tmp[n & 1]); n += 1; put(x, 4 * (h - 2) + e)
    for h in (4, 5, 6, 7):
        x = cmul(H[h], E[4], tmp[n & 1]); n += 1; put(x, 8 + 2 * (h - 4) + 1)
    readX()
    E1024 = direct(10)
    put(E1024, 0)
    x = cmul(E1024, E1024, tmp[0]); put(x, 8)
    o("s_waitcnt lgkmcnt(2)")
    mfX(1, False)
    for h in range(1, 8):
        x = cmul(E1024, H[h], tmp[h & 1]); put(x, h)
    o("s_nop 7")
    readX()
    o(f"""
    v_cvt_pk_bf16_f32 v{pk[0]}, v{KA_}, v{KA_+1}
    v_cvt_pk_bf16_f32 v{pk[0]+1}, v{KA_+2}, v{KA_+3}
    v_cvt_pk_bf16_f32 v{pk[1]}, v{KA_+4}, v{KA_+5}
    v_cvt_pk_bf16_f32 v{pk[1]+1}, v{KA_+6}, v{KA_+7}
    ds_write_b64 v{vT0}, {v(pk[0],2)}
    ds_write_b32 v{vT1a}, v{pk[1]}
    ds_write_b32 v{vT1b}, v{pk[1]+1}
    v_mov_b32 v{pk[2]}, 0
    v_mov_b32 v{pk[2]+1}, 0
    ds_write_b64 v{vKZ}, {v(pk[2],2)}
    ds_write_b64 v{vKZ}, {v(pk[2],2)} offset:{KSTR}
    s_waitcnt lgkmcnt(5)
    """)
    mfX(2, False)
    GB = 36
    def goff(k):
        if k < 4: return 0, 128 * k
        if k < 8: return 1, 2 * (256 + 32 * (k - 4))
        if k < 16: return 2, 2 * (384 + 16 * (k - 8))
        return 3, 2 * (512 + 8 * (k - 16))
    def gather(k):
        e, off = goff(k)
        o(f"ds_read_u16 v{GB+k}, v{vG[e]} offset:{off}")
    def scatter(k):
        o(f"ds_write_b16 v{vKW}, v{GB+k} offset:{128*(31-k)}")
        o(f"ds_write_b16 v{vKW}, v{GB+k} offset:{128*(31-k) + KSTR + 2}")
    for k in range(15): gather(k)
    o(f"""
    v_cvt_pk_bf16_f32 v{pk[0]}, v{KA_+8}, v{KA_+9}
    v_cvt_pk_bf16_f32 v{pk[0]+1}, v{KA_+10}, v{KA_+11}
    ds_write_b16 v{vT2}, v{pk[0]}
    ds_write_b16_d16_hi v{vT2}, v{pk[0]} offset:32
    ds_write_b16 v{vT2}, v{pk[0]+1} offset:64
    ds_write_b16_d16_hi v{vT2}, v{pk[0]+1} offset:96
    """)
    o("s_waitcnt lgkmcnt(4)")
    for k in range(15, 26): gather(k)
    for k in range(15): scatter(k)
    o("s_waitcnt lgkmcnt(14)")
    for k in range(26, 32): gather(k)
    for k in range(15, 26): scatter(k)
    o("s_waitcnt lgkmcnt(14)")
    for k in range(26, 32): scatter(k)
    o.label(f"{name}_skipk")
    o(f"s_waitcnt vmcnt(0)\nds_write_b32 v{vUZ}, v{pk[2]}")
    if stamp: stamp_mid1(o)
    ACC = 36
    FA = [68, 132]; FF = [100, 164]
    def rdA(c, st): return [f"ds_read_b128 {v(FA[st]+4*i,4)}, v{vKR} offset:{3584 - 64*(8*i - c)}" for i in range(8)]
    def rdF(c, st): return [f"ds_read_b64 {v(FF[st]+4*a_+2*hf,2)}, v{vUR} offset:{64*(8*a_+c) + 8*hf}" for a_ in range(8) for hf in range(2)]
    def rdall(c, st):
        A_, F_ = rdA(c, st), rdF(c, st)
        L = []
        for i in range(8): L += [A_[i], F_[2*i], F_[2*i+1]]
        return L
    for x in rdall(0, 0): o(x)
    order = conv_order()
    seen = set()
    for c in range(8):
        st = c & 1
        o("s_waitcnt lgkmcnt(0)")
        nxt = rdall(c + 1, st ^ 1) if c < 7 else []
        for k, (i, a_) in enumerate(order):
            b = i + a_
            cc = v(ACC+4*b, 4) if b in seen else "0"
            seen.add(b)
            o(f"v_mfma_f32_16x16x32_bf16 {v(ACC+4*b,4)}, {v(FA[st]+4*i,4)}, {v(FF[st]+4*a_,4)}, {cc}")
            if k >= 2 and k - 2 < len(nxt): o(nxt[k - 2])
    if stamp: stamp_mid2(o)
    o("s_nop 7")
    for b in range(8):
        for h in range(2):
            r = ACC + 4 * b + 2 * h
            o(f"v_cvt_pk_bf16_f32 v{r}, v{r}, v{r+1}")
            o(f"ds_write_b32 v{vOW}, v{r} offset:{512*b + 64*h}")
    for j in range(4): o(f"ds_read_b128 {v(FA[0]+4*j,4)}, v{vOR} offset:{1024*j}")
    o(f"s_lshl_b32 s36, s{sD}, 12")
    for j in range(4):
        o(f"s_waitcnt lgkmcnt({3-j})")
        o(f"buffer_store_dwordx4 {v(FA[0]+4*j,4)}, v12, s[{sAT}:{sAT+3}], s36 offen offset:{1024*j} {stmod}")
    if signal: signal(o)
    if stamp: stamp_end(o, sWave, 6, off=2 << 20)

def ssm(o, name="ssm_kernel", stamp=False, opt=None):
    kernel_begin(o, name)
    o(f"s_cmp_ge_u32 s2, 256\ns_cbranch_scc1 {name}_end")
    ssm_body(o, name, 2, stamp, opt)
    o.label(f"{name}_end")
    o("s_endpgm")
    kernel_desc(o, name, 248, 248)
    return f"; @launch kernel={name} grid=(256,1,1) block=(256,1,1) lds={4*WSTR}"
if __name__ == "__main__":
    print(conv_order())
```

```python
import sys, json
from asmlib import *
from gemm1b import gemm1
from gemm2 import gemm2
from ssm import ssm
HDR = open("gated_mix__ssm_conv_s4__swiglu_ffn__prompt.s.ref").read().split("; Override launch")[0]
def build(parts, path):
    o = A()
    o.raw('.amdgcn_target "amdgcn-amd-amdhsa--gfx950"')
    L = [p(o) for p in parts]
    open(path, "w").write(HDR + "\n".join(L) + "\n" + o.text())
if __name__ == "__main__":
    opt = json.loads(sys.argv[2]) if len(sys.argv) > 2 else {}
    st = opt.get("stamp", False)
    P = dict(g1=lambda o: gemm1(o, stamp=st, opt=opt), g2=lambda o: gemm2(o, stamp=st, opt=opt), ssm=lambda o: ssm(o, stamp=st, opt=opt))
    build([P[k] for k in opt.get("parts", ["g1", "ssm", "g2"])], sys.argv[1])
```

```python
class A:
    def __init__(self):
        self.l = []
        self.uid = 0
        self.nvm = 0; self.nds = 0; self.tags = {}
    def __call__(self, s):
        if isinstance(s, tuple):
            k = s[0]
            if k == "tv": self.tags[s[1]] = self.nvm
            elif k == "tl": self.tags[s[1]] = self.nds
            elif k == "wv": self.l.append("    s_waitcnt vmcnt(%d)" % min(63, self.nvm - max(self.tags[t] for t in s[1:])))
            elif k == "wl": self.l.append("    s_waitcnt lgkmcnt(%d)" % min(15, self.nds - self.tags[s[1]]))
            else: raise ValueError(s)
            return
        for line in s.strip("\n").split("\n"):
            line = line.strip()
            if line.startswith("!"):
                self.l.append("    " + line[1:]); continue
            if line.startswith("buffer_") or line.startswith("global_"): self.nvm += 1
            if line.startswith("ds_"): self.nds += 1
            self.l.append("    " + line)
    def label(self, s):
        self.l.append(s + ":")
    def raw(self, s):
        self.l.append(s)
    def newlabel(self, p="L"):
        self.uid += 1
        return "%s_%d" % (p, self.uid)
    def text(self):
        return "\n".join(self.l) + "\n"

def rng(kind, base, n):
    if n == 1:
        return "%s%d" % (kind, base)
    return "%s[%d:%d]" % (kind, base, base + n - 1)
def v(b, n=1): return rng("v", b, n)
def a(b, n=1): return rng("a", b, n)
def s(b, n=1): return rng("s", b, n)

def kernel_begin(A_, name):
    A_.raw(".text")
    A_.raw(".globl %s" % name)
    A_.raw(".p2align 8")
    A_.raw(".type %s,@function" % name)
    A_.label(name)

def kernel_desc(A_, name, nvgpr, accum, nsgpr=102):
    A_.raw('.section .rodata,"a"')
    A_.raw(".p2align 6")
    A_.raw(".amdhsa_kernel %s" % name)
    A_.raw("  .amdhsa_next_free_vgpr %d" % nvgpr)
    A_.raw("  .amdhsa_next_free_sgpr %d" % nsgpr)
    A_.raw("  .amdhsa_accum_offset %d" % accum)
    A_.raw("  .amdhsa_group_segment_fixed_size 0")
    A_.raw("  .amdhsa_kernarg_size 136")
    A_.raw("  .amdhsa_user_sgpr_count 2")
    A_.raw("  .amdhsa_user_sgpr_kernarg_segment_ptr 1")
    A_.raw("  .amdhsa_system_sgpr_workgroup_id_x 1")
    A_.raw("  .amdhsa_float_denorm_mode_32 3")
    A_.raw(".end_amdhsa_kernel")

def srd(A_, d, base, nbytes):
    A_("s_mov_b32 s%d, s%d" % (d, base))
    A_("s_and_b32 s%d, s%d, 0xffff" % (d + 1, base + 1))
    A_("s_mov_b32 s%d, 0x%x" % (d + 2, nbytes))
    A_("s_mov_b32 s%d, 0x20000" % (d + 3))

KA = dict(u=0, A_re=8, A_im=16, B_re=24, B_im=32, C_re=40, C_im=48, log_dt=56, Dskip=64, x_unused=72,
          wg=80, wu=88, wd=96, gw=104, out=112, dbg=120, ws=128)
WS_H = 0
WS_H_SIZE = 2048 * 3584 * 2
WS_AT = 16 << 20
WS_G = 20 << 20
WS_STAMP = 32 << 20
WS_FLAG = 21 << 20
WS_CNT = WS_FLAG + 32768
WS_K = 28 << 20
WS_X = 48 << 20
WS_K = 56 << 20
WS_X2 = 64 << 20
```

```python
from asmlib import *
from ssm import WS_UT
LOG2E = 0x3fb8aa3b
INV2PI = 0x3e22f983
RS = 512
BLK = 16 * RS
TOFF = 60 * RS + 16
XOFF = 4 * BLK
AWSTR = XOFF + 4096
GOFF = 4 * AWSTR

class Em:
    def __init__(self, o): self.o = o; self.n = 0; self.tags = {}
    def __call__(self, ins):
        if isinstance(ins, tuple):
            k = ins[0]
            if k == "tag": self.tags[ins[1]] = self.n
            elif k == "wait":
                c = self.n - self.tags[ins[1]]
                self.o(f"s_waitcnt lgkmcnt({min(c, 14)})")
            return
        self.o(ins)
        if ins.startswith("ds_"): self.n += 1

def merge(A_, B_, start=0, step=None):
    if not A_: return list(B_)
    out = []; nb = len(B_); na = len(A_) - start
    done = 0
    for i, x in enumerate(A_):
        out.append(x)
        if i >= start:
            want = min(nb, ((i - start + 1) * nb + na - 1) // na if step is None else int((i - start + 1) * step))
            while done < want: out.append(B_[done]); done += 1
    out += B_[done:]
    return out

def gather_setup(sB, GAd, SL, t1, t2, sC):
    vG01, vG2, vG3h, vG3l = GAd
    L = f"""v_sub_u32 v{t1}, 575, v0
    v_lshrrev_b32 v{t1}, 1, v{t1}
    v_lshl_add_u32 v{vG01}, v{t1}, 2, s{sB}
    v_lshlrev_b32 v{t1}, 2, v0
    v_sub_u32 v{t1}, 1020, v{t1}
    v_add_u32 v{vG2}, s{sB}, v{t1}
    v_cmp_gt_u32 vcc, 32, v0
    v_lshlrev_b32 v{t1}, 3, v0
    v_lshlrev_b32 v{t2}, 4, v0
    v_sub_u32 v{t1}, 764, v{t1}
    v_sub_u32 v{t2}, 1016, v{t2}
    v_cndmask_b32 v{t1}, v{t2}, v{t1}, vcc
    v_add_u32 v{vG3h}, s{sB}, v{t1}
    v_cndmask_b32 v{t2}, 12, 8, vcc
    v_sub_u32 v{vG3l}, v{vG3h}, v{t2}
    v_cndmask_b32 v{t1}, 0, -1, vcc
    v_cmp_gt_u32 vcc, 31, v0
    v_bfe_i32 v{t2}, v0, 0, 1""".split("\n")
    L = [x.strip() for x in L]
    def csel(d, m, tv, fv): return [f"v_and_b32 v{d}, {tv ^ fv}, v{m}", f"v_xor_b32 v{d}, {fv}, v{d}"]
    for k, tv in enumerate([0x01000302, 0x01000100]): L += csel(SL + 4 + k, t1, tv, 0x03020504)
    for k, tv in enumerate([0x03020504, 0x01000100, 0x05040504]): L += csel(SL + 7 + k, t1, tv, 0x05040706)
    L += [f"v_cndmask_b32 v{t1}, 0, -1, vcc"]
    L += csel(SL + 0, t2, 0x03020302, 0x05040504) + csel(SL + 1, t2, 0x01000100, 0x03020302)
    L += csel(SL + 2, t2, 0x01000100, 0x03020504) + csel(SL + 3, t2, 0x01000302, 0x05040504)
    L += csel(SL + 6, t1, 0x05040504, 0x03020504)
    for r, c in zip(sC, [0x03020504, 0x03020302, 0x01000100, 0x05040504, 0x01000302]): L.append(f"s_mov_b32 s{r}, {c}")
    return L

def aux_body(o, name, sJ, opt=None, stmod=""):
    opt = opt or {}
    ct = opt.get("ct", 0); nks = 2 if ct else 8
    sWave, sBase, sCh, sKo, sKo2, sXo, sUo, sGWo = 24, 26, 27, 28, 29, 30, 31, 32
    sX, sK, sU, sGW, sG = 8, 12, 16, 20, 84
    o(f"""
    s_load_dwordx8 s[40:47], s[0:1], {KA['A_re']}
    s_load_dwordx8 s[48:55], s[0:1], {KA['C_re']}
    s_load_dwordx2 s[4:5], s[0:1], {KA['u']}
    s_load_dwordx4 s[88:91], s[0:1], {KA['wd']}
    s_load_dwordx2 s[6:7], s[0:1], {KA['ws']}
    v_lshrrev_b32 v1, 6, v0
    v_and_b32 v0, 63, v0
    s_lshl_b32 s25, s{sJ}, 5
    v_readfirstlane_b32 s{sWave}, v1
    v_lshlrev_b32 v10, 2, v0
    v_lshlrev_b32 v12, 4, v0
    s_lshl_b32 s36, s{sWave}, 3
    s_add_u32 s25, s25, s36
    s_mul_i32 s{sBase}, s{sWave}, {AWSTR}
    s_lshl_b32 s36, s25, 8
    s_lshl_b32 s37, s25, 1
    s_lshl_b32 s{sKo}, s25, {11 if ct else 13}
    s_add_u32 s{sKo2}, s{sKo}, 4096
    v_add_u32 v10, s36, v10
    v_and_b32 v11, 7, v0
    v_lshl_add_u32 v11, v11, 1, s37
    s_mov_b32 s{sCh}, 0
    s_mov_b32 s56, {LOG2E}
    s_mov_b32 s57, {INV2PI}
    """)
    vStW, vStR, vT0, vT1a, vT1b, vT2, vL0, vDs = 13, 14, 15, 16, 17, 18, 19, 1
    vXd, vXtr, vXg, vUst, vGWa, vPf = 20, 21, 22, 23, 24, 25
    g, j_, t1, t2 = 26, 27, 28, 29
    SW = 30
    vStR2, vG01, vG2, vG3h, vG3l = 38, 39, 40, 41, 42
    RD = [vStR, vStR2, 43, 59]
    SL = 44
    vDt, vDtL, vDtP = 54, 55, 56
    GWR = 60; XR = 72; XU = 88
    KA_ = 92
    GB = 104
    OB = 116
    PK = [136, 140, 144, 148]
    PFD = 57
    POOL = list(range(152, 256, 4))
    aFR = 0; aG = 128; aTR = 144
    sDt, sDtL, sDtP, sDs = 58, 59, 82, 83
    sSel = [33 + 0]
    ldp = [f"global_load_dword v{2+k}, v10, s[{40+2*k}:{41+2*k}]" for k in range(6)]
    o(f"""
    v_lshrrev_b32 v{t1}, 2, v0
    v_lshlrev_b32 v{vXd}, 11, v{t1}
    v_and_b32 v{t2}, 3, v0
    v_lshl_add_u32 v{vXd}, v{t2}, 4, v{vXd}
    s_lshl_b32 s{sXo}, s{sJ}, 17
    s_lshl_b32 s36, s{sWave}, 9
    s_add_u32 s{sXo}, s{sXo}, s36
    s_mov_b32 s{sGWo}, s36
    v_lshrrev_b32 v{g}, 4, v0
    v_and_b32 v{j_}, 15, v0
    v_lshlrev_b32 v{vGWa}, 4, v{g}
    s_waitcnt lgkmcnt(0)
    """)
    o("global_load_ushort v8, v11, s[52:53]\nglobal_load_ushort v9, v11, s[54:55]")
    for x in ldp: o(x)
    srd(o, sX, 4, 2048 * 2048)
    srd(o, sGW, 90, 2048)
    def slice_ld():
        L = [f"s_add_u32 m0, s{sBase}, {XOFF}", f"s_add_u32 s33, s{sXo}, {16*2048 - 1024}"]
        L.append(f"buffer_load_dwordx4 v{vXd}, s[{sX}:{sX+3}], s{sXo} offen lds")
        L.append(f"s_add_u32 s34, s{sXo}, {32*2048 - 2048}")
        L.append(f"buffer_load_dwordx4 v{vXd}, s[{sX}:{sX+3}], s33 offen offset:1024 lds")
        L.append(f"s_add_u32 s33, s{sXo}, {48*2048 - 3072}")
        L.append(f"buffer_load_dwordx4 v{vXd}, s[{sX}:{sX+3}], s34 offen offset:2048 lds")
        L.append(f"s_add_u32 s{sXo}, s{sXo}, 64")
        L.append(f"buffer_load_dwordx4 v{vXd}, s[{sX}:{sX+3}], s33 offen offset:3072 lds")
        L.append(f"buffer_load_dwordx4 {v(GWR,4)}, v{vGWa}, s[{sGW}:{sGW+3}], s{sGWo} offen")
        L.append(f"s_add_u32 s{sGWo}, s{sGWo}, 64")
        return L
    for x in slice_ld(): o(x)
    o(f"s_add_u32 s4, s6, {WS_K}\ns_addc_u32 s5, s7, 0"); srd(o, sK, 4, 1024 * 8192)
    o(f"s_add_u32 s4, s6, {WS_UT}\ns_addc_u32 s5, s7, 0"); srd(o, sU, 4, 1024 * 4096)
    o(f"s_add_u32 s4, s6, {WS_G}\ns_addc_u32 s5, s7, 0"); srd(o, sG, 4, 2048 * 4)
    o(f"""
    s_add_u32 s4, s6, {WS_FLAG}
    s_addc_u32 s5, s7, 0
    s_lshl_b32 s36, s{sJ}, 2
    s_add_u32 s36, s36, s{sWave}
    s_lshl_b32 s37, s36, 10
    v_add_u32 v{t1}, s37, v12
    v_mov_b32 v{XU}, 0
    v_mov_b32 v{XU+1}, 0
    v_mov_b32 v{XU+2}, 0
    v_mov_b32 v{XU+3}, 0
    global_store_dwordx4 v{t1}, {v(XU,4)}, s[4:5] {stmod}
    s_mul_i32 s37, s36, {56*1024}
    v_lshlrev_b32 v{vPf}, 7, v0
    s_add_u32 s88, s88, s37
    s_addc_u32 s89, s89, 0
    s_and_b32 s89, s89, 0xffff
    s_mov_b32 s90, {56*1024}
    s_mov_b32 s91, 0x20000
    s_movk_i32 s95, 0x2000
    """)
    o(f"""
    v_lshlrev_b32 v{t1}, 3, v0
    v_add_u32 v{vStW}, s{sBase}, v{t1}
    v_and_b32 v{t2}, 7, v{j_}
    v_lshlrev_b32 v{t2}, 1, v{t2}
    v_xor_b32 v{t2}, v{t2}, v{g}
    v_lshlrev_b32 v{t1}, 9, v{j_}
    v_lshl_add_u32 v{t1}, v{t2}, 4, v{t1}
    v_add_u32 v{vStR}, s{sBase}, v{t1}
    v_xor_b32 v{RD[1]}, 64, v{vStR}
    v_xor_b32 v{RD[2]}, 128, v{vStR}
    v_xor_b32 v{RD[3]}, 192, v{vStR}
    s_add_u32 s39, s{sBase}, {TOFF}
    v_lshrrev_b32 v{t1}, 1, v{g}
    v_lshlrev_b32 v{t1}, 8, v{t1}
    v_and_b32 v{t2}, 1, v{g}
    v_lshl_add_u32 v{t1}, v{t2}, 3, v{t1}
    v_lshl_add_u32 v{t1}, v{j_}, 4, v{t1}
    v_add_u32 v{vT0}, s39, v{t1}
    v_lshlrev_b32 v{t1}, 7, v{g}
    v_add_u32 v{t1}, s39, v{t1}
    v_cmp_gt_u32 vcc, 2, v{g}
    v_lshlrev_b32 v{t2}, 2, v{j_}
    v_lshlrev_b32 v{vT1b}, 3, v{j_}
    v_cndmask_b32 v{t2}, v{t2}, v{vT1b}, vcc
    v_add_u32 v{vT1a}, v{t1}, v{t2}
    v_add_u32 v{vT1a}, 512, v{vT1a}
    v_cndmask_b32 v{t2}, 64, 4, vcc
    v_add_u32 v{vT1b}, v{vT1a}, v{t2}
    v_and_b32 v{t2}, 1, v{g}
    v_lshlrev_b32 v{t2}, 8, v{t2}
    v_lshl_add_u32 v{vT2}, v{j_}, 1, v{t2}
    v_lshrrev_b32 v{t2}, 1, v{g}
    v_lshl_add_u32 v{vT2}, v{t2}, 5, v{vT2}
    v_add_u32 v{vT2}, s39, v{vT2}
    v_add_u32 v{vT2}, 1024, v{vT2}
    v_cmp_eq_u32 vcc, 0, v0
    v_mov_b32 v{t1}, s{sBase}
    v_mov_b32 v{t2}, 0
    v_cndmask_b32 v{vL0}, 0, -1, vcc
    ds_write_b32 v{t1}, v{t2} offset:{TOFF-4}
    v_mov_b32 v{PK[0]}, 0x3f80
    v_mov_b32 v{PK[0]+1}, 0x3f80
    ds_write_b64 v{vStW}, {v(PK[0],2)} offset:{BLK}
    """)
    o(f"""
    s_add_u32 s36, s{sBase}, {XOFF}
    v_bfe_u32 v{t1}, v0, 2, 2
    v_lshl_add_u32 v{t1}, v{g}, 3, v{t1}
    v_lshlrev_b32 v{t1}, 6, v{t1}
    v_and_b32 v{t2}, 3, v0
    v_lshl_add_u32 v{t1}, v{t2}, 3, v{t1}
    v_add_u32 v{vXtr}, s36, v{t1}
    v_lshl_add_u32 v{t1}, v{j_}, 6, v{vGWa}
    v_add_u32 v{vXg}, s36, v{t1}
    v_lshl_add_u32 v{vUst}, v{j_}, 12, v{vGWa}
    s_lshl_b32 s{sUo}, s{sWave}, 20
    s_lshl_b32 s36, s{sJ}, 7
    s_add_u32 s{sUo}, s{sUo}, s36
    """)
    for k in range(8): o(f"v_xor_b32 v{SW+k}, {32*k}, v{vStW}")
    for r in range(16): o(f"v_accvgpr_write_b32 a{aG+r}, 0")
    sC = [35, 38, 80, 81, 94]
    if ct: o(f"v_add_u32 v{vG01}, s{sBase}, v12")
    else:
        for x in gather_setup(39, [vG01, vG2, vG3h, vG3l], SL, t1, t2, sC): o(x)
    o(f"""
    s_waitcnt vmcnt({6 + 5 + 1})
    v_lshlrev_b32 v{vDt}, 16, v8
    v_mul_f32 v{vDt}, s56, v{vDt}
    v_exp_f32 v{vDt}, v{vDt}
    v_lshlrev_b32 v9, 16, v9
    v_cvt_pk_bf16_f32 v{vDt}, v{vDt}, v{vDt}
    v_lshlrev_b32 v{vDt}, 16, v{vDt}
    v_mul_f32 v{vDtL}, s56, v{vDt}
    v_mul_f32 v{vDtP}, s57, v{vDt}
    """)

    def gen_head():
        L = []; free = list(POOL); R = {}
        def al(n): R[n] = free.pop(0); return R[n]
        Z = al("Z"); Bv = al("B"); Cv = al("C")
        L += f"""v_readlane_b32 s{sDtL}, v{vDtL}, s{sCh}
        v_readlane_b32 s{sDtP}, v{vDtP}, s{sCh}
        v_readlane_b32 s{sDt}, v{vDt}, s{sCh}
        v_readlane_b32 s{sDs}, v9, s{sCh}
        v_lshlrev_b32 v{Z}, 16, v2
        v_and_b32 v{Z+2}, 0xffff0000, v2
        v_lshlrev_b32 v{Z+1}, 16, v3
        v_and_b32 v{Z+3}, 0xffff0000, v3
        v_lshlrev_b32 v{Bv}, 16, v4
        v_and_b32 v{Bv+2}, 0xffff0000, v4
        v_mul_f32 v{Z}, s{sDtL}, v{Z}
        v_mul_f32 v{Z+1}, s{sDtP}, v{Z+1}
        v_mul_f32 v{Z+2}, s{sDtL}, v{Z+2}
        v_mul_f32 v{Z+3}, s{sDtP}, v{Z+3}
        v_lshlrev_b32 v{Bv+1}, 16, v5
        v_and_b32 v{Bv+3}, 0xffff0000, v5
        v_lshlrev_b32 v{Cv}, 16, v6
        v_and_b32 v{Cv+2}, 0xffff0000, v6
        v_lshlrev_b32 v{Cv+1}, 16, v7
        v_and_b32 v{Cv+3}, 0xffff0000, v7
        s_cmp_lt_u32 s{sCh}, 7
        s_cselect_b32 s36, 256, 0
        v_add_u32 v10, s36, v10
        v_mul_f32 v{Bv}, s{sDt}, v{Bv}
        v_mul_f32 v{Bv+1}, s{sDt}, v{Bv+1}
        v_mul_f32 v{Bv+2}, s{sDt}, v{Bv+2}
        v_mul_f32 v{Bv+3}, s{sDt}, v{Bv+3}
        v_and_b32 v{vDs}, s{sDs}, v{vL0}""".split("\n")
        L = [x.strip() for x in L]
        D = []
        ds = [("G8", 3), ("E1", 0), ("H1", 7), ("E1024", 10)]
        for n, e in ds: al(n); al(n + "t")
        for n, e in ds:
            if e:
                for h in range(4): D.append(f"v_ldexp_f32 v{R[n+'t']+h}, v{Z+h}, {e}")
        for n, e in ds:
            for h in (0, 2): D.append(f"v_fract_f32 v{R[n+'t']+h+1}, v{(R[n+'t'] if e else Z)+h+1}")
        for n, e in ds:
            for h in (0, 2): D.append(f"v_exp_f32 v{R[n+'t']+h}, v{(R[n+'t'] if e else Z)+h}")
        for n, e in ds:
            for h in (0, 2): D += [f"v_cos_f32 v{R[n]+h}, v{R[n+'t']+h+1}", f"v_sin_f32 v{R[n]+h+1}, v{R[n+'t']+h+1}"]
        L += merge(D, ldp, 0, 0.5)
        W = al("Y0")
        for h in (0, 2): L.append(f"v_pk_mul_f32 {v(W+h,2)}, {v(Bv+h,2)}, {v(Cv+h,2)} op_sel:[0,0] op_sel_hi:[1,0] neg_hi:[1,0]")
        for n, e in ds[:2]:
            for h in (0, 2): L.append(f"v_pk_mul_f32 {v(R[n]+h,2)}, {v(R[n]+h,2)}, {v(R[n+'t']+h,2)} op_sel_hi:[1,0]" + (" neg_hi:[1,0]" if n == "G8" else ""))
        for h in (0, 2): L.append(f"v_pk_fma_f32 {v(W+h,2)}, {v(Bv+h,2)}, {v(Cv+h,2)}, {v(W+h,2)} op_sel:[1,1,0] op_sel_hi:[0,1,1] neg_lo:[1,0,0] neg_hi:[1,0,0]")
        for n, e in ds[2:]:
            for h in (0, 2): L.append(f"v_pk_mul_f32 {v(R[n]+h,2)}, {v(R[n]+h,2)}, {v(R[n+'t']+h,2)} op_sel_hi:[1,0]")
        for n in ["Z", "B", "C"] + [n + "t" for n, e in ds]: free.append(R.pop(n))
        return L, R, free
    row = {f"Y{k}": k for k in range(16)}
    row.update({f"E{e}": 16 + e for e in range(1, 8)}); row.update({f"u{e}": 24 + e for e in range(1, 8)}); row["H1"] = 24
    row.update({"H2": 32, "H3": 36, "H4": 40, "H5": 42, "H6": 44, "H7": 46, "E1024": 48, "w8": 52})
    row.update({f"b{h}{e}": 32 + 4 * (h - 2) + e for h in (2, 3) for e in (1, 2, 3)}); row.update({f"c{h}": 41 + 2 * (h - 4) for h in (4, 5, 6, 7)})
    row.update({f"w{h}": 48 + (h >> 1) + 8 * (h & 1) for h in range(1, 8)})
    N_ = None
    ops = [("G16", "G8", "G8", N_), ("E2", "E1", "E1", N_), ("G32", "G16", "G16", N_), ("H2", "H1", "H1", N_), ("G64", "G32", "G32", N_),
           ("u1", "E1", "H1", "E1"), ("Y1", "Y0", "G8", N_), ("Y8", "Y0", "G64", "Y0"), ("E4", "E2", "E2", N_), ("u2", "E2", "H1", "E2"),
           ("Y2", "Y0", "G16", N_), ("Y9", "Y1", "G64", "Y1"), ("Y4", "Y0", "G32", N_), ("Y10", "Y2", "G64", "Y2"), ("Y3", "Y1", "G16", N_),
           ("Y12", "Y4", "G64", "Y4"), ("Y5", "Y1", "G32", N_), ("Y11", "Y3", "G64", "Y3"), ("Y6", "Y2", "G32", N_), ("Y13", "Y5", "G64", "Y5"),
           ("Y7", "Y3", "G32", N_), ("Y14", "Y6", "G64", "Y6"), ("E3", "E2", "E1", N_), ("Y15", "Y7", "G64", "Y7"), ("E5", "E4", "E1", N_),
           ("u4", "E4", "H1", "E4"), ("E6", "E4", "E2", N_), ("u3", "E3", "H1", "E3"), ("E7", "E4", "E3", N_), ("u5", "E5", "H1", "E5"),
           ("H3", "H2", "H1", N_), ("u6", "E6", "H1", "E6"), ("=H1", N_, N_, ""), ("u7", "E7", "H1", "E7"), ("b21", "H2", "E2", N_), ("H4", "H2", "H2", "H2"),
           ("w8", "E1024", "E1024", ""), ("c4", "H4", "E4", "b21"), ("H5", "H4", "H1", N_), ("H6", "H4", "H2", "H3"), ("b22", "H2", "E4", "H5"),
           ("c5", "H5", "E4", N_), ("b23", "H2", "E6", "c5"), ("b31", "H3", "E2", N_), ("c6", "H6", "E4", "b31"), ("H7", "H4", "H3", N_),
           ("b32", "H3", "E4", "H7"), ("c7", "H7", "E4", N_), ("b33", "H3", "E6", "c7"), ("w2", "E1024", "H2", N_), ("w1", "E1024", "H1", "E1024"),
           ("w3", "E1024", "H3", "w2"), ("w4", "E1024", "H4", N_), ("w5", "E1024", "H5", "w4"), ("w6", "E1024", "H6", N_), ("w7", "E1024", "H7", "w6")]
    wr = [x[0].lstrip("=") for x in ops if x[3] is not None] + [x[3] for x in ops if x[3]]
    assert sorted(wr) == sorted(row), set(row) ^ set(wr)
    pos = {x[0]: i for i, x in enumerate(ops)}
    for i, x in enumerate(ops):
        for s_ in x[1:3]:
            if s_ in pos: assert pos[s_] <= i - 2, x
        if x[3]: assert pos.get(x[3], -1) < i and (row[x[3]] - row[x[0]]) % 8 == 0, x
    last = {}
    for i, x in enumerate(ops):
        nm = x[0].lstrip("=")
        last[nm] = max(last.get(nm, -1), i + 2 if x[3] is not None else i + 1)
        if x[3]: last[x[3]] = max(last.get(x[3], -1), i + 1)
        for s_ in x[1:3]:
            if s_: last[s_] = max(last.get(s_, -1), i + 1)
    def gen_body(R, free):
        L = []; N = len(ops); pkc = 0; pkof = {}; pend = []; rdat = {"Y15": 0, "u7": 1, "b33": 2}
        for k in range(N + 3):
            if k < N and ops[k][1]:
                n, a_, b_, _ = ops[k]; R[n] = free.pop(0); d = R[n]
                for h in (0, 2): L.append(f"v_pk_mul_f32 {v(d+h,2)}, {v(R[a_]+h,2)}, {v(R[b_]+h,2)} op_sel:[0,0] op_sel_hi:[1,0]")
            if 0 <= k - 3 < N and ops[k-3][3] is not None:
                r0 = row[ops[k-3][0].lstrip("=")]; p = pkof[k-3]
                if ops[k-3][3]: L.append(f"ds_write2st64_b64 v{SW+(r0&7)}, {v(p,2)}, {v(p+2,2)} offset0:{r0} offset1:{row[ops[k-3][3]]}")
                else: L.append(f"ds_write_b64 v{SW+(r0&7)}, {v(p,2)} offset:{r0*RS}")
            if 0 <= k - 1 < N and ops[k-1][1]:
                n, a_, b_, _ = ops[k-1]; d = R[n]
                for h in (0, 2): L.append(f"v_pk_fma_f32 {v(d+h,2)}, {v(R[a_]+h,2)}, {v(R[b_]+h,2)}, {v(d+h,2)} op_sel:[1,1,0] op_sel_hi:[0,1,1] neg_lo:[1,0,0]")
            if 0 <= k - 1 < N and ops[k-1][3] is not None:
                p = PK[pkc & 3]; pkc += 1; pkof[k-1] = p
                if ops[k-1][3]:
                    x = R[ops[k-1][3]]
                    L += [f"v_cvt_pk_bf16_f32 v{p+2}, v{x}, v{x+1}", f"v_cvt_pk_bf16_f32 v{p+3}, v{x+2}, v{x+3}"]
            if 0 <= k - 2 < N and ops[k-2][3] is not None:
                x = R[ops[k-2][0].lstrip("=")]; p = pkof[k-2]
                L += [f"v_cvt_pk_bf16_f32 v{p}, v{x}, v{x+1}", f"v_cvt_pk_bf16_f32 v{p+1}, v{x+2}, v{x+3}"]
            for n in [n for n in R if last[n] == k]: free.append(R.pop(n))
            if 0 <= k - 3 < N and ops[k-3][0] in rdat: pend += rd_blk(rdat[ops[k-3][0]])
            for _ in range(2 if k > N - 8 else 1):
                if pend: L.append(pend.pop(0))
        L += pend + [("tag", "fr2")]
        return L
    def rd_blk(blk): return [f"ds_read_b128 {a(aFR+32*blk+4*ks,4)}, v{RD[ks&3]} offset:{blk*BLK + 256*(ks>>2)}" for ks in range(8)]
    def frag_reads():
        L = rd_blk(3) + [("tag", "fr")]
        L += [f"v_mov_b32 v{KA_}, v{vDs}", f"v_mov_b32 v{KA_+1}, 0", f"v_mov_b32 v{KA_+2}, 0", f"v_mov_b32 v{KA_+3}, 0"]
        return L
    def tail_mfma():
        L = []
        def mf(blk, ks):
            c = v(KA_+4*blk, 4) if (ks or blk == 0) else "0"
            return f"v_mfma_f32_16x16x32_bf16 {v(KA_+4*blk,4)}, {a(aFR+32*(blk+1)+4*ks,4)}, {a(aFR+4*ks,4)}, {c}"
        L.append(("wait", "fr2"))
        for ks in range(4): L += [mf(0, ks), mf(1, ks)]
        L.append(("wait", "fr"))
        for ks in range(4): L += [mf(2, 2 * ks), mf(0, 4 + ks), mf(2, 2 * ks + 1), mf(1, 4 + ks)]
        return L
    def tail_rest():
        L = [f"v_cvt_pk_bf16_f32 v{KA_+2*q}, v{KA_+2*q}, v{KA_+2*q+1}" for q in (2, 3, 4, 5)]
        L += [f"v_cvt_pk_bf16_f32 v{KA_}, v{KA_}, v{KA_+1}", f"v_cvt_pk_bf16_f32 v{KA_+1}, v{KA_+2}, v{KA_+3}"]
        L += [f"ds_write_b32 v{vT1a}, v{KA_+4}", f"ds_write_b32 v{vT1b}, v{KA_+6}",
              f"ds_write_b16 v{vT2}, v{KA_+8}", f"ds_write_b16_d16_hi v{vT2}, v{KA_+8} offset:64",
              f"ds_write_b16 v{vT2}, v{KA_+10} offset:128", f"ds_write_b16_d16_hi v{vT2}, v{KA_+10} offset:192",
              f"ds_write_b64 v{vT0}, {v(KA_,2)}"]
        if ct:
            L += [f"ds_read_b128 {v(OB,4)}, v{vG01} offset:{TOFF-16}", f"ds_read_b128 {v(OB+4,4)}, v{vG01} offset:{TOFF-16+1024}", ("tag", "g"), ("tag", "pad"), ("tag", "pad"), ("wait", "g")]
            L += [f"buffer_store_dwordx4 {v(OB+4*k,4)}, v12, s[{sK}:{sK+3}], s{sKo} offen offset:{1024*k} {stmod}" for k in range(2)]
            return L + [f"s_add_u32 s{sKo}, s{sKo}, 2048"]
        L += [f"ds_read2_b32 {v(GB,2)}, v{vG01} offset0:32 offset1:33", f"ds_read2_b32 {v(GB+2,2)}, v{vG01} offset0:0 offset1:1",
              f"ds_read2_b32 {v(GB+4,2)}, v{vG2} offset0:0 offset1:1", f"ds_read2_b32 {v(GB+10,2)}, v{vG3h} offset0:0 offset1:1",
              f"ds_read2_b32 {v(GB+8,2)}, v{vG3l} offset0:1 offset1:2", f"ds_read_b32 v{GB+7}, v{vG3l}", ("tag", "g"), ("tag", "pad"), ("tag", "pad"), ("wait", "g")]
        def st(ob, c, kb): return f"buffer_store_dwordx4 {v(ob,4)}, v12, s[{sK}:{sK+3}], s{sKo2 if c else sKo} offen offset:{1024*kb} {stmod}"
        def pm(d, e, sel): return f"v_perm_b32 v{d}, v{e+1}, v{e}, {sel}"
        for kb in (0, 1):
            L += [pm(OB+4*kb+j, GB+2*kb, f"v{SL+q}") for j, q in enumerate((0, 2, 1, 1))] + [st(OB+4*kb, 0, kb)]
        L += [pm(OB+8+j, GB+4, f"s{sC[q]}") for j, q in enumerate((0, 1, 2, 2))] + [st(OB+8, 0, 2)]
        L += [pm(OB+12+j, GB+10-j, f"v{SL+4+q}") for j, q in enumerate((0, 1, 0, 2))] + [st(OB+12, 0, 3)]
        L += [pm(OB+16+j, GB+10-j, f"v{SL+7+q}") for j, q in enumerate((0, 1, 0, 2))] + [st(OB+16, 1, 3)]
        for kb in (0, 1): L += [pm(OB+4*kb+1, GB+2*kb, f"v{SL+3}"), st(OB+4*kb, 1, kb)]
        L += [pm(OB+8, GB+4, f"s{sC[3]}"), pm(OB+10, GB+4, f"s{sC[4]}"), st(OB+8, 1, 2)]
        L += [f"s_add_u32 s{sKo}, s{sKo}, 8192", f"s_add_u32 s{sKo2}, s{sKo2}, 8192"]
        return L
    def slice_work(more):
        L = []
        for blk in range(2):
            for th in range(2):
                for r2 in range(2):
                    L.append(f"ds_read_b64_tr_b16 {a(aTR+(blk*2+th)*4+2*r2,2)}, v{vXtr} offset:{blk*32 + th*2048 + r2*256}")
        L.append(("tag", "tr"))
        for q in range(4): L.append(f"ds_read_b128 {v(XR+4*q,4)}, v{vXg} offset:{1024*q}")
        L.append(("tag", "xr"))
        L += [("tag", "pad"), ("tag", "pad"), ("wait", "xr")]
        for q in range(4): L.append(f"v_mfma_f32_16x16x32_bf16 {a(aG+4*q,4)}, {v(XR+4*q,4)}, {v(GWR,4)}, {a(aG+4*q,4)}")
        for blk in range(2):
            for th in range(2):
                L.append(f"buffer_store_dwordx4 {a(aTR+(blk*2+th)*4,4)}, v{vUst}, s[{sU}:{sU+3}], s{sUo} offen offset:{64*th} {stmod}")
            L.append(f"s_add_u32 s{sUo}, s{sUo}, {16*4096}")
        if more: L += slice_ld()
        return L
    def pf():
        if not opt.get("pf", 0): return []
        if opt["pf"] == 2:
            return [f"buffer_load_dword v{PFD}, v{vPf}, s[88:91], 0 offen", f"buffer_load_dword v{PFD+1}, v{vPf}, s[88:91], 0 offen offset:64", f"v_add_u32 v{vPf}, 8192, v{vPf}"]
        return [f"buffer_load_dword v{PFD}, v{vPf}, s[88:91], 0 offen", f"buffer_load_dword v{PFD+1}, v{vPf}, s[88:91], s95 offen", f"v_add_u32 v{vPf}, 16384, v{vPf}"]
    em = Em(o)
    o("s_waitcnt vmcnt(6)")
    Hd, R, free = gen_head()
    for x in Hd + gen_body(R, free) + frag_reads(): em(x)
    o(f"s_mov_b32 s{sCh}, 1\ns_waitcnt vmcnt(0)")
    if opt.get("stamp"):
        from gemm1b import stamp_mid1, stamp_mid2
        stamp_mid1(o)
    o.label(f"{name}_aloop")
    npf = 2 if opt.get("pf", 0) else 0
    o(f"s_waitcnt vmcnt({nks + 4 + 5 + npf})")
    Hd, R, free = gen_head()
    S = merge(Hd[:-14], tail_mfma(), 4) + Hd[-14:]
    B = gen_body(R, free)
    T = tail_rest() + [f"s_waitcnt vmcnt({6 + nks + npf})"] + slice_work(True) + pf()
    S += merge(B, T, 0)
    S += frag_reads() + [f"s_add_u32 s{sCh}, s{sCh}, 1", f"s_cmp_lt_u32 s{sCh}, 8", f"s_cbranch_scc1 {name}_aloop"]
    def keep(x):
        if isinstance(x, tuple): return not (x[0] == 'wait' and 'wait' in opt.get('ax_drop', []))
        for pat in opt.get("ax_drop", []):
            if x.startswith(pat): return False
        return True
    for x in S:
        if keep(x): em(x)
    if opt.get("stamp"): stamp_mid2(o)
    for x in tail_mfma() + ["s_nop 7"] + tail_rest() + [f"s_waitcnt vmcnt({nks + npf})"] + slice_work(False): em(x)
    o(f"""
    s_nop 7
    s_lshl_b32 s36, s{sWave}, 8
    s_add_u32 s36, s36, {GOFF}
    v_add_u32 v{t1}, s36, v{vGWa}
    """)
    for q in range(4): o(f"ds_write_b128 v{t1}, {a(aG+4*q,4)} offset:{64*q}")
    o(f"""
    v_lshlrev_b32 v{t2}, 2, v0
    v_add_u32 v{t1}, {GOFF}, v{t2}
    s_waitcnt lgkmcnt(0)
    s_barrier
    ds_read_b32 v{XU}, v{t1}
    ds_read_b32 v{XU+1}, v{t1} offset:256
    ds_read_b32 v{XU+2}, v{t1} offset:512
    ds_read_b32 v{XU+3}, v{t1} offset:768
    s_mov_b32 s38, 0xbfb8aa3b
    s_lshl_b32 s36, s{sJ}, 8
    s_waitcnt lgkmcnt(0)
    v_add_f32 v{XU}, v{XU}, v{XU+1}
    v_add_f32 v{XU+2}, v{XU+2}, v{XU+3}
    v_add_f32 v{XU}, v{XU}, v{XU+2}
    v_cvt_pk_bf16_f32 v{XU}, v{XU}, v{XU}
    v_lshlrev_b32 v{XU}, 16, v{XU}
    v_mul_f32 v{XU}, s38, v{XU}
    v_exp_f32 v{XU}, v{XU}
    s_nop 0
    v_add_f32 v{XU}, 1.0, v{XU}
    v_rcp_f32 v{XU}, v{XU}
    s_nop 0
    v_cvt_pk_bf16_f32 v{XU}, v{XU}, v{XU}
    v_lshlrev_b32 v{XU}, 16, v{XU}
    buffer_store_dword v{XU}, v{t2}, s[{sG}:{sG+3}], s36 offen {stmod}
    """)
```

```python
from asmlib import *
from gemm1b import stamp_begin, stamp_mid1, stamp_mid2, stamp_end
from ssm import conv_order, WS_UT
KSTR = 4640
UOFF = 9280
USTR = 4224
CWSTR = UOFF + 8448

class Conv:
    def __init__(self, o, sD, sBase, sU, sK, sAT, vL16, vAddr, vData, ws=6, ldmod="", stmod="", tmp=(36, 37, 38), pair=4):
        self.o = o; self.sD = sD; self.sBase = sBase; self.sU = sU; self.sK = sK; self.sAT = sAT
        self.vL16 = vL16; self.ws = ws; self.ldmod = ldmod; self.stmod = stmod; self.tmp = tmp; self.pair = pair
        (self.vKZ, self.vKR, self.vUR, self.vUZ, self.vOW, self.vOR, self.t0, self.t1, self.t2, self.t3) = range(vAddr, vAddr + 10)
        self.ACC = vData; self.FA = [vData + 32, vData + 96]; self.FF = [vData + 64, vData + 128]
    def srds(self):
        o, ws, p = self.o, self.ws, self.pair
        o(f"s_add_u32 s{p}, s{ws}, {WS_UT - 16}\ns_addc_u32 s{p+1}, s{ws+1}, 0"); srd(o, self.sU, p, 1024 * 4096 + 16)
        o(f"s_add_u32 s{p}, s{ws}, {WS_K}\ns_addc_u32 s{p+1}, s{ws+1}, 0"); srd(o, self.sK, p, 1024 * 8192)
        o(f"s_add_u32 s{p}, s{ws}, {WS_AT}\ns_addc_u32 s{p+1}, s{ws+1}, 0"); srd(o, self.sAT, p, 1024 * 4096)
    def dma(self):
        o = self.o; a_, b_, c_ = self.tmp
        o(f"""
        s_lshl_b32 s{a_}, s{self.sD}, 13
        s_add_u32 s{b_}, s{a_}, 4096
        s_mov_b32 m0, s{self.sBase}
        s_lshl_b32 s{c_}, s{self.sD}, 12
        """)
        for j in range(4): o(f"buffer_load_dwordx4 v{self.vL16}, s[{self.sK}:{self.sK+3}], s{a_} offen offset:{1024*j} {self.ldmod} lds")
        o(f"s_add_u32 m0, s{self.sBase}, {KSTR}\ns_add_u32 s{a_}, s{c_}, 16")
        for j in range(4): o(f"buffer_load_dwordx4 v{self.vL16}, s[{self.sK}:{self.sK+3}], s{b_} offen offset:{1024*j} {self.ldmod} lds")
        o(f"s_add_u32 m0, s{self.sBase}, {UOFF + 64}\ns_add_u32 s{b_}, s{c_}, 12")
        for j in range(4): o(f"buffer_load_dwordx4 v{self.vL16}, s[{self.sU}:{self.sU+3}], s{a_} offen offset:{1024*j} {self.ldmod} lds")
        o(f"s_add_u32 m0, s{self.sBase}, {UOFF + USTR + 64}\ns_nop 0")
        for j in range(4): o(f"buffer_load_dwordx4 v{self.vL16}, s[{self.sU}:{self.sU+3}], s{b_} offen offset:{1024*j} {self.ldmod} lds")
    def addrs(self):
        o = self.o; a_ = self.tmp[0]; sB = self.sBase
        g, j_, t1, t2 = self.t0, self.t1, self.t2, self.t3
        o(f"""
        v_lshrrev_b32 v{g}, 4, v0
        v_and_b32 v{j_}, 15, v0
        s_add_u32 s{a_}, s{sB}, 4096
        v_lshl_add_u32 v{self.vKZ}, v0, 3, s{a_}
        v_and_b32 v{t1}, 1, v0
        v_mul_u32_u24 v{t2}, {KSTR}, v{t1}
        v_lshl_add_u32 v{t2}, v{g}, 4, v{t2}
        v_lshrrev_b32 v{self.vKR}, 1, v{j_}
        v_lshlrev_b32 v{self.vKR}, 6, v{self.vKR}
        v_sub_u32 v{self.vKR}, v{t2}, v{self.vKR}
        s_add_u32 s{a_}, s{sB}, 448
        v_add_u32 v{self.vKR}, s{a_}, v{self.vKR}
        v_mul_u32_u24 v{t2}, {USTR + 4}, v{t1}
        v_lshlrev_b32 v{self.vUR}, 2, v{j_}
        v_lshl_add_u32 v{self.vUR}, v{g}, 4, v{self.vUR}
        v_sub_u32 v{self.vUR}, v{self.vUR}, v{t2}
        s_add_u32 s{a_}, s{sB}, {UOFF + USTR + 8}
        v_add_u32 v{self.vUR}, s{a_}, v{self.vUR}
        v_subrev_u32 v{t1}, 16, v0
        v_min_u32 v{t1}, 16, v{t1}
        v_lshlrev_b32 v{t1}, 2, v{t1}
        v_add_u32 v{t1}, {USTR}, v{t1}
        v_lshlrev_b32 v{t2}, 2, v0
        v_cmp_gt_u32 vcc, 16, v0
        s_add_u32 s{a_}, s{sB}, {UOFF}
        s_nop 0
        v_cndmask_b32 v{t1}, v{t1}, v{t2}, vcc
        v_add_u32 v{self.vUZ}, s{a_}, v{t1}
        v_lshlrev_b32 v{t1}, 7, v{g}
        v_lshl_add_u32 v{t1}, v{j_}, 2, v{t1}
        v_add_u32 v{self.vOW}, s{sB}, v{t1}
        v_add_u32 v{self.vOR}, s{sB}, v{self.vL16}
        v_mov_b32 v{self.t0}, 0
        v_mov_b32 v{self.t1}, 0
        """)
    def zeroK(self):
        assert self.t0 % 2 == 0
        self.o(f"ds_write_b64 v{self.vKZ}, {v(self.t0,2)}\nds_write_b64 v{self.vKZ}, {v(self.t0,2)} offset:{KSTR}")
    def zeroU(self):
        self.o(f"ds_write_b32 v{self.vUZ}, v{self.t0}")
    def main(self, hooks=None, fills=None):
        o = self.o; hooks = hooks or {}; fills = fills or {}
        FA, FF, ACC = self.FA, self.FF, self.ACC
        def rdA(c, st): return [f"ds_read_b128 {v(FA[st]+4*i,4)}, v{self.vKR} offset:{3584 - 64*(8*i - c)}" for i in range(8)]
        def rdF(c, st): return [f"ds_read_b64 {v(FF[st]+4*a_+2*hf,2)}, v{self.vUR} offset:{64*(8*a_+c) + 8*hf}" for a_ in range(8) for hf in range(2)]
        def rdall(c, st):
            A_, F_ = rdA(c, st), rdF(c, st)
            L = []
            for i in (3, 4, 2, 5, 1, 6, 0, 7): L += [A_[i], F_[2*i], F_[2*i+1]]
            return L
        for x in rdall(0, 0): o(x)
        order = conv_order()
        seen = set()
        for c in range(8):
            st = c & 1
            o("s_waitcnt lgkmcnt(0)")
            if c in hooks: hooks[c]()
            nxt = rdall(c + 1, st ^ 1) if c < 7 else []
            for k, (i, a_) in enumerate(order):
                b = i + a_
                cc = v(ACC+4*b, 4) if b in seen else "0"
                seen.add(b)
                o(f"v_mfma_f32_16x16x32_bf16 {v(ACC+4*b,4)}, {v(FA[st]+4*i,4)}, {v(FF[st]+4*a_,4)}, {cc}")
                if k >= 2 and k - 2 < len(nxt): o(nxt[k - 2])
                for x in fills.get((c, k), []): o(x)
    def out(self):
        o = self.o; a_ = self.tmp[0]
        o("s_nop 3")
        for b in range(8):
            for h in range(2):
                r = self.ACC + 4 * b + 2 * h
                o(f"v_cvt_pk_bf16_f32 v{r}, v{r}, v{r+1}")
                o(f"ds_write_b32 v{self.vOW}, v{r} offset:{512*b + 64*h}")
        for j in range(4): o(f"ds_read_b128 {v(self.FA[0]+4*j,4)}, v{self.vOR} offset:{1024*j}")
        o(f"s_lshl_b32 s{a_}, s{self.sD}, 12")
        for j in range(4):
            o(f"s_waitcnt lgkmcnt({3-j})")
            o(f"buffer_store_dwordx4 {v(self.FA[0]+4*j,4)}, v{self.vL16}, s[{self.sAT}:{self.sAT+3}], s{a_} offen offset:{1024*j} {self.stmod}")

def conv_kernel(o, name="conv_kernel", stamp=False, opt=None):
    kernel_begin(o, name)
    o(f"s_cmp_ge_u32 s2, 256\ns_cbranch_scc1 {name}_end")
    o(f"s_load_dwordx2 s[6:7], s[0:1], {KA['ws']}")
    if stamp: stamp_begin(o)
    o(f"""
    v_lshrrev_b32 v1, 6, v0
    v_and_b32 v0, 63, v0
    s_lshl_b32 s25, s2, 2
    v_readfirstlane_b32 s24, v1
    v_lshlrev_b32 v12, 4, v0
    s_nop 0
    s_add_u32 s25, s25, s24
    s_mul_i32 s26, s24, {CWSTR}
    s_waitcnt lgkmcnt(0)
    """)
    C = Conv(o, 25, 26, 8, 12, 16, 12, 14, 32)
    C.srds(); C.dma(); C.addrs(); C.zeroK()
    o("s_waitcnt vmcnt(0)"); C.zeroU()
    if stamp: stamp_mid1(o)
    C.main()
    if stamp: stamp_mid2(o)
    C.out()
    if stamp: stamp_end(o, 24, 6, off=2 << 20)
    o.label(f"{name}_end")
    o("s_endpgm")
    kernel_desc(o, name, 192, 192)
    return f"; @launch kernel={name} grid=(256,1,1) block=(256,1,1) lds={4*CWSTR}"
```

```python
from asmlib import *
from gemm1b import gemm1
from conv import Conv, CWSTR, KSTR, UOFF, USTR
from aux import merge, gather_setup
COFF = 163840 - 4 * CWSTR
XOFF2 = 131072
HCNT = 32768 + 4096

class Fused:
    def __init__(self, o, name, opt):
        self.o = o; self.name = name; self.opt = opt; self.st = opt.get("fstamp", False)
        self.sWs, self.sK, self.sU, self.sH, self.sAT, self.sO, self.sG, self.sX = 8, 12, 16, 20, 84, 88, 40, 52
        (self.sTT, self.sDP, self.sKH, self.sD, self.sCB, self.sM0, self.sWoff, self.sHoff) = range(27, 35)
        self.sSW = [44, 45]; self.sSH = [46, 47]; self.sHC = 51
        self.vWd = [18, 19, 20, 21]; self.vH = [12, 13, 14, 15]; self.vA = 192
        self.STG = 192
        self.C = Conv(o, self.sD, self.sCB, self.sU, self.sK, self.sAT, 1, 2, 32, ldmod="sc1", stmod="sc1", tmp=(48, 49, 50))
        self.GA = 40; self.SL = 10; self.GB = 44; self.sC = [25, 26, 37, 58, 59]
        self.PW = 5; self.PH = opt.get("PH", 8)
    def stamp(self, i, force=False):
        if self.opt.get("kst") and 0 < i < 9 and not force: return
        if i == 0:
            self.o(f"s_load_dwordx2 s[92:93], s[0:1], {KA['wd']}\ns_load_dwordx4 s[96:99], s[0:1], {KA['out']}")
        if self.st: self.o(f"{'s_memtime' if self.st == 2 else 's_memrealtime'} s[{60+2*i}:{61+2*i}]")
    def spin(self, lbl, vdst, vaddr, sbase, need, first_wait):
        n = f"{self.name}_{lbl}"
        return [first_wait, f"v_readfirstlane_b32 s48, v{vdst}", f"s_mov_b32 s49, 0", f"s_cmp_ge_u32 s48, {need}", f"s_cbranch_scc1 {n}_go",
                f"{n}:", f"s_sleep {self.opt.get('sleep', 4)}", f"!global_load_dword v{vdst}, v{vaddr}, s[{sbase}:{sbase+1}] sc1", "s_add_u32 s49, s49, 1",
                "s_waitcnt vmcnt(0)", f"v_readfirstlane_b32 s48, v{vdst}", "s_cmp_ge_u32 s49, 0x40000", f"s_cbranch_scc1 {n}_go",
                f"s_cmp_lt_u32 s48, {need}", f"s_cbranch_scc1 {n}", f"{n}_go:"]
    def emit(self, L):
        for x in L:
            if isinstance(x, str) and x.startswith("!"): self.o.raw("    " + x[1:])
            else: self.o(x)
    def setup(self):
        S = self; t = A()
        rot = S.opt.get("rot2", 1); rev = S.opt.get("rev2", 1)
        t(f"""
        s_and_b32 s3, s2, 7
        s_lshr_b32 s48, s2, 3
        s_and_b32 s49, s3, 1
        s_lshl_b32 s49, s49, 3
        s_and_b32 s50, s48, 7
        s_add_u32 s{S.sTT}, s49, s50
        s_bfe_u32 s35, s3, 0x10001
        s_lshl_b32 s49, s35, 2
        s_lshr_b32 s50, s48, 3
        s_add_u32 s{S.sDP}, s49, s50
        s_lshr_b32 s{S.sKH}, s3, 2
        s_lshl_b32 s{S.sD}, s2, 2
        s_add_u32 s{S.sD}, s{S.sD}, s24
        s_mul_i32 s{S.sCB}, s24, {CWSTR}
        s_add_u32 s{S.sCB}, s{S.sCB}, {COFF}
        s_lshl_b32 s{S.sM0}, s24, 12
        s_add_u32 s48, s{S.sTT}, s{S.sDP}
        s_and_b32 s48, s48, {rot}
        s_and_b32 s35, s35, {rev}
        s_lshl_b32 s49, s48, 1
        s_sub_u32 s{S.sSH[0]}, 1, s49
        s_add_u32 s{S.sSH[1]}, 1, s49
        s_sub_u32 s49, 27, s48
        s_cmp_eq_u32 s35, 1
        s_cselect_b32 s{S.sHoff}, s49, s48
        s_cselect_b32 s49, -1, 1
        s_mul_i32 s{S.sSH[0]}, s{S.sSH[0]}, s49
        s_mul_i32 s{S.sSH[1]}, s{S.sSH[1]}, s49
        s_lshl_b32 s{S.sWoff}, s{S.sHoff}, 17
        s_lshl_b32 s{S.sHoff}, s{S.sHoff}, 11
        s_lshl_b32 s{S.sSW[0]}, s{S.sSH[0]}, 17
        s_lshl_b32 s{S.sSW[1]}, s{S.sSH[1]}, 17
        s_lshl_b32 s{S.sSH[0]}, s{S.sSH[0]}, 11
        s_lshl_b32 s{S.sSH[1]}, s{S.sSH[1]}, 11
        v_lshrrev_b32 v19, 4, v0
        v_lshlrev_b32 v18, 11, v19
        v_bfe_u32 v20, v0, 1, 3
        v_xor_b32 v20, v20, v19
        v_lshlrev_b32 v20, 5, v20
        v_and_b32 v21, 1, v0
        v_lshl_add_u32 v20, v21, 4, v20
        v_add_u32 v18, v18, v20
        s_lshl_b32 s48, s24, 15
        s_lshl_b32 s49, s{S.sDP}, 8
        s_add_u32 s48, s48, s49
        s_mul_i32 s49, s{S.sKH}, {1792*2048}
        s_add_u32 s48, s48, s49
        v_add_u32 v18, s48, v18
        v_xor_b32 v21, 128, v18
        v_add_u32 v19, {1*(8192-1024)}, v21
        v_add_u32 v20, {2*(8192-1024)}, v18
        v_add_u32 v21, {3*(8192-1024)}, v21
        s_add_u32 s56, s6, {WS_FLAG}
        s_addc_u32 s57, s7, 0
        """)
        srd(t, S.sWs, 92, 3584 * 2048)
        c = Conv(t, S.sD, S.sCB, S.sU, S.sK, S.sAT, 1, 2, 32)
        c.srds()
        return [x.strip() for x in t.l if x.strip()]
    def setup2(self):
        S = self
        return [f"s_lshl_b32 s50, s{S.sD}, 11", "s_add_u32 s50, s50, 16"] + gather_setup(50, range(S.GA, S.GA + 4), 56, 66, 67, S.sC)
    def dmaW(self, st):
        S = self
        L = [f"s_add_u32 m0, s{S.sM0}, {(st & 7) * 16384}"]
        L += [f"buffer_load_dwordx4 v{S.vWd[j]}, s[{S.sWs}:{S.sWs+3}], s{S.sWoff} offen offset:{1024*j} lds" for j in range(4)]
        return L, [("tv", f"W{st}"), f"s_add_u32 s{S.sWoff}, s{S.sWoff}, s{S.sSW[st & 1]}"]
    def fh(self, st, nb): return 64 + (st & 7) * 16 + nb * 4
    def ldH(self, st, nb):
        S = self
        L = [f"buffer_load_dwordx4 {a(S.fh(st, nb), 4)}, v{S.vH[nb]}, s[{S.sH}:{S.sH+3}], s{S.sHoff} offen sc1"]
        if nb == 3: L += [("tv", f"H{st}"), f"s_add_u32 s{S.sHoff}, s{S.sHoff}, s{S.sSH[st & 1]}"]
        return L
    def pf(self):
        S = self; G = []
        G.append([f"s_lshl_b32 s50, s{S.sD}, 12"])
        K = f"s[{S.sK}:{S.sK+3}], 0 offen"; GA, GB = S.GA, S.GB
        G += [[f"buffer_load_dwordx2 {v(GB,2)}, v{GA}, {K} offset:128 sc1"], [f"buffer_load_dwordx2 {v(GB+2,2)}, v{GA}, {K} sc1"],
              [f"buffer_load_dwordx2 {v(GB+4,2)}, v{GA+1}, {K} sc1"], [f"buffer_load_dwordx2 {v(GB+6,2)}, v{GA+2}, {K} sc1"],
              [f"buffer_load_dwordx4 {v(GB+8,4)}, v{GA+3}, {K} sc1"]]
        for c in range(2):
            for j in range(4): G.append([f"buffer_load_dwordx4 {a(S.STG+32+16*c+4*j,4)}, v1, s[{S.sU}:{S.sU+3}], s50 offen offset:{1024*j+16-4*c} sc1"])
        G[-1].append(("tv", "KU"))
        return G
    def peel(self, h):
        S = self; f = {}
        if h == 0:
            for i, x in enumerate(S.setup()): f.setdefault(2 + i // 3, []).append(x)
            assert max(f) < 28
        p = 29 if h == 0 else 4
        for st in ((0, 1, 2) if h == 0 else (3, 4)):
            L, post = S.dmaW(st)
            f.setdefault(p - 1, []).append(L[0])
            for x in L[1:]:
                f.setdefault(p, []).append(x); p += 3 if h == 0 else 6
            f[p - (3 if h == 0 else 6)] += post
        return f
    def g1_exit(self, sTT1, sFT1):
        o = self.o
        o(f"""
        v_mov_b32 v23, 0
        s_lshl_b32 s{self.sHC}, s{sTT1}, 1
        s_cmp_ge_u32 s{sFT1}, 14
        s_addc_u32 s{self.sHC}, s{self.sHC}, 0
        s_lshl_b32 s{self.sHC}, s{self.sHC}, 8
        s_add_u32 s{self.sHC}, s{self.sHC}, {HCNT}
        v_mov_b32 v22, 32
        s_cmp_eq_u32 s24, 0
        s_cselect_b32 s{self.sHC}, s{self.sHC}, 0
        """)
        self.G = self.pf()
    def epi_merge(self, n, E):
        pb = self.opt.get("pollblk", 4)
        if n == pb - 2:
            self.emit(["s_cmp_lg_u32 s24, 0", f"s_cbranch_scc1 {self.name}_np", "!global_load_dword v22, v23, s[98:99] sc1", f"{self.name}_np:", ("tv", "auxp")])
        if n == 3: E = merge(E, self.setup2(), 8)
        if n < pb: return E
        if n == pb:
            self.emit(self.spin("sa", 22, 23, 98, 32, ("wv", "auxp")) + ["s_barrier"])
        k = self.opt.get("pfrate", 3)
        take, self.G = self.G[:k], self.G[k:]
        out = []; step = len(E) // (k + 1)
        for i, x in enumerate(E):
            out.append(x)
            if i % step == step - 1 and take and not E[i + 1].startswith("s_nop") and not x.startswith("s_nop"): out += take.pop(0)
        for g in take: out += g
        return [x for x in out if not any(isinstance(x, str) and p in x for p in self.opt.get('edrop', []))]
    def aux_exit(self):
        o = self.o; S = self
        o(f"""
        s_waitcnt vmcnt(0)
        s_barrier
        v_mov_b32 v23, 0
        v_mov_b32 v22, 1
        v_lshlrev_b32 v1, 4, v0
        s_mov_b32 s{S.sHC}, 0
        s_cmp_lg_u32 s24, 0
        s_cbranch_scc1 {S.name}_ax1
        s_mov_b64 exec, 1
        global_atomic_add v23, v22, s[98:99] sc1
        s_mov_b64 exec, -1
        {S.name}_ax1:
        """)
        S.stamp(1); S.stamp(2)
        for x in S.setup(): o(x)
        srd(o, S.sH, 6, WS_H_SIZE)
        for st in range(S.PW):
            L, post = S.dmaW(st)
            S.emit(L[:1] + ["s_nop 0"] + L[1:] + post)
        for x in S.setup2(): o(x)
        S.emit(["s_cmp_lg_u32 s24, 0", f"s_cbranch_scc1 {S.name}_sb_go", "global_load_dword v22, v23, s[98:99] sc1"] + S.spin("sb", 22, 23, 98, 32, "s_waitcnt vmcnt(0)") + ["s_barrier"])
        for g in S.pf():
            for x in g:
                o(x)
                if isinstance(x, str) and "m0" in x: o("s_nop 0")
        o(f"s_waitcnt vmcnt(0)\ns_branch {S.name}_p2")
    def phase2(self):
        o = self.o; S = self; C = S.C; opt = S.opt; name = S.name
        assert not S.G
        o(("wv", "KU"))
        o.label(f"{name}_p2")
        S.stamp(3)
        o(f"v_add_u32 v{C.vOR}, s{S.sCB}, v1")
        UW = [f"ds_write_b128 v{C.vOR}, {a(S.STG+32+16*q+4*j,4)} offset:{off+1024*j}" for q, off in enumerate([UOFF + 64, UOFF + USTR + 64]) for j in range(4)]
        GB, SL, OB, sC = S.GB, 56, 68, S.sC
        D = [GB + 8, GB + 9, GB + 10, GB + 6, GB + 7]
        def pm(d, hi, lo, sel): return f"v_perm_b32 v{d}, v{hi}, v{lo}, {sel}"
        L = []
        for c in range(2):
            for kb in range(4):
                ob = OB + 16 * c + 4 * kb
                if kb < 2: L += [pm(ob + j, GB + 2 * kb + 1, GB + 2 * kb, f"v{SL+q}") for j, q in enumerate((0, 2 + c, 1, 1))]
                elif kb == 2: L += [pm(ob + j, GB + 5, GB + 4, f"s{sC[q]}") for j, q in enumerate((3, 1, 4, 2) if c else (0, 1, 2, 2))]
                else: L += [pm(ob + j, D[4 - j], D[3 - j], f"v{SL+4+3*c+q}") for j, q in enumerate((0, 1, 0, 2))]
                L.append(f"ds_write_b128 v{C.vOR}, {v(ob,4)} offset:{KSTR*c+1024*kb}")
        for x in merge(L, UW, 0): o(x)
        C.addrs(); C.zeroK(); C.zeroU()
        o(f"v_mov_b32 v24, s{S.sHC}\nv_mov_b32 v25, 1")
        t = A()
        t(f"""
        s_and_b32 s36, s24, 1
        s_lshr_b32 s37, s24, 1
        s_lshl_b32 s38, s{S.sTT}, 3
        s_lshl_b32 s39, s36, 2
        s_add_u32 s38, s38, s39
        s_lshl_b32 s39, s37, 1
        s_add_u32 s35, s38, s39
        s_xor_b32 s38, s35, 2
        s_mul_i32 s39, s{S.sKH}, 56
        s_add_u32 s39, s39, s37
        s_mul_i32 s100, s35, 112
        s_mul_i32 s38, s38, 112
        s_add_u32 s100, s100, s39
        s_add_u32 s38, s38, s39
        s_lshl_b32 s100, s100, 10
        s_lshl_b32 s38, s38, 10
        v_add_u32 v{S.vH[0]}, s100, v1
        v_add_u32 v{S.vH[2]}, s38, v1
        v_add_u32 v{S.vH[1]}, {112*1024}, v{S.vH[0]}
        v_add_u32 v{S.vH[3]}, {112*1024}, v{S.vH[2]}
        v_lshrrev_b32 v16, 2, v0
        v_lshlrev_b32 v17, 8, v16
        v_and_b32 v16, 7, v16
        s_lshl_b32 s38, s{S.sKH}, 2
        v_xor_b32 v16, s38, v16
        v_lshl_add_u32 v17, v16, 5, v17
        v_and_b32 v16, 3, v0
        v_lshl_add_u32 v17, v16, 3, v17
        s_lshl_b32 s38, s37, 13
        v_add_u32 v{S.vA}, s38, v17
        s_lshr_b32 s38, s{S.sTT}, 1
        s_lshl_b32 s38, s38, 1
        s_add_u32 s38, s38, s{S.sKH}
        s_lshl_b32 s38, s38, 8
        s_add_u32 s38, s38, {HCNT}
        v_mov_b32 v23, s38
        """)
        for m in range(1, 8): t(f"v_xor_b32 v{S.vA+m}, {32*m}, v{S.vA}")
        for m in range(8): t(f"v_xor_b32 v{S.vA+8+m}, {32*m + 65536}, v{S.vA}")
        srd(t, S.sO, 96, 2048 * 2048)
        t(f"s_add_u32 s4, s6, {WS_G}\ns_addc_u32 s5, s7, 0"); srd(t, S.sG, 4, 2048 * 4)
        t(f"s_add_u32 s4, s6, {WS_X}\ns_addc_u32 s5, s7, 0"); srd(t, S.sX, 4, 256 * 32768)
        T = [x.strip() for x in t.l if x.strip()]
        fills = {}
        for i, x in enumerate(T): fills.setdefault((2 + i // 36, i % 36), []).append(x)
        def sig_h():
            o(f"""
            s_waitcnt vmcnt(0)
            s_barrier
            s_cmp_eq_u32 s{S.sHC}, 0
            s_cbranch_scc1 {name}_nh
            s_mov_b64 exec, 1
            """)
            o.raw("    global_atomic_add v24, v25, s[56:57] sc1")
            o(f"s_mov_b64 exec, -1\n{name}_nh:")
            S.stamp(1)
        cs = opt.get("csig", 1); cp = opt.get("cpoll", 6)
        fills.setdefault((cp - 1, 20), []).extend(["s_cmp_lg_u32 s24, 0", f"s_cbranch_scc1 {name}_nq", "!global_load_dword v22, v23, s[56:57] sc1", f"{name}_nq:"])
        HL = [S.ldH(st, nb) for st in range(S.PH) for nb in range(4)]
        for i, L in enumerate(HL):
            p = cp * 36 + (i * 2 if cp < 7 else i)
            fills.setdefault((p // 36, p % 36), []).extend(L)
            assert p < 8 * 36
        def poll_h():
            S.emit(["s_cmp_lg_u32 s24, 0", f"s_cbranch_scc1 {name}_sh_go"] + S.spin("sh", 22, 23, 56, 14, "s_waitcnt vmcnt(0)") + ["s_barrier"]); S.stamp(4)
        C.main(hooks={cs: sig_h, cp: poll_h}, fills=fills)
        S.gemm2()
    def gemm2(self):
        o = self.o; S = self; C = S.C; opt = S.opt; name = S.name
        ACC = 32
        def acc(mb, nb): return ACC + (((mb >> 2) * 2 + (nb >> 1)) * 8 + (nb & 1) * 4 + (mb & 3)) * 4
        def fa(st, i): return st * 32 + i * 4
        NF = 20
        steps = []
        for s_ in range(NF): steps.append(([(s_, mb) for mb in range(8)], [(mb, s_, mb, nb) for nb in range(4) for mb in range(8)]))
        for half in (1, 0):
            for p in range(4):
                fr = [(NF + 2 * p + e, 4 * half + m) for e in range(2) for m in range(4)]
                if p < 3: mf = [(4 * e + m, NF + 2 * p + e, 4 * half + m, nb) for e in range(2) for nb in range(4) for m in range(4)]
                else: mf = [(4 * e + m, NF + 2 * p + e, 4 * half + m, nb) for hn in (1, 0) for e in range(2) for nb in (2 * hn, 2 * hn + 1) for m in range(4)]
                steps.append((fr, mf))
        def reads(k):
            return [f"ds_read_b64_tr_b16 {a(fa(k & 1, i) + 2 * r2, 2)}, v{S.vA + 8 * ((st & 7) >> 2) + mb} offset:{(st & 3) * 16384 + r2 * 4096}"
                    for i, (st, mb) in enumerate(steps[k][0]) for r2 in range(2)]
        for x in reads(0): o(x)
        C.out()
        o(("tv", "AT"))
        S.stamp(5)
        XR = 160; PR = 208; ATF = 240; SEL = 24; OMG = [2, 3]; vG = [4, 5]
        vXW, vXR_, vFo, vFp, vAT, vOut, vCn = 6, 7, 8, 9, 10, 11, 16
        sDT = 35
        t = A()
        t(f"""
        s_lshl_b32 s36, s2, 2
        s_add_u32 s36, s36, s24
        s_lshl_b32 s37, s36, 5
        v_mov_b32 v{vFo}, s37
        s_xor_b32 s37, s37, {4 << 7}
        v_mov_b32 v{vFp}, s37
        s_lshl_b32 s100, s36, 13
        s_xor_b32 s101, s100, {4 << 15}
        s_lshl_b32 s36, s24, 13
        s_add_u32 s36, s36, {XOFF2}
        v_add_u32 v{vXW}, s36, v1
        v_xor_b32 v{vXR_}, {2 << 13}, v{vXW}
        s_lshl_b32 s{sDT}, s{S.sDP}, 1
        s_add_u32 s{sDT}, s{sDT}, s{S.sKH}
        s_lshl_b32 s36, s{sDT}, 8
        s_add_u32 s36, s36, 32768
        v_mov_b32 v23, s36
        s_lshr_b32 s36, s2, 4
        s_lshl_b32 s36, s36, 8
        s_add_u32 s36, s36, 32768
        v_mov_b32 v{vCn}, s36
        s_and_b32 s36, s24, 1
        s_lshl_b32 s36, s36, 7
        s_lshr_b32 s37, s24, 1
        s_lshl_b32 s37, s37, 6
        s_add_u32 s36, s36, s37
        s_lshl_b32 s37, s{S.sTT}, 8
        s_add_u32 s37, s37, s36
        s_lshl_b32 s38, s{sDT}, 18
        s_add_u32 s38, s38, s37
        s_lshl_b32 s39, s37, 1
        s_lshl_b32 s25, s37, 10
        s_lshl_b32 s36, s{sDT}, 7
        s_add_u32 s25, s25, s36
        s_add_u32 s26, s25, {16*2048}
        v_and_b32 v30, 15, v0
        v_lshrrev_b32 v31, 4, v0
        v_lshlrev_b32 v{vAT}, 12, v30
        v_lshl_add_u32 v{vAT}, v31, 4, v{vAT}
        v_lshlrev_b32 v17, 2, v30
        v_lshlrev_b32 v{vOut}, 11, v30
        v_and_b32 v22, 1, v31
        buffer_load_dword v{vG[0]}, v17, s[{S.sG}:{S.sG+3}], s39 offen sc1
        v_lshl_add_u32 v{vOut}, v22, 5, v{vOut}
        v_lshrrev_b32 v22, 1, v31
        buffer_load_dword v{vG[1]}, v17, s[{S.sG}:{S.sG+3}], s39 offen offset:64 sc1
        v_lshl_add_u32 v{vOut}, v22, 4, v{vOut}
        v_lshlrev_b32 v31, 3, v31
        v_sub_u32 v17, v30, v31
        """)
        SET = [x.strip() for x in t.l if x.strip()] + [("tv", "G")]
        SELL = [("wv", "G")]
        for nb in range(2):
            g = vG[nb]
            SELL += [x.strip() for x in f"""v_sub_f32 v{OMG[nb]}, 1.0, v{g}
            v_add_u32 v30, {16*nb}, v17
            v_cvt_pk_bf16_f32 v{OMG[nb]}, v{OMG[nb]}, v{OMG[nb]}
            v_and_b32 v31, 1, v30
            v_lshlrev_b32 v{OMG[nb]}, 16, v{OMG[nb]}
            v_cmp_eq_u32 vcc, 1, v31
            v_lshrrev_b32 v31, 16, v{g}
            v_and_b32 v{g}, 0xffff0000, v{g}
            v_ashrrev_i32 v30, 1, v30
            v_cndmask_b32 v{g}, v31, v{g}, vcc""".split("\n")]
            for q in range(4): SELL += [f"v_cmp_eq_u32 vcc, {q}, v30", "s_nop 1", f"v_cndmask_b32 v{XR+32+16+4*nb+q if False else 248+4*nb+q}, 0, v{g}, vcc"]
        SELR = 248
        ATR = 224
        seen = set()
        wq = [(st, j) for st in range(S.PW, 28) for j in range(4)]
        hn = S.PH * 4
        wrate = opt.get("wrate", 5)
        for k, (fr, mf) in enumerate(steps):
            if k in opt.get("kst", []): S.stamp(1 + opt["kst"].index(k), True)
            fill = {}
            def add(i, *x): fill.setdefault(i, []).extend(x)
            stages = sorted(set(x[1] for x in mf))
            if k < 24: o(("wv",) + tuple(f"H{s_}" for s_ in stages))
            o("s_waitcnt lgkmcnt(0)")
            bar = k < 23 or k == 24
            if k < 23: add(0, ("wv",) + tuple(f"W{s_}" for s_, _ in steps[k + 1][0]) + (("AT",) if k == 3 else ()))
            if bar: add(0, "s_barrier")
            rpos = [2 + (i * 3) // 2 for i in range(16)]
            if k == 24: rpos = [9 + i for i in range(16)]
            if k + 1 < 28:
                for i, x in enumerate(reads(k + 1)): add(rpos[i], x)
            wpos = [4, 10, 16, 22, 27, 29]
            n = 0
            while wq and n < wrate and wq[0][0] - 8 <= k:
                st, j = wq.pop(0)
                L, post = S.dmaW(st)
                if j == 0: add(wpos[n] - 3, L[0])
                add(wpos[n], L[1 + j])
                if j == 3: add(wpos[n], *post)
                n += 1
            for p in (7, 13, 15, 19, 23, 25, 31):
                if hn < 112:
                    st, nb = hn // 4, hn % 4
                    ok = st - 8 < k or (st - 8 == k and p >= 8 * nb + 7)
                    if ok and (p in (7, 15, 23, 31) or (st - 8 < k and p in opt.get("hx", (13, 25)))): add(p, *S.ldH(st, nb)); hn += 1
            if k == 3:
                add(1, "s_cmp_lg_u32 s24, 0", f"s_cbranch_scc1 {name}_na", "s_mov_b64 exec, 1", f"!global_atomic_add v{vCn}, v25, s[56:57] sc1", "s_mov_b64 exec, -1", f"{name}_na:")
            if k in (0, 1):
                part = SET[:len(SET) // 2] if k == 0 else SET[len(SET) // 2:]
                for i, x in enumerate(part): add(1 + i, x)
            if k in (20, 21):
                part = SELL[:len(SELL) // 2 + 1] if k == 20 else SELL[len(SELL) // 2 + 1:]
                for i, x in enumerate(part): add(1 + i, x)
            if k == 20: add(28, "global_load_dword v22, v23, s[56:57] sc1", ("tv", "ap"))
            if k == 22:
                add(1, *S.spin("st", 22, 23, 56, 16, ("wv", "ap")))
                for mb in range(4):
                    add(4 + 6 * mb, f"buffer_load_dwordx4 {v(ATR+4*mb,4)}, v{vAT}, s[{S.sAT}:{S.sAT+3}], s38 offen sc1", "s_add_u32 s38, s38, 65536")
                add(22, ("tv", "ATL"))
            if k in (23, 27):
                q = 3 if k == 23 else 1
                for i in range(8): add(22 + i, f"ds_write_b128 v{vXW}, {v(ACC+32*q+4*i,4)} offset:{1024*i}")
            if k == 24:
                for i in range(8): add(1 + i, f"ds_read_b128 {v(XR+4*i,4)}, v{vXR_} offset:{1024*i}", ("tl", f"x{i}"))
                for i in range(8):
                    b = ACC + 64 + 4 * i
                    add(12 + 2 * i, ("wl", f"x{i}"), *[f"v_add_f32 v{b+r}, v{b+r}, v{XR+4*i+r}" for r in range(2)])
                    add(13 + 2 * i, *[f"v_add_f32 v{b+r}, v{b+r}, v{XR+4*i+r}" for r in range(2, 4)])
                    add(14 + 2 * i, f"buffer_store_dwordx4 {v(b,4)}, v1, s[{S.sX}:{S.sX+3}], s100 offen offset:{1024*(i&3)} sc1")
                    if i == 3: add(14 + 2 * i, "s_add_u32 s100, s100, 4096")
            if k == 25: add(0, "s_barrier")
            fk, fp = opt.get("flagpos", (27, 8))
            if k == fk:
                add(fp, "s_waitcnt vmcnt(0)", "s_mov_b64 exec, 1", f"global_store_dword v{vFo}, v25, s[56:57] sc1", "s_mov_b64 exec, -1")
            if k == 27: add(30, f"global_load_dword v22, v{vFp}, s[56:57] sc1")
            for i, (fi, st, mb, nb) in enumerate(mf):
                c = v(acc(mb, nb), 4) if (mb, nb) in seen else "0"
                seen.add((mb, nb))
                o(f"v_mfma_f32_16x16x32_bf16 {v(acc(mb,nb),4)}, {a(fa(k&1,fi),4)}, {a(S.fh(st,nb),4)}, {c}")
                S.emit([x for x in fill.get(i, []) if not any(isinstance(x, str) and x.startswith(p) for p in opt.get("g2drop", []))])
            if k == 23: S.stamp(6)
        assert not wq and hn == 112
        S.stamp(7)
        o("s_waitcnt lgkmcnt(0)\ns_barrier")
        for i in range(8): o(f"ds_read_b128 {v(XR+4*i,4)}, v{vXR_} offset:{1024*i}"); o(("tl", f"y{i}"))
        S.emit(S.spin("sp", 22, vFp, 56, 1, "s_waitcnt vmcnt(0)"))
        P2 = 96
        for i in range(8):
            o(f"buffer_load_dwordx4 {v(P2+4*i,4)}, v1, s[{S.sX}:{S.sX+3}], s101 offen offset:{1024*(i&3)} sc1"); o(("tv", f"p{i}"))
            if i == 3: o("s_add_u32 s101, s101, 4096")
        S.stamp(8)
        o("s_waitcnt lgkmcnt(0)")
        for i in range(8):
            b = ACC + 4 * i
            for r in range(4): o(f"v_add_f32 v{b+r}, v{b+r}, v{XR+4*i+r}")
            for r in range(4): o(f"v_mul_f32 v{b+r}, v{OMG[i>>2]}, v{b+r}")
        o("s_nop 1")
        for nb in range(2):
            for mb in range(4):
                o(f"v_mfma_f32_16x16x32_bf16 {v(acc(mb,nb),4)}, {v(ATR+4*mb,4)}, {v(SELR+4*nb,4)}, {v(acc(mb,nb),4)}")
        o("s_nop 7")
        for nb in range(2):
            for pr in range(2):
                b = acc(2 * pr, nb); d = XR + 4 * (2 * nb + pr); i = 4 * nb + 2 * pr
                o(("wv", f"p{i+1}"))
                for r in range(8): o(f"v_fma_f32 v{b+r}, v{P2+4*i+r}, v{OMG[nb]}, v{b+r}")
                for q in range(4): o(f"v_cvt_pk_bf16_f32 v{d+q}, v{b+2*q}, v{b+2*q+1}")
                o(f"s_nop 1\nv_permlane16_swap_b32 v{d}, v{d+2}\nv_permlane16_swap_b32 v{d+1}, v{d+3}")
                o(f"buffer_store_dwordx4 {v(d,4)}, v{vOut}, s[{S.sO}:{S.sO+3}], s{25+nb} offen offset:{64*pr}")
        if S.st:
            o("s_waitcnt vmcnt(0)"); S.stamp(9)
            o(f"""
            s_add_u32 s4, s6, {WS_STAMP}
            s_addc_u32 s5, s7, 0
            s_lshl_b32 s36, s2, 2
            s_add_u32 s36, s36, s24
            s_lshl_b32 s36, s36, 6
            v_mov_b32 v1, s36
            s_waitcnt lgkmcnt(0)
            """)
            for i in range(12): o(f"v_mov_b32 v{4+i}, s{60+2*min(i,9)}")
            for i in range(3): o(f"global_store_dwordx4 v1, {v(4+4*i,4)}, s[4:5] offset:{16*i}")

def fused(o, name="fused_kernel", stamp=False, opt=None):
    opt = dict(opt or {}); opt["stamp"] = False; opt["ct"] = 1
    return gemm1(o, name, False, opt, F=Fused(o, name, opt))
```

```python
from asmlib import *

def stamp_begin(o):
    o("s_memtime s[60:61]\ns_memrealtime s[68:69]")
def stamp_mid1(o): o("s_memtime s[62:63]\ns_memrealtime s[72:73]")
def stamp_mid2(o): o("s_memtime s[64:65]\ns_memrealtime s[74:75]")
def stamp_end(o, sWave, ws_lo, off=0, nw_shift=2):
    o(f"""
    s_waitcnt vmcnt(0)
    s_memtime s[66:67]
    s_memrealtime s[70:71]
    s_waitcnt lgkmcnt(0)
    s_sub_u32 s70, s70, s68
    s_sub_u32 s62, s62, s60
    s_sub_u32 s64, s64, s60
    s_sub_u32 s66, s66, s60
    s_add_u32 s76, s{ws_lo}, {WS_STAMP + off}
    s_addc_u32 s77, s{ws_lo+1}, 0
    s_lshl_b32 s78, s2, {nw_shift}
    s_add_u32 s78, s78, s{sWave}
    s_lshl_b32 s78, s78, 5
    s_sub_u32 s72, s72, s68
    s_sub_u32 s74, s74, s68
    v_mov_b32 v8, s72
    v_mov_b32 v9, s74
    v_mov_b32 v10, s70
    v_mov_b32 v11, s68
    v_mov_b32 v2, s62
    v_mov_b32 v3, s64
    v_mov_b32 v4, s66
    s_getreg_b32 s79, hwreg(HW_REG_XCC_ID)
    s_getreg_b32 s80, hwreg(HW_REG_HW_ID)
    s_and_b32 s79, s79, 15
    s_lshl_b32 s80, s80, 4
    s_or_b32 s79, s79, s80
    v_mov_b32 v5, s79
    v_mov_b32 v6, s78
    global_store_dwordx4 v6, v[2:5], s[76:77]
    global_store_dwordx4 v6, v[8:11], s[76:77] offset:16
    """)

def gemm1(o, name="gemm1_kernel", stamp=False, opt=None, F=None):
    opt = opt or {}
    kernel_begin(o, name)
    XB = 65536
    accA = opt.get("accA", False)
    def acc(mb, nb):
        i = nb * 8 + mb
        if accA: return ("a", 4 * i)
        if i < 56: return ("v", 32 + 4 * i)
        return ("a", 128 + 4 * (i - 56))
    def accs(mb, nb):
        k, b = acc(mb, nb); return rng(k, b, 4)
    fk = "v" if accA else "a"
    fo = 32 if accA else 0
    def fa(set_, mb): return fo + set_ * 64 + mb * 4
    def fb(set_, nb): return fo + set_ * 64 + 32 + nb * 4
    vW = [2, 3, 4, 5]
    vX = [6, 7]
    vWd = [8, 9, 10, 11]
    vXd = [12, 13, 14, 15]
    vS = 1
    sX, sWs, sH = 8, 12, 20
    sWave, sTT, sFT = 24, 25, 26
    sWoff, sXoff, sXoff2 = 27, 28, 29
    sWm0, sXm0 = 30, 31
    sCnt, sXd, sXs, sRs = 32, 33, 34, 35
    sXe, sNeg, sPos = 44, 45, 46
    sRot, sTx, sTw, sTmp = 47, 48, 49, 50
    rotm = opt.get('rot', 1)
    o(f"""
    s_cmp_ge_u32 s2, {opt.get("nwg", 224)}
    s_cbranch_scc1 {name}_aux
    s_load_dwordx2 s[4:5], s[0:1], {KA['u']}
    s_load_dwordx4 s[40:43], s[0:1], {KA['wg']}
    s_load_dwordx2 s[6:7], s[0:1], {KA['ws']}
    """)
    if stamp: stamp_begin(o)
    if F: F.stamp(0)
    o(f"""
    v_lshrrev_b32 v1, 6, v0
    v_and_b32 v0, 63, v0
    s_and_b32 s3, s2, 7
    v_readfirstlane_b32 s{sWave}, v1
    s_lshr_b32 s36, s2, 3
    s_and_b32 s37, s3, 1
    s_lshl_b32 s37, s37, 2
    s_and_b32 s38, s36, 3
    s_add_u32 s{sTT}, s37, s38
    s_lshr_b32 s37, s3, 1
    s_mul_i32 s37, s37, 7
    s_lshr_b32 s38, s36, 2
    s_add_u32 s{sFT}, s37, s38
    v_lshlrev_b32 v{vS}, 4, v0
    """)
    o(f"""
    v_lshrrev_b32 v17, 4, v0
    v_and_b32 v18, 15, v0
    v_lshlrev_b32 v19, 2, v17
    v_xor_b32 v18, v18, v19
    v_lshlrev_b32 v18, 4, v18
    v_mul_u32_u24 v19, 7168, v17
    v_add_u32 v18, v18, v19
    s_and_b32 s36, s{sWave}, 1
    s_mul_i32 s37, s36, {16*7168}
    s_lshl_b32 s38, s{sFT}, 8
    s_add_u32 s37, s37, s38
    v_add_u32 v{vWd[0]}, s37, v18
    v_xor_b32 v18, 32, v{vWd[0]}
    v_add_u32 v{vWd[1]}, {1*(28672-1024)}, v{vWd[0]}
    v_add_u32 v{vWd[2]}, {2*(28672-1024)}, v18
    v_add_u32 v{vWd[3]}, {3*(28672-1024)}, v18
    """)
    o(f"""
    v_lshrrev_b32 v18, 3, v0
    v_lshlrev_b32 v18, 11, v18
    v_and_b32 v19, 7, v0
    v_xor_b32 v19, v19, v17
    v_lshlrev_b32 v19, 4, v19
    v_add_u32 v18, v18, v19
    s_lshl_b32 s37, s{sTT}, 8
    s_lshl_b32 s38, s{sWave}, 6
    s_add_u32 s37, s37, s38
    s_lshl_b32 s37, s37, 11
    v_add_u32 v{vXd[0]}, s37, v18
    v_xor_b32 v18, 64, v{vXd[0]}
    v_add_u32 v{vXd[1]}, {8*2048-1024}, v18
    v_add_u32 v{vXd[2]}, {2*(8*2048-1024)}, v{vXd[0]}
    v_add_u32 v{vXd[3]}, {3*(8*2048-1024)}, v18
    """)
    o(f"""
    v_lshlrev_b32 v18, 11, v17
    v_bfe_u32 v19, v0, 2, 2
    v_lshlrev_b32 v20, 8, v19
    v_add_u32 v18, v18, v20
    v_lshlrev_b32 v19, 1, v19
    v_and_b32 v20, 1, v17
    v_xor_b32 v19, v19, v20
    s_lshl_b32 s37, s36, 2
    v_xor_b32 v19, s37, v19
    v_lshlrev_b32 v19, 5, v19
    v_add_u32 v18, v18, v19
    v_and_b32 v19, 3, v0
    v_lshlrev_b32 v19, 3, v19
    v_add_u32 v{vW[0]}, v18, v19
    """)
    for m in range(1, 4): o(f"v_xor_b32 v{vW[m]}, {32*m}, v{vW[0]}")
    o(f"""
    s_lshr_b32 s37, s{sWave}, 1
    s_lshl_b32 s37, s37, 14
    s_add_u32 s37, s37, {XB}
    v_and_b32 v18, 15, v0
    v_lshlrev_b32 v18, 7, v18
    v_add_u32 v18, s37, v18
    v_bfe_u32 v20, v0, 1, 3
    v_xor_b32 v19, v17, v20
    v_lshlrev_b32 v19, 4, v19
    v_add_u32 v{vX[0]}, v18, v19
    v_xor_b32 v{vX[1]}, 64, v{vX[0]}
    """)
    o("s_waitcnt lgkmcnt(0)")
    srd(o, sX, 4, 2048 * 2048)
    o(f"""
    s_cmp_lt_u32 s{sWave}, 2
    s_cselect_b32 s40, s40, s42
    s_cselect_b32 s41, s41, s43
    """)
    srd(o, sWs, 40, 1024 * 7168)
    srd(o, sH, 6, WS_H_SIZE)
    o(f"""
    s_add_u32 s{sRot}, s{sTT}, s{sFT}
    s_and_b32 s{sRot}, s{sRot}, {rotm}
    s_mov_b32 s{sTx}, 0
    s_mov_b32 s{sTw}, 0
    s_lshl_b32 s{sXoff}, s{sRot}, 7
    s_mul_i32 s{sWoff}, s{sRot}, {64*7168}
    s_lshl_b32 s{sWm0}, s{sWave}, 12
    s_lshl_b32 s{sXm0}, s{sWave}, 13
    s_add_u32 s{sXm0}, s{sXm0}, {XB}
    """)
    advW0 = [f"s_add_u32 s{sWoff}, s{sWoff}, {32*7168}"]
    advW1 = [f"s_add_u32 s{sTw}, s{sTw}, 1", f"s_xor_b32 s{sTmp}, s{sTw}, s{sRot}", f"s_mul_i32 s{sWoff}, s{sTmp}, {64*7168}"]
    advX = [f"s_add_u32 s{sTx}, s{sTx}, 1", f"s_xor_b32 s{sTmp}, s{sTx}, s{sRot}", f"s_lshl_b32 s{sXoff}, s{sTmp}, 7"]
    def dmaW(j): return f"buffer_load_dwordx4 v{vWd[j]}, s[{sWs}:{sWs+3}], s{sWoff} offen offset:{1024*j} lds"
    def dmaX(j, half): return f"buffer_load_dwordx4 v{vXd[j]}, s[{sX}:{sX+3}], s{sXoff2 if half else sXoff} offen offset:{1024*j} lds"
    def grpW(slot):
        o(f"s_add_u32 m0, s{sWm0}, {slot*16384}")
        o("s_nop 0")
        for j in range(4): o(dmaW(j))
        for x in (advW1 if slot & 1 else advW0): o(x)
    def grpX(slot, half):
        o(f"s_add_u32 m0, s{sXm0}, {slot*32768 + half*4096}")
        o(f"s_add_u32 s{sXoff2}, s{sXoff}, 65536")
        for j in range(4): o(dmaX(j, half))
        if half:
            for x in advX: o(x)
    grpX(0, 0); grpW(0); grpX(0, 1); grpW(1); grpX(1, 0); grpW(2); grpX(1, 1); grpW(3); grpX(2, 0)
    npf1 = 0
    g1pf = F and opt.get("g1pf", 1)
    if g1pf:
        o(f"""
        s_lshl_b32 s36, s2, 2
        s_add_u32 s36, s36, s{sWave}
        s_lshl_b32 s36, s36, 13
        v_lshrrev_b32 v18, 3, v0
        v_lshlrev_b32 v18, 7, v18
        s_add_u32 s84, s92, s36
        s_addc_u32 s85, s93, 0
        s_and_b32 s85, s85, 0xffff
        s_movk_i32 s86, 0x2000
        s_mov_b32 s87, 0x20000
        """)
    for mb in range(8):
        for nb in range(8):
            k, b = acc(mb, nb)
            for r in range(4):
                o(f"v_mov_b32 v{b+r}, 0" if k == "v" else f"v_accvgpr_write_b32 a{b+r}, 0")
    def reads(set_, sl, ks2):
        Aa = []
        for mb in range(8):
            for r2 in range(2):
                Aa.append(f"ds_read_b64_tr_b16 {rng(fk, fa(set_, mb)+2*r2, 2)}, v{vW[mb&3]} offset:{sl*16384 + (mb>>2)*8192 + r2*1024}")
        Bb = [f"ds_read_b128 {rng(fk, fb(set_, nb), 4)}, v{vX[ks2]} offset:{nb*2048}" for nb in range(8)]
        L = []
        for i in range(8): L += Aa[2*i:2*i+2] + [Bb[i]]
        return L
    o(f"""
    s_mov_b32 s{sCnt}, 0
    s_add_u32 s{sXs}, s{sXm0}, {2*32768}
    s_add_u32 s{sXe}, s{sXm0}, {3*32768}
    s_mov_b32 s{sNeg}, {(-65536) & 0xffffffff}
    s_mov_b32 s{sPos}, 32768
    s_mov_b32 s{sRs}, 0
    s_waitcnt vmcnt({24 + npf1})
    s_barrier
    """)
    if stamp: stamp_mid1(o)
    if F: F.stamp(1)
    for r in reads(0, 0, 0): o(r)
    o(".p2align 3")
    o.label(f"{name}_loop")
    order = []
    if opt.setdefault("order", "nb") == "snake":
        for mb in range(8):
            for nb in (range(8) if mb % 2 == 0 else range(7, -1, -1)): order.append((mb, nb))
    elif opt["order"] == "mb":
        order = [(mb, nb) for mb in range(8) for nb in range(8)]
    elif opt["order"] == "nb":
        order = [(mb, nb) for nb in range(8) for mb in range(8)]
    elif opt["order"] == "diag":
        order = [((i + j) % 8, j) for i in range(8) for j in range(8)]
    def substep(set_, fill, vm=None):
        o("s_waitcnt lgkmcnt(0)")
        for i, (mb, nb) in enumerate(order):
            o(f"v_mfma_f32_16x16x32_bf16 {accs(mb,nb)}, {rng(fk,fa(set_,mb),4)}, {rng(fk,fb(set_,nb),4)}, {accs(mb,nb)}")
            if i == 1:
                if vm != -1: o("s_waitcnt vmcnt(%d)" % (opt.get("vm", 16) if vm is None else vm))
                o("s_barrier")
            for ins in fill.get(i, []): o(ins)
    nodma = opt.get("nodma", False); nord = opt.get("noread", False)
    def mkfill(rd, dW, dX):
        f = {}
        def add(i, x): f.setdefault(i, []).append(x)
        for k, x in enumerate(rd):
            if not nord: add(4 + 2 * k, x)
        add(3, dW[0])
        for k, x in enumerate(dW[1:]):
            if not nodma and not opt.get("noW"): add(5 + 8 * k, x)
        add(33, dX[0])
        for k, x in enumerate(dX[1:]):
            if not nodma and not opt.get("noX"): add(35 + 8 * k, x)
        return f
    def dmW(slotoff): return [f"s_add_u32 m0, s{sWm0}, {slotoff}"] + [dmaW(j) for j in range(4)]
    def dmX(half): return [f"s_add_u32 m0, s{sXs}, {half*4096}"] + [dmaX(j, half) for j in range(4)]
    def ext(f, i, L): f.setdefault(i, []).extend(L)
    f = mkfill(reads(1, 1, 1), dmW(0), dmX(1))
    ext(f, 31, [f"s_add_u32 s{sXoff2}, s{sXoff}, 65536", f"s_add_u32 s{sWoff}, s{sWoff}, {32*7168}"])
    ext(f, 60, advX[0:2]);
    ext(f, 52, [f"s_add_u32 s{sXs}, s{sXs}, 32768"])
    ext(f, 61, advX[2:] + [f"s_cmp_eq_u32 s{sXs}, s{sXe}", f"s_cselect_b32 s{sXs}, s{sXm0}, s{sXs}"])
    ext(f, 53, [f"s_add_u32 s{sRs}, s{sRs}, 1", f"s_cmp_eq_u32 s{sRs}, 3"])
    ext(f, 54, [f"s_cselect_b32 s{sXd}, s{sNeg}, s{sPos}", f"s_cselect_b32 s{sRs}, 0, s{sRs}"])
    for m in range(4): ext(f, 55 + m, [f"v_xor_b32 v{vW[m]}, 0x8000, v{vW[m]}"])
    ext(f, 62, [f"v_add_u32 v{vX[0]}, s{sXd}, v{vX[0]}", f"s_cmp_ge_u32 s{sCnt}, 13"])
    ext(f, 63, [f"v_add_u32 v{vX[1]}, s{sXd}, v{vX[1]}", f"s_cselect_b32 s{sX+2}, 0, s{sX+2}"])
    substep(0, f)
    f = mkfill(reads(0, 0, 0), dmW(16384), dmX(0))
    ext(f, 31, advW1[0:2]); ext(f, 37, advW1[2:] + [f"s_xor_b32 s{sWm0}, s{sWm0}, 0x8000"])
    if g1pf: ext(f, 55, ["buffer_load_dword v16, v18, s[84:87], 0 offen"]); ext(f, 57, ["v_add_u32 v18, 1024, v18"])
    ext(f, 62, [f"s_add_u32 s{sCnt}, s{sCnt}, 1", f"s_cmp_lt_u32 s{sCnt}, {15 if F else 16}"])
    ext(f, 63, [f"s_cbranch_scc1 {name}_loop"])
    substep(1, f)
    if F:
        f = F.peel(0)
        for k, x in enumerate(reads(1, 1, 1)): f.setdefault(4 + 2 * k, []).insert(0, x)
        substep(0, f, 0)
        substep(1, F.peel(1), -1)
    if stamp: stamp_mid2(o)
    if F: F.stamp(2); F.g1_exit(sTT, sFT)
    stm = opt.get("hst", "sc1") if F else ""
    o(f"""
    s_lshr_b32 s36, s{sWave}, 1
    s_lshl_b32 s36, s36, 3
    s_lshl_b32 s37, s{sTT}, 4
    s_add_u32 s36, s36, s37
    s_mul_i32 s36, s36, 112
    s_and_b32 s37, s{sWave}, 1
    s_lshl_b32 s37, s37, 1
    s_add_u32 s36, s36, s37
    s_lshl_b32 s37, s{sFT}, 2
    s_add_u32 s36, s36, s37
    s_lshl_b32 s36, s36, 10
    s_mov_b32 s38, 0xbfb8aa3b
    s_mov_b32 s39, 0xbfb8aa3b
    s_nop 7
    """)
    T = 2
    n = 0
    for nb in range(8):
        for pr in range(2):
            st = 24 + 4 * (n & 1); n += 1
            gk, gb = acc(2 * pr, nb); uk, ub = acc(4 + 2 * pr, nb)
            E = []
            if gk == "a":
                gt = 32 if accA else 32
                for r in range(8): E.append(f"v_accvgpr_read_b32 v{gt+r}, a{gb+r}")
                gb = gt
            if uk == "a":
                for r in range(8): E.append(f"v_accvgpr_read_b32 v{10+r}, a{ub+r}")
                ub = 10
            for p in range(4): E.append(f"v_pk_mul_f32 {v(T+2*p,2)}, {v(gb+2*p,2)}, s[38:39]")
            for r in range(8): E.append(f"v_exp_f32 v{T+r}, v{T+r}")
            for p in range(4): E.append(f"v_pk_mul_f32 {v(gb+2*p,2)}, {v(gb+2*p,2)}, {v(ub+2*p,2)}")
            for p in range(4): E.append(f"v_pk_add_f32 {v(T+2*p,2)}, {v(T+2*p,2)}, 1.0 op_sel_hi:[1,0]")
            for r in range(8): E.append(f"v_rcp_f32 v{T+r}, v{T+r}")
            E.append("s_nop 0")
            for p in range(4): E.append(f"v_pk_mul_f32 {v(gb+2*p,2)}, {v(gb+2*p,2)}, {v(T+2*p,2)}")
            for p in range(4): E.append(f"v_cvt_pk_bf16_f32 v{st+p}, v{gb+2*p}, v{gb+2*p+1}")
            E.append(f"buffer_store_dwordx4 {v(st,4)}, v{vS}, s[{sH}:{sH+3}], s36 offen offset:{pr*1024} {stm}")
            if F: E = F.epi_merge(n - 1, E)
            for x in E: o(x)
        o(f"s_add_u32 s36, s36, {112*1024}")
    if F:
        F.phase2()
    if stamp: stamp_end(o, sWave, 6)
    o.label(f"{name}_end")
    o("s_endpgm")
    o.label(f"{name}_aux")
    o(f"s_cmp_ge_u32 s2, 256\ns_cbranch_scc1 {name}_end2\ns_sub_u32 s3, s2, 224")
    from aux import aux_body
    if stamp: stamp_begin(o)
    if F: F.stamp(0)
    aux_body(o, name, 3, opt, stmod='sc1' if F else '')
    if F: F.aux_exit()
    if stamp:
        stamp_end(o, 24, 6)
    o.label(f"{name}_end2")
    o("s_endpgm")
    if F: kernel_desc(o, name, 512, 256)
    elif accA: kernel_desc(o, name, 160 + 256, 160)
    else: kernel_desc(o, name, 256 + 160, 256)
    return f"; @launch kernel={name} grid=(256,1,1) block=(256,1,1) lds=163840"
```

```python
from asmlib import *
from gemm1b import stamp_begin, stamp_mid1, stamp_mid2, stamp_end

def gemm2_body(o, name, sId, stamp=False, opt=None, wait_flags=None, ldmod=""):
    opt = opt or {}
    vA = [2, 3, 4, 5]
    vWd = [6, 7, 8, 9]
    vH = [10, 11]
    ACC = 32
    FA = 64
    FH = 96
    def acc(mb, nb): return ACC + (nb * 4 + mb) * 4
    def fa(st, mb): return FA + st * 16 + mb * 4
    def fh(stg, ks, nb): return FH + ((stg & 1) * 8 + ks * 2 + nb) * 4
    sH, sWs, sO, sAT, sG = 8, 12, 16, 20, 52
    sWave, sTT, sDT, sRot = 24, 25, 26, 27
    sHoff, sWoff, sM0, sCnt, sTmp = 28, 29, 30, 31, 32
    rotm = opt.get("rot2", 3)
    o(f"""
    s_load_dwordx2 s[4:5], s[0:1], {KA['wd']}
    s_load_dwordx2 s[40:41], s[0:1], {KA['out']}
    s_load_dwordx2 s[6:7], s[0:1], {KA['ws']}
    """)
    if stamp: stamp_begin(o)
    o(f"""
    v_lshrrev_b32 v1, 6, v0
    v_and_b32 v0, 63, v0
    s_and_b32 s3, s{sId}, 7
    v_readfirstlane_b32 s{sWave}, v1
    s_lshr_b32 s36, s{sId}, 3
    s_lshr_b32 s37, s3, 1
    s_lshl_b32 s37, s37, 2
    s_and_b32 s38, s36, 3
    s_add_u32 s{sTT}, s37, s38
    s_and_b32 s37, s3, 1
    s_lshl_b32 s37, s37, 3
    s_lshr_b32 s38, s36, 2
    s_add_u32 s{sDT}, s37, s38
    s_add_u32 s{sRot}, s{sTT}, s{sDT}
    s_and_b32 s{sRot}, s{sRot}, {rotm}
    v_lshrrev_b32 v17, 4, v0
    """)
    o(f"""
    s_lshl_b32 s36, s{sTT}, 3
    s_lshl_b32 s37, s{sWave}, 1
    s_add_u32 s36, s36, s37
    s_mul_i32 s36, s36, {112*1024}
    v_lshlrev_b32 v18, 4, v0
    v_add_u32 v{vH[0]}, s36, v18
    v_add_u32 v{vH[1]}, {112*1024}, v{vH[0]}
    """)
    o(f"""
    v_lshrrev_b32 v18, 3, v0
    v_lshlrev_b32 v18, 11, v18
    v_and_b32 v19, 7, v0
    v_lshlrev_b32 v20, 1, v17
    v_xor_b32 v19, v19, v20
    v_lshlrev_b32 v19, 4, v19
    v_add_u32 v18, v18, v19
    s_lshl_b32 s36, s{sWave}, 16
    s_lshl_b32 s37, s{sDT}, 7
    s_add_u32 s36, s36, s37
    v_add_u32 v{vWd[0]}, s36, v18
    """)
    for j in range(1, 4): o(f"v_add_u32 v{vWd[j]}, {j*(16384-1024)}, v{vWd[0]}")
    o(f"""
    v_lshlrev_b32 v18, 9, v17
    v_bfe_u32 v19, v0, 2, 2
    v_lshlrev_b32 v20, 7, v19
    v_add_u32 v18, v18, v20
    v_bfe_u32 v19, v0, 3, 2
    v_lshlrev_b32 v19, 5, v19
    v_add_u32 v18, v18, v19
    v_and_b32 v19, 3, v0
    v_lshlrev_b32 v19, 3, v19
    v_add_u32 v{vA[0]}, v18, v19
    """)
    for m in range(1, 4): o(f"v_xor_b32 v{vA[m]}, {32*m}, v{vA[0]}")
    o("s_waitcnt lgkmcnt(0)")
    srd(o, sWs, 4, 3584 * 2048)
    srd(o, sH, 6, WS_H_SIZE)
    srd(o, sO, 40, 2048 * 2048)
    o(f"s_add_u32 s42, s6, {WS_AT}\ns_addc_u32 s43, s7, 0")
    srd(o, sAT, 42, 1024 * 4096)
    o(f"s_add_u32 s42, s6, {WS_G}\ns_addc_u32 s43, s7, 0")
    srd(o, sG, 42, 2048 * 4)
    o(f"s_lshl_b32 s{sM0}, s{sWave}, 12")
    def dmaW(j): return f"buffer_load_dwordx4 v{vWd[j]}, s[{sWs}:{sWs+3}], s{sWoff} offen offset:{1024*j} lds"
    def ldH(stg, ks, nb): return f"buffer_load_dwordx4 {v(fh(stg,ks,nb),4)}, v{vH[nb]}, s[{sH}:{sH+3}], s{sHoff} offen offset:{1024*ks}"
    def setW(add, cnt=True):
        return [f"s_add_u32 s{sTmp}, s{sCnt}, {add}", f"s_xor_b32 s{sTmp}, s{sTmp}, s{sRot}", f"s_lshl_b32 s{sWoff}, s{sTmp}, 18"]
    def setH(add):
        return [f"s_add_u32 s{sTmp}, s{sCnt}, {add}", f"s_xor_b32 s{sTmp}, s{sTmp}, s{sRot}", f"s_lshl_b32 s{sHoff}, s{sTmp}, 12"]
    o(f"s_mov_b32 s{sCnt}, 0")
    def pro_W(stage, js):
        for x in setW(stage): o(x)
        o(f"s_add_u32 m0, s{sM0}, {(stage&3)*16384}\ns_nop 0")
        for j in js: o(dmaW(j))
    pro_W(0, [0, 1, 2, 3]); pro_W(1, [0])
    for t in (-2, -1):
        for x in setH(t + 2): o(x)
        for ks in range(4):
            if ks < 3: pro_W(t + 3, [ks + 1])
            else: pro_W(t + 4, [0])
            o(ldH(t + 2, ks, 0)); o(ldH(t + 2, ks, 1))
    for r in range(32): o(f"v_mov_b32 v{ACC+r}, 0")
    def readsA(st, slot, ks):
        return [f"ds_read_b64_tr_b16 {v(fa(st,mb)+2*r2,2)}, v{vA[mb]} offset:{slot*16384 + ks*4096 + r2*2048}" for mb in range(4) for r2 in range(2)]
    o("s_waitcnt vmcnt(25)\ns_barrier")
    if stamp: stamp_mid1(o)
    for x in readsA(0, 0, 0): o(x)
    o(".p2align 3")
    o.label(f"{name}_loop")
    for t in range(4):
        for ks in range(4):
            st = ks & 1
            o("s_waitcnt vmcnt(%d) lgkmcnt(0)" % opt.get("x_vm", (7 if opt.get("x_noh") else 14 if opt.get("x_now") else 21)))
            if ks == 3 and not opt.get("x_nobar"): o("s_barrier")
            rd = readsA(st ^ 1, t if ks < 3 else (t + 1) & 3, (ks + 1) & 3)
            pre = []
            if ks == 3: pre = setW(t + 4) + [f"s_add_u32 m0, s{sM0}, {t*16384}"]
            if ks == 0: pre = setH(t + 2)
            i = 0
            for nb in range(2):
                for mb in range(4):
                    if not opt.get("x_nomfma"): o(f"v_mfma_f32_16x16x32_bf16 {v(acc(mb,nb),4)}, {v(fa(st,mb),4)}, {v(fh(t,ks,nb),4)}, {v(acc(mb,nb),4)}")
                    if not opt.get("x_nord") or (opt["x_nord"] == 2 and i < 2): o(rd[i])
                    if i == 0:
                        for x in pre: o(x)
                        o("s_nop 0")
                    if i == 1 and not opt.get("x_now"): o(dmaW((ks + 1) & 3))
                    if i == 4 and not opt.get("x_noh"): o(ldH(t, ks, 0))
                    if i == 7 and not opt.get("x_noh"): o(ldH(t, ks, 1))
                    i += 1
            if t == 1 and ks == 3:
                o(f"s_cmp_ge_u32 s{sCnt}, 24\ns_cselect_b32 s{sH+2}, 0, s{sH+2}")
    o(f"""
    s_add_u32 s{sCnt}, s{sCnt}, 4
    s_cmp_lt_u32 s{sCnt}, 28
    s_cbranch_scc1 {name}_loop
    """)
    if stamp: stamp_mid2(o)
    if wait_flags: wait_flags(o, sDT)
    o(f"""
    v_and_b32 v18, 15, v0
    v_lshlrev_b32 v19, 12, v18
    v_lshlrev_b32 v20, 4, v17
    v_add_u32 v19, v19, v20
    s_lshl_b32 s36, s{sDT}, 18
    s_lshl_b32 s37, s{sTT}, 8
    s_lshl_b32 s38, s{sWave}, 6
    s_add_u32 s37, s37, s38
    s_add_u32 s36, s36, s37
    s_lshl_b32 s39, s37, 1
    v_lshlrev_b32 v20, 2, v18
    buffer_load_dword v12, v20, s[{sG}:{sG+3}], s39 offen
    buffer_load_dword v13, v20, s[{sG}:{sG+3}], s39 offen offset:64
    """)
    for mb in range(4):
        o(f"buffer_load_dwordx4 {v(FH+4*mb,4)}, v19, s[{sAT}:{sAT+3}], s36 offen {ldmod}")
        if mb < 3: o(f"s_add_u32 s36, s36, 65536")
    o(f"""
    v_lshlrev_b32 v21, 11, v18
    v_lshlrev_b32 v22, 3, v17
    v_add_u32 v21, v21, v22
    s_lshl_b32 s38, s37, 10
    s_lshl_b32 s39, s{sDT}, 7
    s_add_u32 s38, s38, s39
    s_add_u32 s39, s38, {16*2048}
    v_lshlrev_b32 v22, 3, v17
    v_sub_u32 v22, v18, v22
    s_waitcnt vmcnt(4)
    """)
    SEL = FH + 16
    for nb in range(2):
        g = 12 + nb
        o(f"""
        v_sub_f32 v14, 1.0, v{g}
        v_cvt_pk_bf16_f32 v14, v14, v14
        v_lshlrev_b32 v14, 16, v14
        v_lshrrev_b32 v15, 16, v{g}
        v_and_b32 v16, 0xffff0000, v{g}
        v_add_u32 v23, {16*nb}, v22
        v_and_b32 v24, 1, v23
        v_cmp_eq_u32 vcc, 1, v24
        v_ashrrev_i32 v23, 1, v23
        s_nop 1
        v_cndmask_b32 v15, v15, v16, vcc
        """)
        for q in range(4):
            o(f"v_cmp_eq_u32 vcc, {q}, v23\ns_nop 1\nv_cndmask_b32 v{SEL+4*nb+q}, 0, v15, vcc")
        for mb in range(4):
            for r in range(4): o(f"v_mul_f32 v{acc(mb,nb)+r}, v14, v{acc(mb,nb)+r}")
    o("s_waitcnt vmcnt(0)\ns_nop 1")
    for nb in range(2):
        for mb in range(4):
            o(f"v_mfma_f32_16x16x32_bf16 {v(acc(mb,nb),4)}, {v(FH+4*mb,4)}, {v(SEL+4*nb,4)}, {v(acc(mb,nb),4)}")
    o("s_nop 7")
    for nb in range(2):
        for mb in range(4):
            b = acc(mb, nb)
            o(f"v_cvt_pk_bf16_f32 v{b}, v{b}, v{b+1}\nv_cvt_pk_bf16_f32 v{b+1}, v{b+2}, v{b+3}")
            o(f"buffer_store_dwordx2 {v(b,2)}, v21, s[{sO}:{sO+3}], s{38+nb} offen offset:{32*mb}")
    if stamp: stamp_end(o, sWave, 6, off=1 << 20)

def gemm2(o, name="gemm2_kernel", stamp=False, opt=None):
    kernel_begin(o, name)
    o(f"s_cmp_ge_u32 s2, 256\ns_cbranch_scc1 {name}_end")
    gemm2_body(o, name, 2, stamp, opt)
    o.label(f"{name}_end")
    o("s_endpgm")
    kernel_desc(o, name, 160, 160)
    return f"; @launch kernel={name} grid=(256,1,1) block=(256,1,1) lds=65536"
```

```python
from asmlib import *
from gemm1b import stamp_begin, stamp_mid1, stamp_mid2, stamp_end

def gemm2b_body(o, name, sId, stamp=False, opt=None, merged=False):
    opt = opt or {}
    vA = list(range(2, 10))
    vWd = [10, 11, 12, 13]
    vH = [14, 15]
    vG = [24, 25]
    vL16 = 26
    ACC = 32
    FA = 96
    FH = 160
    def acc(mb, nb): return ACC + ((mb >> 2) * 8 + nb * 4 + (mb & 3)) * 4
    def fa(st, mb): return FA + st * 32 + mb * 4
    def fh(stg, ks, nb): return FH + ((stg & 3) * 4 + ks * 2 + nb) * 4
    sH, sWs, sO, sAT, sG, sX = 8, 12, 16, 20, 52, 80
    sWave, sTT, sDP, sRot, sKH, sQ = 24, 25, 26, 27, 33, 34
    sHoff, sWoff, sM0, sCnt, sTmp = 28, 29, 30, 31, 32
    rotm = opt.get("rot2", 3)
    o(f"""
    s_load_dwordx2 s[4:5], s[0:1], {KA['wd']}
    s_load_dwordx2 s[40:41], s[0:1], {KA['out']}
    s_load_dwordx2 s[6:7], s[0:1], {KA['ws']}
    """)
    if stamp: stamp_begin(o)
    o(f"""
    v_lshrrev_b32 v1, 6, v0
    v_and_b32 v0, 63, v0
    s_and_b32 s3, s{sId}, 7
    v_readfirstlane_b32 s{sWave}, v1
    s_lshr_b32 s36, s{sId}, 3
    s_and_b32 s37, s3, 1
    s_lshl_b32 s37, s37, 3
    s_and_b32 s38, s36, 7
    s_add_u32 s{sTT}, s37, s38
    s_bfe_u32 s{sQ}, s3, 0x10001
    s_lshl_b32 s37, s{sQ}, 2
    s_lshr_b32 s38, s36, 3
    s_add_u32 s{sDP}, s37, s38
    s_lshr_b32 s{sKH}, s3, 2
    s_add_u32 s{sRot}, s{sTT}, s{sDP}
    s_and_b32 s{sRot}, s{sRot}, {rotm}
    s_mul_i32 s{sQ}, s{sQ}, {opt.get('qoff', 14)}
    v_lshrrev_b32 v17, 4, v0
    v_lshlrev_b32 v{vL16}, 4, v0
    """)
    o(f"""
    s_lshl_b32 s36, s{sTT}, 3
    s_lshl_b32 s37, s{sWave}, 1
    s_add_u32 s36, s36, s37
    s_mul_i32 s36, s36, {112*1024}
    s_mul_i32 s37, s{sKH}, {56*1024}
    s_add_u32 s36, s36, s37
    v_add_u32 v{vH[0]}, s36, v{vL16}
    v_add_u32 v{vH[1]}, {112*1024}, v{vH[0]}
    """)
    o(f"""
    v_lshlrev_b32 v18, 11, v17
    v_bfe_u32 v19, v0, 1, 3
    v_xor_b32 v19, v19, v17
    v_lshlrev_b32 v19, 5, v19
    v_and_b32 v20, 1, v0
    v_lshl_add_u32 v19, v20, 4, v19
    v_add_u32 v18, v18, v19
    s_lshl_b32 s36, s{sWave}, 15
    s_lshl_b32 s37, s{sDP}, 8
    s_add_u32 s36, s36, s37
    s_mul_i32 s37, s{sKH}, {1792*2048}
    s_add_u32 s36, s36, s37
    v_add_u32 v{vWd[0]}, s36, v18
    v_xor_b32 v18, 128, v{vWd[0]}
    v_add_u32 v{vWd[1]}, {1*(8192-1024)}, v18
    v_add_u32 v{vWd[2]}, {2*(8192-1024)}, v{vWd[0]}
    v_add_u32 v{vWd[3]}, {3*(8192-1024)}, v18
    """)
    o("s_waitcnt lgkmcnt(0)")
    srd(o, sWs, 4, 3584 * 2048)
    srd(o, sH, 6, WS_H_SIZE)
    o(f"s_lshl_b32 s{sM0}, s{sWave}, 12")
    def dmaW(j): return f"buffer_load_dwordx4 v{vWd[j]}, s[{sWs}:{sWs+3}], s{sWoff} offen offset:{1024*j} lds"
    def ldH(stg, ks, nb): return f"buffer_load_dwordx4 {v(fh(stg,ks,nb),4)}, v{vH[nb]}, s[{sH}:{sH+3}], s{sHoff} offen offset:{1024*ks}"
    def stage_of(add):
        return [f"s_add_u32 s{sTmp}, s{sCnt}, {add}", f"s_xor_b32 s{sTmp}, s{sTmp}, s{sRot}", f"s_add_u32 s{sTmp}, s{sTmp}, s{sQ}",
                f"s_sub_u32 s35, s{sTmp}, 28", f"s_min_u32 s{sTmp}, s{sTmp}, s35"]
    def setW(add): return stage_of(add) + [f"s_lshl_b32 s{sWoff}, s{sTmp}, 17"]
    def setH(add): return stage_of(add) + [f"s_lshl_b32 s{sHoff}, s{sTmp}, 11"]
    o(f"s_mov_b32 s{sCnt}, 0")
    def pro_W(stage, js):
        for x in setW(stage): o(x)
        o(f"s_add_u32 m0, s{sM0}, {(stage&3)*16384}\ns_nop 0")
        for j in js: o(dmaW(j))
    pro_W(0, [0, 1, 2, 3])
    for t in (-4, -3, -2, -1):
        for x in setH(t + 4): o(x)
        for ks in range(2):
            if ks == 0:
                if t + 3 >= 1: pro_W(t + 3, [2, 3])
            else:
                if t + 4 >= 1: pro_W(t + 4, [0, 1])
            o(ldH(t + 4, ks, 0)); o(ldH(t + 4, ks, 1))
    o(f"""
    v_lshrrev_b32 v18, 2, v0
    v_lshlrev_b32 v19, 8, v18
    v_and_b32 v18, 7, v18
    s_lshl_b32 s36, s{sKH}, 2
    v_xor_b32 v18, s36, v18
    v_lshl_add_u32 v19, v18, 5, v19
    v_and_b32 v18, 3, v0
    v_lshl_add_u32 v{vA[0]}, v18, 3, v19
    """)
    for m in range(1, 8): o(f"v_xor_b32 v{vA[m]}, {32*m}, v{vA[0]}")
    srd(o, sO, 40, 2048 * 2048)
    o(f"s_add_u32 s42, s6, {WS_AT}\ns_addc_u32 s43, s7, 0")
    srd(o, sAT, 42, 1024 * 4096)
    o(f"s_add_u32 s42, s6, {WS_G}\ns_addc_u32 s43, s7, 0")
    srd(o, sG, 42, 2048 * 4)
    o(f"s_add_u32 s42, s6, {WS_X}\ns_addc_u32 s43, s7, 0")
    srd(o, sX, 42, 256 * 32768)
    o(f"s_add_u32 s56, s6, {WS_FLAG}\ns_addc_u32 s57, s7, 0")
    for r in range(64): o(f"v_mov_b32 v{ACC+r}, 0")
    def readsA(st, slot, ks):
        return [f"ds_read_b64_tr_b16 {v(fa(st,mb)+2*r2,2)}, v{vA[mb]} offset:{slot*16384 + ks*8192 + r2*4096}" for mb in range(8) for r2 in range(2)]
    o("s_waitcnt vmcnt(22)\ns_barrier")
    if stamp and not opt.get('stx'): stamp_mid1(o)
    for x in readsA(0, 0, 0): o(x)
    o(".p2align 3")
    o.label(f"{name}_loop")
    rpg = opt.get("rpg", 2)
    for t in range(4):
        for ks in range(2):
            st = ks
            o("s_waitcnt vmcnt(28) lgkmcnt(0)")
            rd = readsA(st ^ 1, t if ks == 0 else (t + 1) & 3, ks ^ 1)
            fill = {}
            def add(i, x): fill.setdefault(i, []).append(x)
            b0 = 0
            if ks == 1:
                add(0, "s_waitcnt vmcnt(18)"); add(0, "s_barrier")
                for x in setW(t + 4): add(1, x)
                add(1, f"s_add_u32 m0, s{sM0}, {t*16384}")
            else:
                for x in setH(t + 4): add(1, x)
            for k, x in enumerate(rd): add(k // rpg, x)
            w0 = opt.get("wpos", [3, 6])
            add(w0[0], dmaW(2 if ks == 0 else 0)); add(w0[1], dmaW(3 if ks == 0 else 1))
            add(9, ldH(t, ks, 0)); add(15, ldH(t, ks, 1))
            if t == 3 and ks == 1:
                add(10, f"s_add_u32 s{sCnt}, s{sCnt}, 4"); add(11, f"s_cmp_ge_u32 s{sCnt}, 24");
                add(15, f"s_cselect_b32 s{sH+2}, 0, s{sH+2}")
                add(15, f"s_cmp_lt_u32 s{sCnt}, 28"); add(15, f"s_cbranch_scc1 {name}_loop")
            if t == 0 and ks == 0:
                add(12, f"s_cmp_ge_u32 s{sCnt}, 24"); add(13, f"s_cselect_b32 s{sWs+2}, 0, s{sWs+2}")
            i = 0
            for nb in range(2):
                for mb in range(8):
                    if not opt.get("x_nomfma"): o(f"v_mfma_f32_16x16x32_bf16 {v(acc(mb,nb),4)}, {v(fa(st,mb),4)}, {v(fh(t,ks,nb),4)}, {v(acc(mb,nb),4)}")
                    for x in fill.get(i, []):
                        if opt.get("x_nord") and x.startswith("ds_read"): continue
                        if opt.get("x_nold") and x.startswith("buffer_load"): continue
                        if opt.get("x_nobar") and x.startswith("s_barrier"): continue
                        o(x)
                    i += 1
    if stamp and not opt.get('stx'): stamp_mid2(o)
    if opt.get('stx') == 1: stamp_mid1(o)
    o(f"""
    s_lshl_b32 s36, s{sId}, 2
    s_add_u32 s36, s36, s{sWave}
    s_lshl_b32 s37, s36, 13
    s_xor_b32 s38, s37, {4 << 15}
    s_add_u32 s39, s37, 4096
    s_add_u32 s44, s38, 4096
    s_lshl_b32 s45, s36, 5
    v_mov_b32 v27, s45
    s_xor_b32 s45, s45, {4 << 7}
    v_mov_b32 v28, s45
    v_mov_b32 v29, 1
    """)
    for k in range(8):
        o(f"buffer_store_dwordx4 {v(ACC+32+4*k,4)}, v{vL16}, s[{sX}:{sX+3}], s{37 if k < 4 else 39} offen offset:{1024*(k&3)} sc1")
    sDT = 46
    o(f"""
    s_lshl_b32 s{sDT}, s{sDP}, 1
    s_add_u32 s{sDT}, s{sDT}, s{sKH}
    v_and_b32 v18, 15, v0
    v_lshlrev_b32 v19, 12, v18
    v_lshl_add_u32 v19, v17, 4, v19
    s_lshl_b32 s47, s{sDT}, 18
    s_lshl_b32 s37, s{sTT}, 8
    s_lshl_b32 s39, s{sWave}, 6
    s_add_u32 s37, s37, s39
    s_add_u32 s47, s47, s37
    s_lshl_b32 s39, s37, 1
    v_lshlrev_b32 v20, 2, v18
    buffer_load_dword v{vG[0]}, v20, s[{sG}:{sG+3}], s39 offen
    buffer_load_dword v{vG[1]}, v20, s[{sG}:{sG+3}], s39 offen offset:64
    s_lshl_b32 s39, s{sDT}, 8
    s_add_u32 s39, s39, 32768
    v_mov_b32 v30, s39
    """)
    o(f"""
    v_lshlrev_b32 v21, 11, v18
    v_and_b32 v22, 1, v17
    v_lshl_add_u32 v21, v22, 5, v21
    v_lshrrev_b32 v22, 1, v17
    v_lshl_add_u32 v21, v22, 4, v21
    s_lshl_b32 s48, s37, 10
    s_lshl_b32 s49, s{sDT}, 7
    s_add_u32 s48, s48, s49
    s_add_u32 s49, s48, {16*2048}
    v_lshlrev_b32 v22, 3, v17
    v_sub_u32 v22, v18, v22
    s_mov_b64 s[50:51], exec
    s_waitcnt vmcnt(0) lgkmcnt(0)
    s_mov_b64 exec, 1
    global_store_dword v27, v29, s[56:57] sc1
    s_mov_b64 exec, s[50:51]
    s_mov_b32 s37, 0
    s_setprio 0
    """)
    if opt.get('stx') == 1: stamp_mid2(o)
    if opt.get('stx') == 2: stamp_mid1(o)
    SEL = FH + 16; OMG = [2, 3]
    for nb in range(2):
        g = vG[nb]
        o(f"""
        v_sub_f32 v{OMG[nb]}, 1.0, v{g}
        v_cvt_pk_bf16_f32 v{OMG[nb]}, v{OMG[nb]}, v{OMG[nb]}
        v_lshlrev_b32 v{OMG[nb]}, 16, v{OMG[nb]}
        v_lshrrev_b32 v15, 16, v{g}
        v_and_b32 v16, 0xffff0000, v{g}
        v_add_u32 v23, {16*nb}, v22
        v_and_b32 v14, 1, v23
        v_cmp_eq_u32 vcc, 1, v14
        v_ashrrev_i32 v23, 1, v23
        s_nop 1
        v_cndmask_b32 v15, v15, v16, vcc
        """)
        for q in range(4):
            o(f"v_cmp_eq_u32 vcc, {q}, v23\ns_nop 1\nv_cndmask_b32 v{SEL+4*nb+q}, 0, v15, vcc")
    def poll(lbl, vaddr, need):
        o.label(f"{name}_{lbl}")
        o(f"""
        global_load_dword v13, v{vaddr}, s[56:57] sc1
        s_add_u32 s37, s37, 1
        s_waitcnt vmcnt(0)
        v_readfirstlane_b32 s36, v13
        s_cmp_ge_u32 s37, 0x40000
        s_cbranch_scc1 {name}_{lbl}_go
        s_cmp_ge_u32 s36, {need}
        s_cbranch_scc1 {name}_{lbl}_go
        s_sleep {opt.get('sleep', 4)}
        s_branch {name}_{lbl}
        """)
        o.label(f"{name}_{lbl}_go")
    poll("p1", 28, 1)
    if opt.get('stx') == 2: stamp_mid2(o)
    if opt.get('stx') == 3: stamp_mid1(o)
    for k in range(8):
        o(f"buffer_load_dwordx4 {v(FA+4*k,4)}, v{vL16}, s[{sX}:{sX+3}], s{38 if k < 4 else 44} offen offset:{1024*(k&3)} sc1")
    if merged: poll("p2", 30, 16)
    for mb in range(4):
        o(f"buffer_load_dwordx4 {v(FH+4*mb,4)}, v19, s[{sAT}:{sAT+3}], s47 offen {'sc1' if merged else ''}")
        if mb < 3: o(f"s_add_u32 s47, s47, 65536")
    o("s_waitcnt vmcnt(4)")
    for nb in range(2):
        for mb in range(4):
            b = acc(mb, nb)
            for r in range(4): o(f"v_add_f32 v{b+r}, v{b+r}, v{FA+b-ACC+r}")
            for r in range(4): o(f"v_mul_f32 v{b+r}, v{OMG[nb]}, v{b+r}")
    o("s_waitcnt vmcnt(0)\ns_nop 1")
    if opt.get('stx') == 3: stamp_mid2(o)
    for nb in range(2):
        for mb in range(4):
            o(f"v_mfma_f32_16x16x32_bf16 {v(acc(mb,nb),4)}, {v(FH+4*mb,4)}, {v(SEL+4*nb,4)}, {v(acc(mb,nb),4)}")
    o("s_nop 3")
    for nb in range(2):
        for pr in range(2):
            b = acc(2 * pr, nb); d = FA + 4 * (2 * nb + pr)
            for q in range(4): o(f"v_cvt_pk_bf16_f32 v{d+q}, v{b+2*q}, v{b+2*q+1}")
            o(f"s_nop 1\nv_permlane16_swap_b32 v{d}, v{d+2}\nv_permlane16_swap_b32 v{d+1}, v{d+3}")
            o(f"buffer_store_dwordx4 {v(d,4)}, v21, s[{sO}:{sO+3}], s{48+nb} offen offset:{64*pr}")
    if stamp: stamp_end(o, sWave, 6, off=1 << 20)

def gemm2b(o, name="gemm2_kernel", stamp=False, opt=None):
    kernel_begin(o, name)
    o(f"s_cmp_ge_u32 s2, 256\ns_cbranch_scc1 {name}_end")
    gemm2b_body(o, name, 2, stamp, opt)
    o.label(f"{name}_end")
    o("s_endpgm")
    kernel_desc(o, name, 224, 224)
    return f"; @launch kernel={name} grid=(256,1,1) block=(256,1,1) lds=65536"
```

```python
from asmlib import *
from ssm import ssm_body, WSTR
from gemm2b import gemm2b_body

def merged(o, name="mix_kernel", stamp=False, opt=None):
    opt = opt or {}
    kernel_begin(o, name)
    o(f"""
    s_cmp_ge_u32 s2, 256
    s_cbranch_scc1 {name}_g2
    """)
    def signal(o):
        o(f"""
        s_add_u32 s58, s6, {WS_CNT}
        s_addc_u32 s59, s7, 0
        s_waitcnt vmcnt(0)
        s_barrier
        s_cmp_lg_u32 s24, 0
        s_cbranch_scc1 {name}_nosig
        s_lshr_b32 s36, s2, 4
        s_lshl_b32 s36, s36, 8
        v_mov_b32 v2, s36
        v_mov_b32 v3, 1
        s_mov_b64 s[44:45], exec
        s_mov_b64 exec, 1
        global_atomic_add v2, v3, s[58:59]
        s_mov_b64 exec, s[44:45]
        """)
        o.label(f"{name}_nosig")
    if opt.get("sprio"): o(f"s_setprio {opt['sprio']}")
    ssm_body(o, name + "_s", 2, stamp, opt, stmod="sc1", signal=signal)
    o("s_endpgm")
    o.label(f"{name}_g2")
    o(f"""
    s_cmp_ge_u32 s2, 512
    s_cbranch_scc1 {name}_end
    s_sub_u32 s2, s2, 256
    """)
    if opt.get("prio"): o(f"s_setprio {opt['prio']}")
    gemm2b_body(o, name + "_g", 2, stamp, opt, merged=True)
    o.label(f"{name}_end")
    o("s_endpgm")
    kernel_desc(o, name, 248, 248)
    return f"; @launch kernel={name} grid=(512,1,1) block=(256,1,1) lds={opt.get('lds2', 4*WSTR)}"
```

```python
import sys, json
from asmlib import *
from gemm1b import gemm1
from gemm2 import gemm2
from ssm import ssm
from conv import conv_kernel
from gemm2b import gemm2b
from merged import merged
from fused import fused
HDR = open("gated_mix__ssm_conv_s4__swiglu_ffn__prompt.s.ref").read().split("; Override launch")[0]
def build(parts, path):
    o = A()
    o.raw('.amdgcn_target "amdgcn-amd-amdhsa--gfx950"')
    L = [p(o) for p in parts]
    open(path, "w").write(HDR + "\n".join(L) + "\n" + o.text())
if __name__ == "__main__":
    opt = json.loads(sys.argv[2]) if len(sys.argv) > 2 else {}
    st = opt.get("stamp", False)
    P = dict(fu=lambda o: fused(o, opt=opt), conv=lambda o: conv_kernel(o, stamp=st, opt=opt), g2b=lambda o: gemm2b(o, stamp=st, opt=opt), g1=lambda o: gemm1(o, stamp=st, opt=opt), g2=lambda o: gemm2(o, stamp=st, opt=opt), ssm=lambda o: ssm(o, stamp=st, opt=opt), mix=lambda o: merged(o, stamp=st, opt=opt))
    build([P[k] for k in opt.get("parts", ["g1", "mix"])], sys.argv[1])
```

```python
from asmlib import *
from gemm1b import gemm1
from conv import Conv, CWSTR, KSTR, UOFF, USTR
from aux import merge, gather_setup
COFF = 163840 - 4 * CWSTR
XOFF2 = 131072
HCNT = 32768 + 4096

class Fused:
    def __init__(self, o, name, opt):
        self.o = o; self.name = name; self.opt = opt; self.st = opt.get("fstamp", False)
        self.sWs, self.sK, self.sU, self.sH, self.sAT, self.sO, self.sG, self.sX = 8, 12, 16, 20, 84, 88, 40, 52
        (self.sTT, self.sDP, self.sKH, self.sD, self.sCB, self.sM0, self.sWoff, self.sHoff) = range(27, 35)
        self.sSW = [44, 45]; self.sSH = [46, 47]; self.sHC = 51
        self.vWd = [18, 19, 20, 21]; self.vH = [12, 13, 14, 15]; self.vA = 192
        self.STG = 192
        self.C = Conv(o, self.sD, self.sCB, self.sU, self.sK, self.sAT, 1, 2, 32, ldmod="sc1", stmod="sc1", tmp=(48, 49, 50))
        self.GA = 40; self.SL = 10; self.GB = 44; self.sC = [25, 26, 37, 58, 59]
        self.PW = 5; self.PH = opt.get("PH", 8)
    def stamp(self, i, force=False):
        if self.opt.get("kst") and 0 < i < 9 and not force: return
        if i == 0:
            self.o(f"s_load_dwordx2 s[92:93], s[0:1], {KA['wd']}\ns_load_dwordx4 s[96:99], s[0:1], {KA['out']}")
        if self.st: self.o(f"{'s_memtime' if self.st == 2 else 's_memrealtime'} s[{60+2*i}:{61+2*i}]")
    def spin(self, lbl, vdst, vaddr, sbase, need, first_wait):
        n = f"{self.name}_{lbl}"
        return [first_wait, f"v_readfirstlane_b32 s48, v{vdst}", f"s_mov_b32 s49, 0", f"s_cmp_ge_u32 s48, {need}", f"s_cbranch_scc1 {n}_go",
                f"{n}:", f"s_sleep {self.opt.get('sleep', 4)}", f"!global_load_dword v{vdst}, v{vaddr}, s[{sbase}:{sbase+1}] sc1", "s_add_u32 s49, s49, 1",
                "s_waitcnt vmcnt(0)", f"v_readfirstlane_b32 s48, v{vdst}", "s_cmp_ge_u32 s49, 0x40000", f"s_cbranch_scc1 {n}_go",
                f"s_cmp_lt_u32 s48, {need}", f"s_cbranch_scc1 {n}", f"{n}_go:"]
    def emit(self, L):
        for x in L:
            if isinstance(x, str) and x.startswith("!"): self.o.raw("    " + x[1:])
            else: self.o(x)
    def setup(self):
        S = self; t = A()
        rot = S.opt.get("rot2", 1); rev = S.opt.get("rev2", 1)
        t(f"""
        s_and_b32 s3, s2, 7
        s_lshr_b32 s48, s2, 3
        s_and_b32 s49, s3, 1
        s_lshl_b32 s49, s49, 3
        s_and_b32 s50, s48, 7
        s_add_u32 s{S.sTT}, s49, s50
        s_bfe_u32 s35, s3, 0x10001
        s_lshl_b32 s49, s35, 2
        s_lshr_b32 s50, s48, 3
        s_add_u32 s{S.sDP}, s49, s50
        s_lshr_b32 s{S.sKH}, s3, 2
        s_lshl_b32 s{S.sD}, s2, 2
        s_add_u32 s{S.sD}, s{S.sD}, s24
        s_mul_i32 s{S.sCB}, s24, {CWSTR}
        s_add_u32 s{S.sCB}, s{S.sCB}, {COFF}
        s_lshl_b32 s{S.sM0}, s24, 12
        s_add_u32 s48, s{S.sTT}, s{S.sDP}
        s_and_b32 s48, s48, {rot}
        s_and_b32 s35, s35, {rev}
        s_lshl_b32 s49, s48, 1
        s_sub_u32 s{S.sSH[0]}, 1, s49
        s_add_u32 s{S.sSH[1]}, 1, s49
        s_sub_u32 s49, 27, s48
        s_cmp_eq_u32 s35, 1
        s_cselect_b32 s{S.sHoff}, s49, s48
        s_cselect_b32 s49, -1, 1
        s_mul_i32 s{S.sSH[0]}, s{S.sSH[0]}, s49
        s_mul_i32 s{S.sSH[1]}, s{S.sSH[1]}, s49
        s_lshl_b32 s{S.sWoff}, s{S.sHoff}, 17
        s_lshl_b32 s{S.sHoff}, s{S.sHoff}, 11
        s_lshl_b32 s{S.sSW[0]}, s{S.sSH[0]}, 17
        s_lshl_b32 s{S.sSW[1]}, s{S.sSH[1]}, 17
        s_lshl_b32 s{S.sSH[0]}, s{S.sSH[0]}, 11
        s_lshl_b32 s{S.sSH[1]}, s{S.sSH[1]}, 11
        v_lshrrev_b32 v19, 4, v0
        v_lshlrev_b32 v18, 11, v19
        v_bfe_u32 v20, v0, 1, 3
        v_xor_b32 v20, v20, v19
        v_lshlrev_b32 v20, 5, v20
        v_and_b32 v21, 1, v0
        v_lshl_add_u32 v20, v21, 4, v20
        v_add_u32 v18, v18, v20
        s_lshl_b32 s48, s24, 15
        s_lshl_b32 s49, s{S.sDP}, 8
        s_add_u32 s48, s48, s49
        s_mul_i32 s49, s{S.sKH}, {1792*2048}
        s_add_u32 s48, s48, s49
        v_add_u32 v18, s48, v18
        v_xor_b32 v21, 128, v18
        v_add_u32 v19, {1*(8192-1024)}, v21
        v_add_u32 v20, {2*(8192-1024)}, v18
        v_add_u32 v21, {3*(8192-1024)}, v21
        s_add_u32 s56, s6, {WS_FLAG}
        s_addc_u32 s57, s7, 0
        """)
        srd(t, S.sWs, 92, 3584 * 2048)
        c = Conv(t, S.sD, S.sCB, S.sU, S.sK, S.sAT, 1, 2, 32)
        c.srds()
        return [x.strip() for x in t.l if x.strip()]
    def setup2(self):
        S = self
        return [f"s_lshl_b32 s50, s{S.sD}, 11", "s_add_u32 s50, s50, 16"] + gather_setup(50, range(S.GA, S.GA + 4), 56, 66, 67, S.sC)
    def dmaW(self, st):
        S = self
        L = [f"s_add_u32 m0, s{S.sM0}, {(st & 7) * 16384}"]
        L += [f"buffer_load_dwordx4 v{S.vWd[j]}, s[{S.sWs}:{S.sWs+3}], s{S.sWoff} offen offset:{1024*j} lds" for j in range(4)]
        return L, [("tv", f"W{st}"), f"s_add_u32 s{S.sWoff}, s{S.sWoff}, s{S.sSW[st & 1]}"]
    def fh(self, st, nb): return 64 + (st & 7) * 16 + nb * 4
    def ldH(self, st, nb):
        S = self
        L = [f"buffer_load_dwordx4 {a(S.fh(st, nb), 4)}, v{S.vH[nb]}, s[{S.sH}:{S.sH+3}], s{S.sHoff} offen sc1"]
        if nb == 3: L += [("tv", f"H{st}"), f"s_add_u32 s{S.sHoff}, s{S.sHoff}, s{S.sSH[st & 1]}"]
        return L
    def pf(self):
        S = self; G = []
        G.append([f"s_lshl_b32 s50, s{S.sD}, 12"])
        K = f"s[{S.sK}:{S.sK+3}], 0 offen"; GA, GB = S.GA, S.GB
        G += [[f"buffer_load_dwordx2 {v(GB,2)}, v{GA}, {K} offset:128 sc1"], [f"buffer_load_dwordx2 {v(GB+2,2)}, v{GA}, {K} sc1"],
              [f"buffer_load_dwordx2 {v(GB+4,2)}, v{GA+1}, {K} sc1"], [f"buffer_load_dwordx2 {v(GB+6,2)}, v{GA+2}, {K} sc1"],
              [f"buffer_load_dwordx4 {v(GB+8,4)}, v{GA+3}, {K} sc1"]]
        for c in range(2):
            for j in range(4): G.append([f"buffer_load_dwordx4 {a(S.STG+32+16*c+4*j,4)}, v1, s[{S.sU}:{S.sU+3}], s50 offen offset:{1024*j+16-4*c} sc1"])
        G[-1].append(("tv", "KU"))
        return G
    def peel(self, h):
        S = self; f = {}
        if h == 0:
            for i, x in enumerate(S.setup()): f.setdefault(2 + i // 3, []).append(x)
            assert max(f) < 28
        p = 29 if h == 0 else 4
        for st in ((0, 1, 2) if h == 0 else (3, 4)):
            L, post = S.dmaW(st)
            f.setdefault(p - 1, []).append(L[0])
            for x in L[1:]:
                f.setdefault(p, []).append(x); p += 3 if h == 0 else 6
            f[p - (3 if h == 0 else 6)] += post
        return f
    def g1_exit(self, sTT1, sFT1):
        o = self.o
        o(f"""
        v_mov_b32 v23, 0
        s_lshl_b32 s{self.sHC}, s{sTT1}, 1
        s_cmp_ge_u32 s{sFT1}, 14
        s_addc_u32 s{self.sHC}, s{self.sHC}, 0
        s_lshl_b32 s{self.sHC}, s{self.sHC}, 8
        s_add_u32 s{self.sHC}, s{self.sHC}, {HCNT}
        v_mov_b32 v22, 32
        s_cmp_eq_u32 s24, 0
        s_cselect_b32 s{self.sHC}, s{self.sHC}, 0
        """)
        self.G = self.pf()
    def epi_merge(self, n, E):
        pb = self.opt.get("pollblk", 4)
        if n == pb - 2:
            self.emit(["s_cmp_lg_u32 s24, 0", f"s_cbranch_scc1 {self.name}_np", "!global_load_dword v22, v23, s[98:99] sc1", f"{self.name}_np:", ("tv", "auxp")])
        if n == 3: E = merge(E, self.setup2(), 8)
        if n < pb: return E
        if n == pb:
            self.emit(self.spin("sa", 22, 23, 98, 32, ("wv", "auxp")) + ["s_barrier"])
        k = self.opt.get("pfrate", 3)
        take, self.G = self.G[:k], self.G[k:]
        out = []; step = len(E) // (k + 1)
        for i, x in enumerate(E):
            out.append(x)
            if i % step == step - 1 and take and not E[i + 1].startswith("s_nop") and not x.startswith("s_nop"): out += take.pop(0)
        for g in take: out += g
        return [x for x in out if not any(isinstance(x, str) and p in x for p in self.opt.get('edrop', []))]
    def aux_exit(self):
        o = self.o; S = self
        o(f"""
        s_waitcnt vmcnt(0)
        s_barrier
        v_mov_b32 v23, 0
        v_mov_b32 v22, 1
        v_lshlrev_b32 v1, 4, v0
        s_mov_b32 s{S.sHC}, 0
        s_cmp_lg_u32 s24, 0
        s_cbranch_scc1 {S.name}_ax1
        s_mov_b64 exec, 1
        global_atomic_add v23, v22, s[98:99] sc1
        s_mov_b64 exec, -1
        {S.name}_ax1:
        """)
        S.stamp(1); S.stamp(2)
        for x in S.setup(): o(x)
        srd(o, S.sH, 6, WS_H_SIZE)
        for st in range(S.PW):
            L, post = S.dmaW(st)
            S.emit(L[:1] + ["s_nop 0"] + L[1:] + post)
        for x in S.setup2(): o(x)
        S.emit(["s_cmp_lg_u32 s24, 0", f"s_cbranch_scc1 {S.name}_sb_go", "global_load_dword v22, v23, s[98:99] sc1"] + S.spin("sb", 22, 23, 98, 32, "s_waitcnt vmcnt(0)") + ["s_barrier"])
        for g in S.pf():
            for x in g:
                o(x)
                if isinstance(x, str) and "m0" in x: o("s_nop 0")
        o(f"s_waitcnt vmcnt(0)\ns_branch {S.name}_p2")
    def phase2(self):
        o = self.o; S = self; C = S.C; opt = S.opt; name = S.name
        assert not S.G
        o(("wv", "KU"))
        o.label(f"{name}_p2")
        S.stamp(3)
        o(f"v_add_u32 v{C.vOR}, s{S.sCB}, v1")
        UW = [f"ds_write_b128 v{C.vOR}, {a(S.STG+32+16*q+4*j,4)} offset:{off+1024*j}" for q, off in enumerate([UOFF + 64, UOFF + USTR + 64]) for j in range(4)]
        GB, SL, OB, sC = S.GB, 56, 68, S.sC
        D = [GB + 8, GB + 9, GB + 10, GB + 6, GB + 7]
        def pm(d, hi, lo, sel): return f"v_perm_b32 v{d}, v{hi}, v{lo}, {sel}"
        L = []
        for c in range(2):
            for kb in range(4):
                ob = OB + 16 * c + 4 * kb
                if kb < 2: L += [pm(ob + j, GB + 2 * kb + 1, GB + 2 * kb, f"v{SL+q}") for j, q in enumerate((0, 2 + c, 1, 1))]
                elif kb == 2: L += [pm(ob + j, GB + 5, GB + 4, f"s{sC[q]}") for j, q in enumerate((3, 1, 4, 2) if c else (0, 1, 2, 2))]
                else: L += [pm(ob + j, D[4 - j], D[3 - j], f"v{SL+4+3*c+q}") for j, q in enumerate((0, 1, 0, 2))]
                L.append(f"ds_write_b128 v{C.vOR}, {v(ob,4)} offset:{KSTR*c+1024*kb}")
        for x in merge(L, UW, 0): o(x)
        C.addrs(); C.zeroK(); C.zeroU()
        o(f"v_mov_b32 v24, s{S.sHC}\nv_mov_b32 v25, 1")
        t = A()
        t(f"""
        s_and_b32 s36, s24, 1
        s_lshr_b32 s37, s24, 1
        s_lshl_b32 s38, s{S.sTT}, 3
        s_lshl_b32 s39, s36, 2
        s_add_u32 s38, s38, s39
        s_lshl_b32 s39, s37, 1
        s_add_u32 s35, s38, s39
        s_xor_b32 s38, s35, 2
        s_mul_i32 s39, s{S.sKH}, 56
        s_add_u32 s39, s39, s37
        s_mul_i32 s100, s35, 112
        s_mul_i32 s38, s38, 112
        s_add_u32 s100, s100, s39
        s_add_u32 s38, s38, s39
        s_lshl_b32 s100, s100, 10
        s_lshl_b32 s38, s38, 10
        v_add_u32 v{S.vH[0]}, s100, v1
        v_add_u32 v{S.vH[2]}, s38, v1
        v_add_u32 v{S.vH[1]}, {112*1024}, v{S.vH[0]}
        v_add_u32 v{S.vH[3]}, {112*1024}, v{S.vH[2]}
        v_lshrrev_b32 v16, 2, v0
        v_lshlrev_b32 v17, 8, v16
        v_and_b32 v16, 7, v16
        s_lshl_b32 s38, s{S.sKH}, 2
        v_xor_b32 v16, s38, v16
        v_lshl_add_u32 v17, v16, 5, v17
        v_and_b32 v16, 3, v0
        v_lshl_add_u32 v17, v16, 3, v17
        s_lshl_b32 s38, s37, 13
        v_add_u32 v{S.vA}, s38, v17
        s_lshr_b32 s38, s{S.sTT}, 1
        s_lshl_b32 s38, s38, 1
        s_add_u32 s38, s38, s{S.sKH}
        s_lshl_b32 s38, s38, 8
        s_add_u32 s38, s38, {HCNT}
        v_mov_b32 v23, s38
        """)
        for m in range(1, 8): t(f"v_xor_b32 v{S.vA+m}, {32*m}, v{S.vA}")
        for m in range(8): t(f"v_xor_b32 v{S.vA+8+m}, {32*m + 65536}, v{S.vA}")
        srd(t, S.sO, 96, 2048 * 2048)
        t(f"s_add_u32 s4, s6, {WS_G}\ns_addc_u32 s5, s7, 0"); srd(t, S.sG, 4, 2048 * 4)
        t(f"s_add_u32 s4, s6, {WS_X}\ns_addc_u32 s5, s7, 0"); srd(t, S.sX, 4, 256 * 32768)
        T = [x.strip() for x in t.l if x.strip()]
        fills = {}
        for i, x in enumerate(T): fills.setdefault((2 + i // 36, i % 36), []).append(x)
        def sig_h():
            o(f"""
            s_waitcnt vmcnt(0)
            s_barrier
            s_cmp_eq_u32 s{S.sHC}, 0
            s_cbranch_scc1 {name}_nh
            s_mov_b64 exec, 1
            """)
            o.raw("    global_atomic_add v24, v25, s[56:57] sc1")
            o(f"s_mov_b64 exec, -1\n{name}_nh:")
            S.stamp(1)
        cs = opt.get("csig", 1); cp = opt.get("cpoll", 6)
        fills.setdefault((cp - 1, 20), []).extend(["s_cmp_lg_u32 s24, 0", f"s_cbranch_scc1 {name}_nq", "!global_load_dword v22, v23, s[56:57] sc1", f"{name}_nq:"])
        HL = [S.ldH(st, nb) for st in range(S.PH) for nb in range(4)]
        for i, L in enumerate(HL):
            p = cp * 36 + (i * 2 if cp < 7 else i)
            fills.setdefault((p // 36, p % 36), []).extend(L)
            assert p < 8 * 36
        def poll_h():
            S.emit(["s_cmp_lg_u32 s24, 0", f"s_cbranch_scc1 {name}_sh_go"] + S.spin("sh", 22, 23, 56, 14, "s_waitcnt vmcnt(0)") + ["s_barrier"]); S.stamp(4)
        C.main(hooks={cs: sig_h, cp: poll_h}, fills=fills)
        S.gemm2()
    def gemm2(self):
        o = self.o; S = self; C = S.C; opt = S.opt; name = S.name
        ACC = 32
        def acc(mb, nb): return ACC + (((mb >> 2) * 2 + (nb >> 1)) * 8 + (nb & 1) * 4 + (mb & 3)) * 4
        def fa(st, i): return st * 32 + i * 4
        NF = 20
        steps = []
        for s_ in range(NF): steps.append(([(s_, mb) for mb in range(8)], [(mb, s_, mb, nb) for nb in range(4) for mb in range(8)]))
        for half in (1, 0):
            for p in range(4):
                fr = [(NF + 2 * p + e, 4 * half + m) for e in range(2) for m in range(4)]
                if p < 3: mf = [(4 * e + m, NF + 2 * p + e, 4 * half + m, nb) for e in range(2) for nb in range(4) for m in range(4)]
                else: mf = [(4 * e + m, NF + 2 * p + e, 4 * half + m, nb) for hn in (1, 0) for e in range(2) for nb in (2 * hn, 2 * hn + 1) for m in range(4)]
                steps.append((fr, mf))
        def reads(k):
            return [f"ds_read_b64_tr_b16 {a(fa(k & 1, i) + 2 * r2, 2)}, v{S.vA + 8 * ((st & 7) >> 2) + mb} offset:{(st & 3) * 16384 + r2 * 4096}"
                    for i, (st, mb) in enumerate(steps[k][0]) for r2 in range(2)]
        for x in reads(0): o(x)
        C.out()
        o(("tv", "AT"))
        S.stamp(5)
        XR = 160; PR = 208; ATF = 240; SEL = 24; OMG = [2, 3]; vG = [4, 5]
        vXW, vXR_, vFo, vFp, vAT, vOut, vCn = 6, 7, 8, 9, 10, 11, 16
        sDT = 35
        t = A()
        t(f"""
        s_lshl_b32 s36, s2, 2
        s_add_u32 s36, s36, s24
        s_lshl_b32 s37, s36, 5
        v_mov_b32 v{vFo}, s37
        s_xor_b32 s37, s37, {4 << 7}
        v_mov_b32 v{vFp}, s37
        s_lshl_b32 s100, s36, 13
        s_xor_b32 s101, s100, {4 << 15}
        s_lshl_b32 s36, s24, 13
        s_add_u32 s36, s36, {XOFF2}
        v_add_u32 v{vXW}, s36, v1
        v_xor_b32 v{vXR_}, {2 << 13}, v{vXW}
        s_lshl_b32 s{sDT}, s{S.sDP}, 1
        s_add_u32 s{sDT}, s{sDT}, s{S.sKH}
        s_lshl_b32 s36, s{sDT}, 8
        s_add_u32 s36, s36, 32768
        v_mov_b32 v23, s36
        s_lshr_b32 s36, s2, 4
        s_lshl_b32 s36, s36, 8
        s_add_u32 s36, s36, 32768
        v_mov_b32 v{vCn}, s36
        s_and_b32 s36, s24, 1
        s_lshl_b32 s36, s36, 7
        s_lshr_b32 s37, s24, 1
        s_lshl_b32 s37, s37, 6
        s_add_u32 s36, s36, s37
        s_lshl_b32 s37, s{S.sTT}, 8
        s_add_u32 s37, s37, s36
        s_lshl_b32 s38, s{sDT}, 18
        s_add_u32 s38, s38, s37
        s_lshl_b32 s39, s37, 1
        s_lshl_b32 s25, s37, 10
        s_lshl_b32 s36, s{sDT}, 7
        s_add_u32 s25, s25, s36
        s_add_u32 s26, s25, {16*2048}
        v_and_b32 v30, 15, v0
        v_lshrrev_b32 v31, 4, v0
        v_lshlrev_b32 v{vAT}, 12, v30
        v_lshl_add_u32 v{vAT}, v31, 4, v{vAT}
        v_lshlrev_b32 v17, 2, v30
        v_lshlrev_b32 v{vOut}, 11, v30
        v_and_b32 v22, 1, v31
        buffer_load_dword v{vG[0]}, v17, s[{S.sG}:{S.sG+3}], s39 offen sc1
        v_lshl_add_u32 v{vOut}, v22, 5, v{vOut}
        v_lshrrev_b32 v22, 1, v31
        buffer_load_dword v{vG[1]}, v17, s[{S.sG}:{S.sG+3}], s39 offen offset:64 sc1
        v_lshl_add_u32 v{vOut}, v22, 4, v{vOut}
        v_lshlrev_b32 v31, 3, v31
        v_sub_u32 v17, v30, v31
        """)
        SET = [x.strip() for x in t.l if x.strip()] + [("tv", "G")]
        SELL = [("wv", "G")]
        for nb in range(2):
            g = vG[nb]
            SELL += [x.strip() for x in f"""v_sub_f32 v{OMG[nb]}, 1.0, v{g}
            v_add_u32 v30, {16*nb}, v17
            v_cvt_pk_bf16_f32 v{OMG[nb]}, v{OMG[nb]}, v{OMG[nb]}
            v_and_b32 v31, 1, v30
            v_lshlrev_b32 v{OMG[nb]}, 16, v{OMG[nb]}
            v_cmp_eq_u32 vcc, 1, v31
            v_lshrrev_b32 v31, 16, v{g}
            v_and_b32 v{g}, 0xffff0000, v{g}
            v_ashrrev_i32 v30, 1, v30
            v_cndmask_b32 v{g}, v31, v{g}, vcc""".split("\n")]
            for q in range(4): SELL += [f"v_cmp_eq_u32 vcc, {q}, v30", "s_nop 1", f"v_cndmask_b32 v{XR+32+16+4*nb+q if False else 248+4*nb+q}, 0, v{g}, vcc"]
        SELR = 248
        ATR = 224
        seen = set()
        wq = [(st, j) for st in range(S.PW, 28) for j in range(4)]
        hn = S.PH * 4
        wrate = opt.get("wrate", 5)
        for k, (fr, mf) in enumerate(steps):
            if k in opt.get("kst", []): S.stamp(1 + opt["kst"].index(k), True)
            fill = {}
            def add(i, *x): fill.setdefault(i, []).extend(x)
            stages = sorted(set(x[1] for x in mf))
            if k < 24: o(("wv",) + tuple(f"H{s_}" for s_ in stages))
            o("s_waitcnt lgkmcnt(0)")
            bar = k < 23 or k == 24
            if k < 23: add(0, ("wv",) + tuple(f"W{s_}" for s_, _ in steps[k + 1][0]) + (("AT",) if k == 3 else ()))
            if bar: add(0, "s_barrier")
            rpos = [2 + (i * 3) // 2 for i in range(16)]
            if k == 24: rpos = [9 + i for i in range(16)]
            if k + 1 < 28:
                for i, x in enumerate(reads(k + 1)): add(rpos[i], x)
            wpos = [4, 10, 16, 22, 27, 29]
            n = 0
            while wq and n < wrate and wq[0][0] - 8 <= k:
                st, j = wq.pop(0)
                L, post = S.dmaW(st)
                if j == 0: add(wpos[n] - 3, L[0])
                add(wpos[n], L[1 + j])
                if j == 3: add(wpos[n], *post)
                n += 1
            for p in (7, 13, 15, 19, 23, 25, 31):
                if hn < 112:
                    st, nb = hn // 4, hn % 4
                    ok = st - 8 < k or (st - 8 == k and p >= 8 * nb + 7)
                    if ok and (p in (7, 15, 23, 31) or (st - 8 < k and p in opt.get("hx", (13, 25)))): add(p, *S.ldH(st, nb)); hn += 1
            if k == 3:
                add(1, "s_cmp_lg_u32 s24, 0", f"s_cbranch_scc1 {name}_na", "s_mov_b64 exec, 1", f"!global_atomic_add v{vCn}, v25, s[56:57] sc1", "s_mov_b64 exec, -1", f"{name}_na:")
            if k in (0, 1):
                part = SET[:len(SET) // 2] if k == 0 else SET[len(SET) // 2:]
                for i, x in enumerate(part): add(1 + i, x)
            if k in (20, 21):
                part = SELL[:len(SELL) // 2 + 1] if k == 20 else SELL[len(SELL) // 2 + 1:]
                for i, x in enumerate(part): add(1 + i, x)
            if k == 20: add(28, "global_load_dword v22, v23, s[56:57] sc1", ("tv", "ap"))
            if k == 22:
                add(1, *S.spin("st", 22, 23, 56, 16, ("wv", "ap")))
                for mb in range(4):
                    add(4 + 6 * mb, f"buffer_load_dwordx4 {v(ATR+4*mb,4)}, v{vAT}, s[{S.sAT}:{S.sAT+3}], s38 offen sc1", "s_add_u32 s38, s38, 65536")
                add(22, ("tv", "ATL"))
            if k in (23, 27):
                q = 3 if k == 23 else 1
                for i in range(8): add(22 + i, f"ds_write_b128 v{vXW}, {v(ACC+32*q+4*i,4)} offset:{1024*i}")
            if k == 24:
                for i in range(8): add(1 + i, f"ds_read_b128 {v(XR+4*i,4)}, v{vXR_} offset:{1024*i}", ("tl", f"x{i}"))
                for i in range(8):
                    b = ACC + 64 + 4 * i
                    add(12 + 2 * i, ("wl", f"x{i}"), *[f"v_add_f32 v{b+r}, v{b+r}, v{XR+4*i+r}" for r in range(2)])
                    add(13 + 2 * i, *[f"v_add_f32 v{b+r}, v{b+r}, v{XR+4*i+r}" for r in range(2, 4)])
                    add(14 + 2 * i, f"buffer_store_dwordx4 {v(b,4)}, v1, s[{S.sX}:{S.sX+3}], s100 offen offset:{1024*(i&3)} sc1")
                    if i == 3: add(14 + 2 * i, "s_add_u32 s100, s100, 4096")
            if k == 25: add(0, "s_barrier")
            fk, fp = opt.get("flagpos", (27, 8))
            if k == fk:
                add(fp, "s_waitcnt vmcnt(0)", "s_mov_b64 exec, 1", f"global_store_dword v{vFo}, v25, s[56:57] sc1", "s_mov_b64 exec, -1")
            if k == 27: add(30, f"global_load_dword v22, v{vFp}, s[56:57] sc1")
            for i, (fi, st, mb, nb) in enumerate(mf):
                c = v(acc(mb, nb), 4) if (mb, nb) in seen else "0"
                seen.add((mb, nb))
                o(f"v_mfma_f32_16x16x32_bf16 {v(acc(mb,nb),4)}, {a(fa(k&1,fi),4)}, {a(S.fh(st,nb),4)}, {c}")
                S.emit([x for x in fill.get(i, []) if not any(isinstance(x, str) and x.startswith(p) for p in opt.get("g2drop", []))])
            if k == 23: S.stamp(6)
        assert not wq and hn == 112
        S.stamp(7)
        o("s_waitcnt lgkmcnt(0)\ns_barrier")
        for i in range(8): o(f"ds_read_b128 {v(XR+4*i,4)}, v{vXR_} offset:{1024*i}"); o(("tl", f"y{i}"))
        S.emit(S.spin("sp", 22, vFp, 56, 1, "s_waitcnt vmcnt(0)"))
        P2 = 96
        for i in range(8):
            o(f"buffer_load_dwordx4 {v(P2+4*i,4)}, v1, s[{S.sX}:{S.sX+3}], s101 offen offset:{1024*(i&3)} sc1"); o(("tv", f"p{i}"))
            if i == 3: o("s_add_u32 s101, s101, 4096")
        S.stamp(8)
        o("s_waitcnt lgkmcnt(0)")
        for i in range(8):
            b = ACC + 4 * i
            for r in range(4): o(f"v_add_f32 v{b+r}, v{b+r}, v{XR+4*i+r}")
            for r in range(4): o(f"v_mul_f32 v{b+r}, v{OMG[i>>2]}, v{b+r}")
        o("s_nop 1")
        for nb in range(2):
            for mb in range(4):
                o(f"v_mfma_f32_16x16x32_bf16 {v(acc(mb,nb),4)}, {v(ATR+4*mb,4)}, {v(SELR+4*nb,4)}, {v(acc(mb,nb),4)}")
        o("s_nop 7")
        for nb in range(2):
            for pr in range(2):
                b = acc(2 * pr, nb); d = XR + 4 * (2 * nb + pr); i = 4 * nb + 2 * pr
                o(("wv", f"p{i+1}"))
                for r in range(8): o(f"v_fma_f32 v{b+r}, v{P2+4*i+r}, v{OMG[nb]}, v{b+r}")
                for q in range(4): o(f"v_cvt_pk_bf16_f32 v{d+q}, v{b+2*q}, v{b+2*q+1}")
                o(f"s_nop 1\nv_permlane16_swap_b32 v{d}, v{d+2}\nv_permlane16_swap_b32 v{d+1}, v{d+3}")
                o(f"buffer_store_dwordx4 {v(d,4)}, v{vOut}, s[{S.sO}:{S.sO+3}], s{25+nb} offen offset:{64*pr}")
        if S.st:
            o("s_waitcnt vmcnt(0)"); S.stamp(9)
            o(f"""
            s_add_u32 s4, s6, {WS_STAMP}
            s_addc_u32 s5, s7, 0
            s_lshl_b32 s36, s2, 2
            s_add_u32 s36, s36, s24
            s_lshl_b32 s36, s36, 6
            v_mov_b32 v1, s36
            s_waitcnt lgkmcnt(0)
            """)
            for i in range(12): o(f"v_mov_b32 v{4+i}, s{60+2*min(i,9)}")
            for i in range(3): o(f"global_store_dwordx4 v1, {v(4+4*i,4)}, s[4:5] offset:{16*i}")
            if "dstamp" in opt:
                o(f"s_cmp_lg_u32 s36, {opt['dstamp'] * 256}\ns_cbranch_scc1 {name}_nd\nv_mov_b32 v1, 16")
                for i in range(1, 12): o(f"v_subrev_u32 v{4+i}, s60, v{4+i}")
                for i in range(3): o(f"global_store_dwordx4 v1, {v(4+4*i,4)}, s[98:99] offset:{16*i}")
                o(f"{name}_nd:")

def fused(o, name="fused_kernel", stamp=False, opt=None):
    opt = dict(opt or {}); opt["stamp"] = False; opt["ct"] = 1
    return gemm1(o, name, False, opt, F=Fused(o, name, opt))
```

```python
from asmlib import *
from ssm import WS_UT
LOG2E = 0x3fb8aa3b
INV2PI = 0x3e22f983
RS = 512
BLK = 16 * RS
TOFF = 60 * RS + 16
XOFF = 4 * BLK
AWSTR = XOFF + 4096
GOFF = 4 * AWSTR

class Em:
    def __init__(self, o): self.o = o; self.n = 0; self.tags = {}
    def __call__(self, ins):
        if isinstance(ins, tuple):
            k = ins[0]
            if k == "tag": self.tags[ins[1]] = self.n
            elif k == "wait":
                c = self.n - self.tags[ins[1]]
                self.o(f"s_waitcnt lgkmcnt({min(c, 14)})")
            return
        self.o(ins)
        if ins.startswith("ds_"): self.n += 1

def merge(A_, B_, start=0, step=None):
    if not A_: return list(B_)
    out = []; nb = len(B_); na = len(A_) - start
    done = 0
    for i, x in enumerate(A_):
        out.append(x)
        if i >= start:
            want = min(nb, ((i - start + 1) * nb + na - 1) // na if step is None else int((i - start + 1) * step))
            while done < want: out.append(B_[done]); done += 1
    out += B_[done:]
    return out

def gather_setup(sB, GAd, SL, t1, t2, sC):
    vG01, vG2, vG3h, vG3l = GAd
    L = f"""v_sub_u32 v{t1}, 575, v0
    v_lshrrev_b32 v{t1}, 1, v{t1}
    v_lshl_add_u32 v{vG01}, v{t1}, 2, s{sB}
    v_lshlrev_b32 v{t1}, 2, v0
    v_sub_u32 v{t1}, 1020, v{t1}
    v_add_u32 v{vG2}, s{sB}, v{t1}
    v_cmp_gt_u32 vcc, 32, v0
    v_lshlrev_b32 v{t1}, 3, v0
    v_lshlrev_b32 v{t2}, 4, v0
    v_sub_u32 v{t1}, 764, v{t1}
    v_sub_u32 v{t2}, 1016, v{t2}
    v_cndmask_b32 v{t1}, v{t2}, v{t1}, vcc
    v_add_u32 v{vG3h}, s{sB}, v{t1}
    v_cndmask_b32 v{t2}, 12, 8, vcc
    v_sub_u32 v{vG3l}, v{vG3h}, v{t2}
    v_cndmask_b32 v{t1}, 0, -1, vcc
    v_cmp_gt_u32 vcc, 31, v0
    v_bfe_i32 v{t2}, v0, 0, 1""".split("\n")
    L = [x.strip() for x in L]
    def csel(d, m, tv, fv): return [f"v_and_b32 v{d}, {tv ^ fv}, v{m}", f"v_xor_b32 v{d}, {fv}, v{d}"]
    for k, tv in enumerate([0x01000302, 0x01000100]): L += csel(SL + 4 + k, t1, tv, 0x03020504)
    for k, tv in enumerate([0x03020504, 0x01000100, 0x05040504]): L += csel(SL + 7 + k, t1, tv, 0x05040706)
    L += [f"v_cndmask_b32 v{t1}, 0, -1, vcc"]
    L += csel(SL + 0, t2, 0x03020302, 0x05040504) + csel(SL + 1, t2, 0x01000100, 0x03020302)
    L += csel(SL + 2, t2, 0x01000100, 0x03020504) + csel(SL + 3, t2, 0x01000302, 0x05040504)
    L += csel(SL + 6, t1, 0x05040504, 0x03020504)
    for r, c in zip(sC, [0x03020504, 0x03020302, 0x01000100, 0x05040504, 0x01000302]): L.append(f"s_mov_b32 s{r}, {c}")
    return L

def aux_body(o, name, sJ, opt=None, stmod="", F=None):
    opt = opt or {}
    ct = opt.get("ct", 0); nks = 2 if ct else 8
    sWave, sBase, sCh, sKo, sKo2, sXo, sUo, sGWo = 24, 26, 27, 28, 29, 30, 31, 32
    sX, sK, sU, sGW, sG = 8, 12, 16, 20, 84
    o(f"""
    s_load_dwordx8 s[40:47], s[0:1], {KA['A_re']}
    s_load_dwordx8 s[48:55], s[0:1], {KA['C_re']}
    s_load_dwordx2 s[4:5], s[0:1], {KA['u']}
    s_load_dwordx4 s[88:91], s[0:1], {KA['wd']}
    s_load_dwordx2 s[6:7], s[0:1], {KA['ws']}
    v_lshrrev_b32 v1, 6, v0
    v_and_b32 v0, 63, v0
    s_lshl_b32 s25, s{sJ}, 5
    v_readfirstlane_b32 s{sWave}, v1
    v_lshlrev_b32 v10, 2, v0
    v_lshlrev_b32 v12, 4, v0
    s_lshl_b32 s36, s{sWave}, 3
    s_add_u32 s25, s25, s36
    s_mul_i32 s{sBase}, s{sWave}, {AWSTR}
    s_lshl_b32 s36, s25, 8
    s_lshl_b32 s37, s25, 1
    s_lshl_b32 s{sKo}, s25, {11 if ct else 13}
    s_add_u32 s{sKo2}, s{sKo}, 4096
    v_add_u32 v10, s36, v10
    v_and_b32 v11, 7, v0
    v_lshl_add_u32 v11, v11, 1, s37
    s_mov_b32 s{sCh}, 0
    s_mov_b32 s56, {LOG2E}
    s_mov_b32 s57, {INV2PI}
    """)
    vStW, vStR, vT0, vT1a, vT1b, vT2, vL0, vDs = 13, 14, 15, 16, 17, 18, 19, 1
    vXd, vXtr, vXg, vUst, vGWa, vPf = 20, 21, 22, 23, 24, 25
    g, j_, t1, t2 = 26, 27, 28, 29
    SW = 30
    vStR2, vG01, vG2, vG3h, vG3l = 38, 39, 40, 41, 42
    RD = [vStR, vStR2, 43, 59]
    SL = 44
    vDt, vDtL, vDtP = 54, 55, 56
    GWR = 60; XR = 72; XU = 88
    KA_ = 92
    GB = 104
    OB = 116
    PK = [136, 140, 144, 148]
    PFD = 57
    POOL = list(range(152, 256, 4))
    aFR = 0; aG = 128; aTR = 144
    sDt, sDtL, sDtP, sDs = 58, 59, 82, 83
    sSel = [33 + 0]
    ldp = [f"global_load_dword v{2+k}, v10, s[{40+2*k}:{41+2*k}]" for k in range(6)]
    o(f"""
    v_lshrrev_b32 v{t1}, 2, v0
    v_lshlrev_b32 v{vXd}, 11, v{t1}
    v_and_b32 v{t2}, 3, v0
    v_lshl_add_u32 v{vXd}, v{t2}, 4, v{vXd}
    s_lshl_b32 s{sXo}, s{sJ}, 17
    s_lshl_b32 s36, s{sWave}, 9
    s_add_u32 s{sXo}, s{sXo}, s36
    s_mov_b32 s{sGWo}, s36
    v_lshrrev_b32 v{g}, 4, v0
    v_and_b32 v{j_}, 15, v0
    v_lshlrev_b32 v{vGWa}, 4, v{g}
    s_waitcnt lgkmcnt(0)
    """)
    o("global_load_ushort v8, v11, s[52:53]\nglobal_load_ushort v9, v11, s[54:55]")
    for x in ldp: o(x)
    srd(o, sX, 4, 2048 * 2048)
    srd(o, sGW, 90, 2048)
    def slice_ld():
        L = [f"s_add_u32 m0, s{sBase}, {XOFF}", f"s_add_u32 s33, s{sXo}, {16*2048 - 1024}"]
        L.append(f"buffer_load_dwordx4 v{vXd}, s[{sX}:{sX+3}], s{sXo} offen lds")
        L.append(f"s_add_u32 s34, s{sXo}, {32*2048 - 2048}")
        L.append(f"buffer_load_dwordx4 v{vXd}, s[{sX}:{sX+3}], s33 offen offset:1024 lds")
        L.append(f"s_add_u32 s33, s{sXo}, {48*2048 - 3072}")
        L.append(f"buffer_load_dwordx4 v{vXd}, s[{sX}:{sX+3}], s34 offen offset:2048 lds")
        L.append(f"s_add_u32 s{sXo}, s{sXo}, 64")
        L.append(f"buffer_load_dwordx4 v{vXd}, s[{sX}:{sX+3}], s33 offen offset:3072 lds")
        L.append(f"buffer_load_dwordx4 {v(GWR,4)}, v{vGWa}, s[{sGW}:{sGW+3}], s{sGWo} offen")
        L.append(f"s_add_u32 s{sGWo}, s{sGWo}, 64")
        return L
    for x in slice_ld(): o(x)
    o(f"s_add_u32 s4, s6, {WS_K}\ns_addc_u32 s5, s7, 0"); srd(o, sK, 4, 1024 * 8192)
    o(f"s_add_u32 s4, s6, {WS_UT}\ns_addc_u32 s5, s7, 0"); srd(o, sU, 4, 1024 * 4096)
    o(f"s_add_u32 s4, s6, {WS_G}\ns_addc_u32 s5, s7, 0"); srd(o, sG, 4, 2048 * 4)
    o(f"""
    s_add_u32 s4, s6, {WS_FLAG}
    s_addc_u32 s5, s7, 0
    s_lshl_b32 s36, s{sJ}, 2
    s_add_u32 s36, s36, s{sWave}
    s_lshl_b32 s37, s36, 10
    v_add_u32 v{t1}, s37, v12
    v_mov_b32 v{XU}, 0
    v_mov_b32 v{XU+1}, 0
    v_mov_b32 v{XU+2}, 0
    v_mov_b32 v{XU+3}, 0
    global_store_dwordx4 v{t1}, {v(XU,4)}, s[4:5] {stmod}
    s_mul_i32 s37, s36, {56*1024}
    v_lshlrev_b32 v{vPf}, 7, v0
    s_add_u32 s88, s88, s37
    s_addc_u32 s89, s89, 0
    s_and_b32 s89, s89, 0xffff
    s_mov_b32 s90, {56*1024}
    s_mov_b32 s91, 0x20000
    s_movk_i32 s95, 0x2000
    """)
    o(f"""
    v_lshlrev_b32 v{t1}, 3, v0
    v_add_u32 v{vStW}, s{sBase}, v{t1}
    v_and_b32 v{t2}, 7, v{j_}
    v_lshlrev_b32 v{t2}, 1, v{t2}
    v_xor_b32 v{t2}, v{t2}, v{g}
    v_lshlrev_b32 v{t1}, 9, v{j_}
    v_lshl_add_u32 v{t1}, v{t2}, 4, v{t1}
    v_add_u32 v{vStR}, s{sBase}, v{t1}
    v_xor_b32 v{RD[1]}, 64, v{vStR}
    v_xor_b32 v{RD[2]}, 128, v{vStR}
    v_xor_b32 v{RD[3]}, 192, v{vStR}
    s_add_u32 s39, s{sBase}, {TOFF}
    v_lshrrev_b32 v{t1}, 1, v{g}
    v_lshlrev_b32 v{t1}, 8, v{t1}
    v_and_b32 v{t2}, 1, v{g}
    v_lshl_add_u32 v{t1}, v{t2}, 3, v{t1}
    v_lshl_add_u32 v{t1}, v{j_}, 4, v{t1}
    v_add_u32 v{vT0}, s39, v{t1}
    v_lshlrev_b32 v{t1}, 7, v{g}
    v_add_u32 v{t1}, s39, v{t1}
    v_cmp_gt_u32 vcc, 2, v{g}
    v_lshlrev_b32 v{t2}, 2, v{j_}
    v_lshlrev_b32 v{vT1b}, 3, v{j_}
    v_cndmask_b32 v{t2}, v{t2}, v{vT1b}, vcc
    v_add_u32 v{vT1a}, v{t1}, v{t2}
    v_add_u32 v{vT1a}, 512, v{vT1a}
    v_cndmask_b32 v{t2}, 64, 4, vcc
    v_add_u32 v{vT1b}, v{vT1a}, v{t2}
    v_and_b32 v{t2}, 1, v{g}
    v_lshlrev_b32 v{t2}, 8, v{t2}
    v_lshl_add_u32 v{vT2}, v{j_}, 1, v{t2}
    v_lshrrev_b32 v{t2}, 1, v{g}
    v_lshl_add_u32 v{vT2}, v{t2}, 5, v{vT2}
    v_add_u32 v{vT2}, s39, v{vT2}
    v_add_u32 v{vT2}, 1024, v{vT2}
    v_cmp_eq_u32 vcc, 0, v0
    v_mov_b32 v{t1}, s{sBase}
    v_mov_b32 v{t2}, 0
    v_cndmask_b32 v{vL0}, 0, -1, vcc
    ds_write_b32 v{t1}, v{t2} offset:{TOFF-4}
    v_mov_b32 v{PK[0]}, 0x3f80
    v_mov_b32 v{PK[0]+1}, 0x3f80
    ds_write_b64 v{vStW}, {v(PK[0],2)} offset:{BLK}
    """)
    o(f"""
    s_add_u32 s36, s{sBase}, {XOFF}
    v_bfe_u32 v{t1}, v0, 2, 2
    v_lshl_add_u32 v{t1}, v{g}, 3, v{t1}
    v_lshlrev_b32 v{t1}, 6, v{t1}
    v_and_b32 v{t2}, 3, v0
    v_lshl_add_u32 v{t1}, v{t2}, 3, v{t1}
    v_add_u32 v{vXtr}, s36, v{t1}
    v_lshl_add_u32 v{t1}, v{j_}, 6, v{vGWa}
    v_add_u32 v{vXg}, s36, v{t1}
    v_lshl_add_u32 v{vUst}, v{j_}, 12, v{vGWa}
    s_lshl_b32 s{sUo}, s{sWave}, 20
    s_lshl_b32 s36, s{sJ}, 7
    s_add_u32 s{sUo}, s{sUo}, s36
    """)
    if opt.get("pf", 0) == 3:
        o(f"""
        s_getpc_b64 s[88:89]
        {name}_pc:
        s_sub_u32 s88, s88, {name}_pc-{name}_loop
        s_subb_u32 s89, s89, 0
        s_lshr_b32 s36, s{sJ}, 3
        s_lshl_b32 s36, s36, 2
        s_add_u32 s36, s36, s{sWave}
        s_lshl_b32 s36, s36, 12
        v_lshl_add_u32 v{t1}, v0, 6, s36
        v_min_u32 v{t1}, {name}_aux-{name}_loop, v{t1}
        v_mov_b32 v{GB+1}, s89
        v_add_co_u32 v{GB}, vcc, s88, v{t1}
        v_addc_co_u32 v{GB+1}, vcc, 0, v{GB+1}, vcc
        """)
    for k in range(8): o(f"v_xor_b32 v{SW+k}, {32*k}, v{vStW}")
    for r in range(16): o(f"v_accvgpr_write_b32 a{aG+r}, 0")
    sC = [35, 38, 80, 81, 94]
    if ct: o(f"v_add_u32 v{vG01}, s{sBase}, v12")
    else:
        for x in gather_setup(39, [vG01, vG2, vG3h, vG3l], SL, t1, t2, sC): o(x)
    o(f"""
    s_waitcnt vmcnt({6 + 5 + 1})
    v_lshlrev_b32 v{vDt}, 16, v8
    v_mul_f32 v{vDt}, s56, v{vDt}
    v_exp_f32 v{vDt}, v{vDt}
    v_lshlrev_b32 v9, 16, v9
    v_cvt_pk_bf16_f32 v{vDt}, v{vDt}, v{vDt}
    v_lshlrev_b32 v{vDt}, 16, v{vDt}
    v_mul_f32 v{vDtL}, s56, v{vDt}
    v_mul_f32 v{vDtP}, s57, v{vDt}
    """)

    def gen_head():
        L = []; free = list(POOL); R = {}
        def al(n): R[n] = free.pop(0); return R[n]
        Z = al("Z"); Bv = al("B"); Cv = al("C")
        L += f"""v_readlane_b32 s{sDtL}, v{vDtL}, s{sCh}
        v_readlane_b32 s{sDtP}, v{vDtP}, s{sCh}
        v_readlane_b32 s{sDt}, v{vDt}, s{sCh}
        v_readlane_b32 s{sDs}, v9, s{sCh}
        v_lshlrev_b32 v{Z}, 16, v2
        v_and_b32 v{Z+2}, 0xffff0000, v2
        v_lshlrev_b32 v{Z+1}, 16, v3
        v_and_b32 v{Z+3}, 0xffff0000, v3
        v_lshlrev_b32 v{Bv}, 16, v4
        v_and_b32 v{Bv+2}, 0xffff0000, v4
        v_mul_f32 v{Z}, s{sDtL}, v{Z}
        v_mul_f32 v{Z+1}, s{sDtP}, v{Z+1}
        v_mul_f32 v{Z+2}, s{sDtL}, v{Z+2}
        v_mul_f32 v{Z+3}, s{sDtP}, v{Z+3}
        v_lshlrev_b32 v{Bv+1}, 16, v5
        v_and_b32 v{Bv+3}, 0xffff0000, v5
        v_lshlrev_b32 v{Cv}, 16, v6
        v_and_b32 v{Cv+2}, 0xffff0000, v6
        v_lshlrev_b32 v{Cv+1}, 16, v7
        v_and_b32 v{Cv+3}, 0xffff0000, v7
        s_cmp_lt_u32 s{sCh}, 7
        s_cselect_b32 s36, 256, 0
        v_add_u32 v10, s36, v10
        v_mul_f32 v{Bv}, s{sDt}, v{Bv}
        v_mul_f32 v{Bv+1}, s{sDt}, v{Bv+1}
        v_mul_f32 v{Bv+2}, s{sDt}, v{Bv+2}
        v_mul_f32 v{Bv+3}, s{sDt}, v{Bv+3}
        v_and_b32 v{vDs}, s{sDs}, v{vL0}""".split("\n")
        L = [x.strip() for x in L]
        D = []
        ds = [("G8", 3), ("E1", 0), ("H1", 7), ("E1024", 10)]
        for n, e in ds: al(n); al(n + "t")
        for n, e in ds:
            if e:
                for h in range(4): D.append(f"v_ldexp_f32 v{R[n+'t']+h}, v{Z+h}, {e}")
        for n, e in ds:
            for h in (0, 2): D.append(f"v_fract_f32 v{R[n+'t']+h+1}, v{(R[n+'t'] if e else Z)+h+1}")
        for n, e in ds:
            for h in (0, 2): D.append(f"v_exp_f32 v{R[n+'t']+h}, v{(R[n+'t'] if e else Z)+h}")
        for n, e in ds:
            for h in (0, 2): D += [f"v_cos_f32 v{R[n]+h}, v{R[n+'t']+h+1}", f"v_sin_f32 v{R[n]+h+1}, v{R[n+'t']+h+1}"]
        L += merge(D, ldp, 0, 0.5)
        W = al("Y0")
        for h in (0, 2): L.append(f"v_pk_mul_f32 {v(W+h,2)}, {v(Bv+h,2)}, {v(Cv+h,2)} op_sel:[0,0] op_sel_hi:[1,0] neg_hi:[1,0]")
        for n, e in ds[:2]:
            for h in (0, 2): L.append(f"v_pk_mul_f32 {v(R[n]+h,2)}, {v(R[n]+h,2)}, {v(R[n+'t']+h,2)} op_sel_hi:[1,0]" + (" neg_hi:[1,0]" if n == "G8" else ""))
        for h in (0, 2): L.append(f"v_pk_fma_f32 {v(W+h,2)}, {v(Bv+h,2)}, {v(Cv+h,2)}, {v(W+h,2)} op_sel:[1,1,0] op_sel_hi:[0,1,1] neg_lo:[1,0,0] neg_hi:[1,0,0]")
        for n, e in ds[2:]:
            for h in (0, 2): L.append(f"v_pk_mul_f32 {v(R[n]+h,2)}, {v(R[n]+h,2)}, {v(R[n+'t']+h,2)} op_sel_hi:[1,0]")
        for n in ["Z", "B", "C"] + [n + "t" for n, e in ds]: free.append(R.pop(n))
        return L, R, free
    row = {f"Y{k}": k for k in range(16)}
    row.update({f"E{e}": 16 + e for e in range(1, 8)}); row.update({f"u{e}": 24 + e for e in range(1, 8)}); row["H1"] = 24
    row.update({"H2": 32, "H3": 36, "H4": 40, "H5": 42, "H6": 44, "H7": 46, "E1024": 48, "w8": 52})
    row.update({f"b{h}{e}": 32 + 4 * (h - 2) + e for h in (2, 3) for e in (1, 2, 3)}); row.update({f"c{h}": 41 + 2 * (h - 4) for h in (4, 5, 6, 7)})
    row.update({f"w{h}": 48 + (h >> 1) + 8 * (h & 1) for h in range(1, 8)})
    N_ = None
    ops = [("G16", "G8", "G8", N_), ("E2", "E1", "E1", N_), ("G32", "G16", "G16", N_), ("H2", "H1", "H1", N_), ("G64", "G32", "G32", N_),
           ("u1", "E1", "H1", "E1"), ("Y1", "Y0", "G8", N_), ("Y8", "Y0", "G64", "Y0"), ("E4", "E2", "E2", N_), ("u2", "E2", "H1", "E2"),
           ("Y2", "Y0", "G16", N_), ("Y9", "Y1", "G64", "Y1"), ("Y4", "Y0", "G32", N_), ("Y10", "Y2", "G64", "Y2"), ("Y3", "Y1", "G16", N_),
           ("Y12", "Y4", "G64", "Y4"), ("Y5", "Y1", "G32", N_), ("Y11", "Y3", "G64", "Y3"), ("Y6", "Y2", "G32", N_), ("Y13", "Y5", "G64", "Y5"),
           ("Y7", "Y3", "G32", N_), ("Y14", "Y6", "G64", "Y6"), ("E3", "E2", "E1", N_), ("Y15", "Y7", "G64", "Y7"), ("E5", "E4", "E1", N_),
           ("u4", "E4", "H1", "E4"), ("E6", "E4", "E2", N_), ("u3", "E3", "H1", "E3"), ("E7", "E4", "E3", N_), ("u5", "E5", "H1", "E5"),
           ("H3", "H2", "H1", N_), ("u6", "E6", "H1", "E6"), ("=H1", N_, N_, ""), ("u7", "E7", "H1", "E7"), ("b21", "H2", "E2", N_), ("H4", "H2", "H2", "H2"),
           ("w8", "E1024", "E1024", ""), ("c4", "H4", "E4", "b21"), ("H5", "H4", "H1", N_), ("H6", "H4", "H2", "H3"), ("b22", "H2", "E4", "H5"),
           ("c5", "H5", "E4", N_), ("b23", "H2", "E6", "c5"), ("b31", "H3", "E2", N_), ("c6", "H6", "E4", "b31"), ("H7", "H4", "H3", N_),
           ("b32", "H3", "E4", "H7"), ("c7", "H7", "E4", N_), ("b33", "H3", "E6", "c7"), ("w2", "E1024", "H2", N_), ("w1", "E1024", "H1", "E1024"),
           ("w3", "E1024", "H3", "w2"), ("w4", "E1024", "H4", N_), ("w5", "E1024", "H5", "w4"), ("w6", "E1024", "H6", N_), ("w7", "E1024", "H7", "w6")]
    wr = [x[0].lstrip("=") for x in ops if x[3] is not None] + [x[3] for x in ops if x[3]]
    assert sorted(wr) == sorted(row), set(row) ^ set(wr)
    pos = {x[0]: i for i, x in enumerate(ops)}
    for i, x in enumerate(ops):
        for s_ in x[1:3]:
            if s_ in pos: assert pos[s_] <= i - 2, x
        if x[3]: assert pos.get(x[3], -1) < i and (row[x[3]] - row[x[0]]) % 8 == 0, x
    last = {}
    for i, x in enumerate(ops):
        nm = x[0].lstrip("=")
        last[nm] = max(last.get(nm, -1), i + 2 if x[3] is not None else i + 1)
        if x[3]: last[x[3]] = max(last.get(x[3], -1), i + 1)
        for s_ in x[1:3]:
            if s_: last[s_] = max(last.get(s_, -1), i + 1)
    def gen_body(R, free):
        L = []; N = len(ops); pkc = 0; pkof = {}; pend = []; rdat = {"Y15": 0, "u7": 1, "b33": 2}
        for k in range(N + 3):
            if k < N and ops[k][1]:
                n, a_, b_, _ = ops[k]; R[n] = free.pop(0); d = R[n]
                for h in (0, 2): L.append(f"v_pk_mul_f32 {v(d+h,2)}, {v(R[a_]+h,2)}, {v(R[b_]+h,2)} op_sel:[0,0] op_sel_hi:[1,0]")
            if 0 <= k - 3 < N and ops[k-3][3] is not None:
                r0 = row[ops[k-3][0].lstrip("=")]; p = pkof[k-3]
                if ops[k-3][3]: L.append(f"ds_write2st64_b64 v{SW+(r0&7)}, {v(p,2)}, {v(p+2,2)} offset0:{r0} offset1:{row[ops[k-3][3]]}")
                else: L.append(f"ds_write_b64 v{SW+(r0&7)}, {v(p,2)} offset:{r0*RS}")
            if 0 <= k - 1 < N and ops[k-1][1]:
                n, a_, b_, _ = ops[k-1]; d = R[n]
                for h in (0, 2): L.append(f"v_pk_fma_f32 {v(d+h,2)}, {v(R[a_]+h,2)}, {v(R[b_]+h,2)}, {v(d+h,2)} op_sel:[1,1,0] op_sel_hi:[0,1,1] neg_lo:[1,0,0]")
            if 0 <= k - 1 < N and ops[k-1][3] is not None:
                p = PK[pkc & 3]; pkc += 1; pkof[k-1] = p
                if ops[k-1][3]:
                    x = R[ops[k-1][3]]
                    L += [f"v_cvt_pk_bf16_f32 v{p+2}, v{x}, v{x+1}", f"v_cvt_pk_bf16_f32 v{p+3}, v{x+2}, v{x+3}"]
            if 0 <= k - 2 < N and ops[k-2][3] is not None:
                x = R[ops[k-2][0].lstrip("=")]; p = pkof[k-2]
                L += [f"v_cvt_pk_bf16_f32 v{p}, v{x}, v{x+1}", f"v_cvt_pk_bf16_f32 v{p+1}, v{x+2}, v{x+3}"]
            for n in [n for n in R if last[n] == k]: free.append(R.pop(n))
            if 0 <= k - 3 < N and ops[k-3][0] in rdat: pend += rd_blk(rdat[ops[k-3][0]])
            for _ in range(2 if k > N - 8 else 1):
                if pend: L.append(pend.pop(0))
        L += pend + [("tag", "fr2")]
        return L
    def rd_blk(blk): return [f"ds_read_b128 {a(aFR+32*blk+4*ks,4)}, v{RD[ks&3]} offset:{blk*BLK + 256*(ks>>2)}" for ks in range(8)]
    def frag_reads():
        L = rd_blk(3) + [("tag", "fr")]
        L += [f"v_mov_b32 v{KA_}, v{vDs}", f"v_mov_b32 v{KA_+1}, 0", f"v_mov_b32 v{KA_+2}, 0", f"v_mov_b32 v{KA_+3}, 0"]
        return L
    def tail_mfma():
        L = []
        def mf(blk, ks):
            c = v(KA_+4*blk, 4) if (ks or blk == 0) else "0"
            return f"v_mfma_f32_16x16x32_bf16 {v(KA_+4*blk,4)}, {a(aFR+32*(blk+1)+4*ks,4)}, {a(aFR+4*ks,4)}, {c}"
        L.append(("wait", "fr2"))
        for ks in range(4): L += [mf(0, ks), mf(1, ks)]
        L.append(("wait", "fr"))
        for ks in range(4): L += [mf(2, 2 * ks), mf(0, 4 + ks), mf(2, 2 * ks + 1), mf(1, 4 + ks)]
        return L
    def tail_rest():
        L = [f"v_cvt_pk_bf16_f32 v{KA_+2*q}, v{KA_+2*q}, v{KA_+2*q+1}" for q in (2, 3, 4, 5)]
        L += [f"v_cvt_pk_bf16_f32 v{KA_}, v{KA_}, v{KA_+1}", f"v_cvt_pk_bf16_f32 v{KA_+1}, v{KA_+2}, v{KA_+3}"]
        L += [f"ds_write_b32 v{vT1a}, v{KA_+4}", f"ds_write_b32 v{vT1b}, v{KA_+6}",
              f"ds_write_b16 v{vT2}, v{KA_+8}", f"ds_write_b16_d16_hi v{vT2}, v{KA_+8} offset:64",
              f"ds_write_b16 v{vT2}, v{KA_+10} offset:128", f"ds_write_b16_d16_hi v{vT2}, v{KA_+10} offset:192",
              f"ds_write_b64 v{vT0}, {v(KA_,2)}"]
        if ct:
            L += [f"ds_read_b128 {v(OB,4)}, v{vG01} offset:{TOFF-16}", f"ds_read_b128 {v(OB+4,4)}, v{vG01} offset:{TOFF-16+1024}", ("tag", "g"), ("tag", "pad"), ("tag", "pad"), ("wait", "g")]
            L += [f"buffer_store_dwordx4 {v(OB+4*k,4)}, v12, s[{sK}:{sK+3}], s{sKo} offen offset:{1024*k} {stmod}" for k in range(2)]
            return L + [f"s_add_u32 s{sKo}, s{sKo}, 2048"]
        L += [f"ds_read2_b32 {v(GB,2)}, v{vG01} offset0:32 offset1:33", f"ds_read2_b32 {v(GB+2,2)}, v{vG01} offset0:0 offset1:1",
              f"ds_read2_b32 {v(GB+4,2)}, v{vG2} offset0:0 offset1:1", f"ds_read2_b32 {v(GB+10,2)}, v{vG3h} offset0:0 offset1:1",
              f"ds_read2_b32 {v(GB+8,2)}, v{vG3l} offset0:1 offset1:2", f"ds_read_b32 v{GB+7}, v{vG3l}", ("tag", "g"), ("tag", "pad"), ("tag", "pad"), ("wait", "g")]
        def st(ob, c, kb): return f"buffer_store_dwordx4 {v(ob,4)}, v12, s[{sK}:{sK+3}], s{sKo2 if c else sKo} offen offset:{1024*kb} {stmod}"
        def pm(d, e, sel): return f"v_perm_b32 v{d}, v{e+1}, v{e}, {sel}"
        for kb in (0, 1):
            L += [pm(OB+4*kb+j, GB+2*kb, f"v{SL+q}") for j, q in enumerate((0, 2, 1, 1))] + [st(OB+4*kb, 0, kb)]
        L += [pm(OB+8+j, GB+4, f"s{sC[q]}") for j, q in enumerate((0, 1, 2, 2))] + [st(OB+8, 0, 2)]
        L += [pm(OB+12+j, GB+10-j, f"v{SL+4+q}") for j, q in enumerate((0, 1, 0, 2))] + [st(OB+12, 0, 3)]
        L += [pm(OB+16+j, GB+10-j, f"v{SL+7+q}") for j, q in enumerate((0, 1, 0, 2))] + [st(OB+16, 1, 3)]
        for kb in (0, 1): L += [pm(OB+4*kb+1, GB+2*kb, f"v{SL+3}"), st(OB+4*kb, 1, kb)]
        L += [pm(OB+8, GB+4, f"s{sC[3]}"), pm(OB+10, GB+4, f"s{sC[4]}"), st(OB+8, 1, 2)]
        L += [f"s_add_u32 s{sKo}, s{sKo}, 8192", f"s_add_u32 s{sKo2}, s{sKo2}, 8192"]
        return L
    def slice_work(more):
        L = []
        for blk in range(2):
            for th in range(2):
                for r2 in range(2):
                    L.append(f"ds_read_b64_tr_b16 {a(aTR+(blk*2+th)*4+2*r2,2)}, v{vXtr} offset:{blk*32 + th*2048 + r2*256}")
        L.append(("tag", "tr"))
        for q in range(4): L.append(f"ds_read_b128 {v(XR+4*q,4)}, v{vXg} offset:{1024*q}")
        L.append(("tag", "xr"))
        L += [("tag", "pad"), ("tag", "pad"), ("wait", "xr")]
        for q in range(4): L.append(f"v_mfma_f32_16x16x32_bf16 {a(aG+4*q,4)}, {v(XR+4*q,4)}, {v(GWR,4)}, {a(aG+4*q,4)}")
        for blk in range(2):
            for th in range(2):
                L.append(f"buffer_store_dwordx4 {a(aTR+(blk*2+th)*4,4)}, v{vUst}, s[{sU}:{sU+3}], s{sUo} offen offset:{64*th} {stmod}")
            L.append(f"s_add_u32 s{sUo}, s{sUo}, {16*4096}")
        if more: L += slice_ld()
        return L
    def pf():
        if not opt.get("pf", 0): return []
        if opt["pf"] == 3: return [f"global_load_dword v{PFD}, {v(GB,2)}, off"]
        if opt["pf"] == 2:
            return [f"buffer_load_dword v{PFD}, v{vPf}, s[88:91], 0 offen", f"buffer_load_dword v{PFD+1}, v{vPf}, s[88:91], 0 offen offset:64", f"v_add_u32 v{vPf}, 8192, v{vPf}"]
        return [f"buffer_load_dword v{PFD}, v{vPf}, s[88:91], 0 offen", f"buffer_load_dword v{PFD+1}, v{vPf}, s[88:91], s95 offen", f"v_add_u32 v{vPf}, 16384, v{vPf}"]
    em = Em(o)
    o("s_waitcnt vmcnt(6)")
    Hd, R, free = gen_head()
    for x in Hd + gen_body(R, free) + frag_reads(): em(x)
    o(f"s_mov_b32 s{sCh}, 1\ns_waitcnt vmcnt(0)")
    if F: F.aux_zero()
    if opt.get("stamp"):
        from gemm1b import stamp_mid1, stamp_mid2
        stamp_mid1(o)
    o.label(f"{name}_aloop")
    npf = [0, 2, 2, 1][opt.get("pf", 0)]
    o(f"s_waitcnt vmcnt({nks + 4 + 5 + npf})")
    Hd, R, free = gen_head()
    S = merge(Hd[:-14], tail_mfma(), 4) + Hd[-14:]
    B = gen_body(R, free)
    T = tail_rest() + [f"s_waitcnt vmcnt({6 + nks + npf})"] + slice_work(True) + pf()
    S += merge(B, T, 0)
    S += frag_reads() + [f"s_add_u32 s{sCh}, s{sCh}, 1", f"s_cmp_lt_u32 s{sCh}, 8", f"s_cbranch_scc1 {name}_aloop"]
    def keep(x):
        if isinstance(x, tuple): return not (x[0] == 'wait' and 'wait' in opt.get('ax_drop', []))
        for pat in opt.get("ax_drop", []):
            if x.startswith(pat): return False
        return True
    for x in S:
        if keep(x): em(x)
    if opt.get("stamp"): stamp_mid2(o)
    for x in tail_mfma() + ["s_nop 7"] + tail_rest() + [f"s_waitcnt vmcnt({nks + npf})"] + slice_work(False): em(x)
    if F: F.aux_pre()
    o(f"""
    s_nop 7
    s_lshl_b32 s36, s{sWave}, 8
    s_add_u32 s36, s36, {GOFF}
    v_add_u32 v{t1}, s36, v{vGWa}
    """)
    for q in range(4): o(f"ds_write_b128 v{t1}, {a(aG+4*q,4)} offset:{64*q}")
    o(f"""
    v_lshlrev_b32 v{t2}, 2, v0
    v_add_u32 v{t1}, {GOFF}, v{t2}
    s_waitcnt lgkmcnt(0)
    s_barrier
    ds_read_b32 v{XU}, v{t1}
    ds_read_b32 v{XU+1}, v{t1} offset:256
    ds_read_b32 v{XU+2}, v{t1} offset:512
    ds_read_b32 v{XU+3}, v{t1} offset:768
    s_mov_b32 s38, 0xbfb8aa3b
    s_lshl_b32 s36, s{sJ}, 8
    s_waitcnt lgkmcnt(0)
    v_add_f32 v{XU}, v{XU}, v{XU+1}
    v_add_f32 v{XU+2}, v{XU+2}, v{XU+3}
    v_add_f32 v{XU}, v{XU}, v{XU+2}
    v_cvt_pk_bf16_f32 v{XU}, v{XU}, v{XU}
    v_lshlrev_b32 v{XU}, 16, v{XU}
    v_mul_f32 v{XU}, s38, v{XU}
    v_exp_f32 v{XU}, v{XU}
    s_nop 0
    v_add_f32 v{XU}, 1.0, v{XU}
    v_rcp_f32 v{XU}, v{XU}
    s_nop 0
    v_cvt_pk_bf16_f32 v{XU}, v{XU}, v{XU}
    v_lshlrev_b32 v{XU}, 16, v{XU}
    buffer_store_dword v{XU}, v{t2}, s[{sG}:{sG+3}], s36 offen {stmod}
    """)
```

```python
from asmlib import *
from gemm1b import gemm1
from conv import Conv, CWSTR, KSTR, UOFF, USTR
from aux import merge, gather_setup
COFF = 163840 - 4 * CWSTR
XOFF2 = 131072
HCNT = 32768 + 4096

class Fused:
    def __init__(self, o, name, opt):
        self.o = o; self.name = name; self.opt = opt; self.st = opt.get("fstamp", False)
        self.sWs, self.sK, self.sU, self.sH, self.sAT, self.sO, self.sG, self.sX = 8, 12, 16, 20, 84, 88, 40, 52
        (self.sTT, self.sDP, self.sKH, self.sD, self.sCB, self.sM0, self.sWoff, self.sHoff) = range(27, 35)
        self.sSW = [44, 45]; self.sSH = [46, 47]; self.sHC = 51
        self.vWd = [18, 19, 20, 21]; self.vH = [12, 13, 14, 15]; self.vA = 192
        self.STG = 192
        self.C = Conv(o, self.sD, self.sCB, self.sU, self.sK, self.sAT, 1, 2, 32, ldmod="sc1", stmod="sc1", tmp=(48, 49, 50))
        self.GA = 40; self.SL = 10; self.GB = 44; self.sC = [25, 26, 37, 58, 59]
        self.PW = 5; self.NF = 20
    def stamp(self, i, force=False):
        if self.opt.get("kst") and 0 < i < 9 and not force: return
        if i == 0:
            self.o(f"s_load_dwordx2 s[92:93], s[0:1], {KA['wd']}\ns_load_dwordx4 s[96:99], s[0:1], {KA['out']}")
        if self.st: self.o(f"{'s_memtime' if self.st == 2 else 's_memrealtime'} s[{60+2*i}:{61+2*i}]")
    def spin(self, lbl, vdst, vaddr, sbase, need, first_wait, two=False):
        n = f"{self.name}_{lbl}"
        rd = f"v_readfirstlane_b32 s48, v{vdst}" + (f"\nv_readlane_b32 s50, v{vdst}, 1\ns_min_u32 s48, s48, s50" if two else "")
        return [first_wait, rd, f"s_mov_b32 s49, 0", f"s_cmp_ge_u32 s48, {need}", f"s_cbranch_scc1 {n}_go",
                f"{n}:", f"s_sleep {self.opt.get('sleep', 4)}", f"!global_load_dword v{vdst}, v{vaddr}, s[{sbase}:{sbase+1}] sc1", "s_add_u32 s49, s49, 1",
                "s_waitcnt vmcnt(0)", rd, "s_cmp_ge_u32 s49, 0x40000", f"s_cbranch_scc1 {n}_go",
                f"s_cmp_lt_u32 s48, {need}", f"s_cbranch_scc1 {n}", f"{n}_go:"]
    def emit(self, L):
        for x in L:
            if isinstance(x, str) and x.startswith("!"): self.o.raw("    " + x[1:])
            else: self.o(x)
    def setup(self):
        S = self; t = A()
        rot = S.opt.get("rot2", 1); rev = S.opt.get("rev2", 1)
        t(f"""
        s_and_b32 s3, s2, 7
        s_lshr_b32 s48, s2, 3
        s_and_b32 s49, s3, 1
        s_lshl_b32 s49, s49, 3
        s_and_b32 s50, s48, 7
        s_add_u32 s{S.sTT}, s49, s50
        s_bfe_u32 s35, s3, 0x10001
        s_lshl_b32 s49, s35, 2
        s_lshr_b32 s50, s48, 3
        s_add_u32 s{S.sDP}, s49, s50
        s_lshr_b32 s{S.sKH}, s3, 2
        s_lshl_b32 s{S.sD}, s2, 2
        s_add_u32 s{S.sD}, s{S.sD}, s24
        s_mul_i32 s{S.sCB}, s24, {CWSTR}
        s_add_u32 s{S.sCB}, s{S.sCB}, {COFF}
        s_lshl_b32 s{S.sM0}, s24, 12
        s_add_u32 s48, s{S.sTT}, s{S.sDP}
        s_and_b32 s48, s48, {rot}
        s_and_b32 s35, s35, {rev}
        s_lshl_b32 s49, s48, 1
        s_sub_u32 s{S.sSH[0]}, 1, s49
        s_add_u32 s{S.sSH[1]}, 1, s49
        s_sub_u32 s49, 27, s48
        s_cmp_eq_u32 s35, 1
        s_cselect_b32 s{S.sHoff}, s49, s48
        s_cselect_b32 s49, -1, 1
        s_mul_i32 s{S.sSH[0]}, s{S.sSH[0]}, s49
        s_mul_i32 s{S.sSH[1]}, s{S.sSH[1]}, s49
        s_lshl_b32 s{S.sWoff}, s{S.sHoff}, 17
        s_lshl_b32 s{S.sHoff}, s{S.sHoff}, 11
        s_lshl_b32 s{S.sSW[0]}, s{S.sSH[0]}, 17
        s_lshl_b32 s{S.sSW[1]}, s{S.sSH[1]}, 17
        s_lshl_b32 s{S.sSH[0]}, s{S.sSH[0]}, 11
        s_lshl_b32 s{S.sSH[1]}, s{S.sSH[1]}, 11
        v_lshrrev_b32 v19, 4, v0
        v_lshlrev_b32 v18, 11, v19
        v_bfe_u32 v20, v0, 1, 3
        v_xor_b32 v20, v20, v19
        v_lshlrev_b32 v20, 5, v20
        v_and_b32 v21, 1, v0
        v_lshl_add_u32 v20, v21, 4, v20
        v_add_u32 v18, v18, v20
        s_lshl_b32 s48, s24, 15
        s_lshl_b32 s49, s{S.sDP}, 8
        s_add_u32 s48, s48, s49
        s_mul_i32 s49, s{S.sKH}, {1792*2048}
        s_add_u32 s48, s48, s49
        v_add_u32 v18, s48, v18
        v_xor_b32 v21, 128, v18
        v_add_u32 v19, {1*(8192-1024)}, v21
        v_add_u32 v20, {2*(8192-1024)}, v18
        v_add_u32 v21, {3*(8192-1024)}, v21
        s_add_u32 s56, s6, {WS_FLAG}
        s_addc_u32 s57, s7, 0
        """)
        if "h" in S.opt.get("hot", ""): t("s_mov_b32 s46, 0\ns_mov_b32 s47, 0")
        if "w" in S.opt.get("hot", ""): t("s_mov_b32 s44, 0\ns_mov_b32 s45, 0")
        srd(t, S.sWs, 92, 3584 * 2048)
        c = Conv(t, S.sD, S.sCB, S.sU, S.sK, S.sAT, 1, 2, 32)
        c.srds()
        return [x.strip() for x in t.l if x.strip()]
    def setup2(self):
        S = self
        return [f"s_lshl_b32 s50, s{S.sD}, 11", "s_add_u32 s50, s50, 16"] + gather_setup(50, range(S.GA, S.GA + 4), 56, 66, 67, S.sC)
    def dmaW(self, st):
        S = self
        L = [f"s_add_u32 m0, s{S.sM0}, {(st & 7) * 16384}"]
        L += [f"buffer_load_dwordx4 v{S.vWd[j]}, s[{S.sWs}:{S.sWs+3}], s{S.sWoff} offen offset:{1024*j} lds" for j in range(4)]
        return L, [("tv", f"W{st}"), f"s_add_u32 s{S.sWoff}, s{S.sWoff}, s{S.sSW[st & 1]}"]
    def fh(self, st, nb):
        kd, base = self.hb[st]; return rng(kd, base + 4 * nb, 4)
    def ldH(self, st, nb):
        S = self
        L = [f"buffer_load_dwordx4 {S.fh(st, nb)}, v{S.vH[nb]}, s[{S.sH}:{S.sH+3}], s{S.sHoff} offen sc1"]
        if nb == 3: L += [("tv", f"H{st}"), f"s_add_u32 s{S.sHoff}, s{S.sHoff}, s{S.sSH[st & 1]}"]
        return L
    def sched(self, cp):
        S = self; opt = S.opt; NF = S.NF; P = {}
        def add(p, *x): P.setdefault(p, []).extend(x)
        use = lambda st: st if st < NF else NF + (st - NF) // 2
        pool = [[("v", 208), -9, 20], [("v", 224), -9, 20], [("v", 240), -9, 20]] + [[("a", b), -9, 99] for b in range(240, 63, -16)] + [[("v", 160), 0, 23], [("v", 176), 0, 23]]
        def alloc(k, rel):
            c = [b for b in pool if b[1] <= k and rel <= b[2]]
            if not c: return None
            c.sort(key=lambda b: b[2]); c[0][1] = 999; return c[0]
        S.hb = {}; S.wpath = {st: "d" for st in range(S.PW)}
        wb = {}; wiss = {}; st_ = dict(h=0, w=S.PW * 4)
        def issueW(p, k, prev):
            st, j = divmod(st_["w"], 4)
            if j == 0:
                if k >= max(0, st - 8) and p[2] >= 2: S.wpath[st] = "d"; add(prev, S.dmaW(st)[0][0])
                else:
                    b = alloc(k, use(st) - 1)
                    if b is None: return False
                    S.wpath[st] = "r"; wb[st] = b
            if S.wpath[st] == "d": add(p, S.dmaW(st)[0][1 + j])
            else: add(p, f"buffer_load_dwordx4 {rng(wb[st][0][0], wb[st][0][1] + 4 * j, 4)}, v{S.vWd[j]}, s[{S.sWs}:{S.sWs+3}], s{S.sWoff} offen offset:{1024*j}")
            if j == 3: add(p, *S.dmaW(st)[1]); wiss[st] = k
            st_["w"] += 1; return True
        def issueH(p, k):
            st, nb = divmod(st_["h"], 4)
            if nb == 0:
                b = alloc(k, st + 1 if st < NF else 99)
                if b is None: return False
                S.hb[st] = b[0]
                if st < NF: b[1] = st + 1
            add(p, *S.ldH(st, nb)); st_["h"] += 1; return True
        n = opt.get("NPW", 8) * 4; c0 = opt.get("csig", 0) * 36 + 2; c1 = (cp - 1) * 36 + 10
        for i in range(n):
            g = c0 + (i * (c1 - c0)) // n
            assert issueW(("c", g // 36, g % 36), -5, None)
        slots = [("c", g // 36, g % 36) for g in range(cp * 36, 8 * 36) if g - cp * 36 < opt.get("hburst", 6) or g % opt.get("cpace", 4) == 0]
        lp = opt.get("lpos", [4, 7, 13, 16, 22, 27, 30])
        fp = opt.get("fpos", [1, 10, 19, 25, 26, 28, 29, 31])
        flushed = {}
        for k in range(-1, 24):
            if k >= 0:
                i = 0
                for st in sorted(wb):
                    if st in flushed or k < st - 8 or (wiss.get(st, 99) > k - opt.get("flag", 3) and k < use(st) - 2) or i + 4 > opt.get("frate", 4): continue
                    (kd, base) = wb[st][0]
                    add(("g", k, fp[i]), ("wv", f"W{st}"))
                    for j in range(4): add(("g", k, fp[i + j]), f"ds_write_b128 v{26 + ((st & 7) >> 2)}, {rng(kd, base + 4 * j, 4)} offset:{(st & 3) * 16384 + 1024 * j}")
                    i += 4; flushed[st] = k; wb[st][1] = k + 1
                    assert k <= use(st) - 2, (st, k)
            for p in (slots if k < 0 else [("g", k, g) for g in lp]):
                hd = use(st_["h"] // 4) if st_["h"] < 112 else 999
                wd = use(st_["w"] // 4) - opt.get("wlead", 1) if st_["w"] < 112 else 999
                if hd == wd == 999: break
                prev = (p[0], p[1], p[2] - 1)
                wst, wj = divmod(st_["w"], 4)
                dm = wj > 0 or (k >= max(0, wst - 8) and p[2] >= 2)
                if hd <= wd or not dm: ok = (hd < 999 and issueH(p, k)) or (wd < 999 and (dm or opt.get("regw", 1)) and issueW(p, k, prev))
                else: ok = issueW(p, k, prev) or (hd < 999 and issueH(p, k))
            if opt.get("verbose"): print(k, st_, "flushed", [s_ for s_ in flushed if flushed[s_] == k])
        assert st_["h"] == st_["w"] == 112 and set(flushed) == set(wb)
        return P
    def pf(self):
        S = self; G = []
        G.append([f"s_lshl_b32 s50, s{S.sD}, 12"])
        K = f"s[{S.sK}:{S.sK+3}], 0 offen"; GA, GB = S.GA, S.GB
        G += [[f"buffer_load_dwordx2 {v(GB,2)}, v{GA}, {K} offset:128 sc1"], [f"buffer_load_dwordx2 {v(GB+2,2)}, v{GA}, {K} sc1"],
              [f"buffer_load_dwordx2 {v(GB+4,2)}, v{GA+1}, {K} sc1"], [f"buffer_load_dwordx2 {v(GB+6,2)}, v{GA+2}, {K} sc1"],
              [f"buffer_load_dwordx4 {v(GB+8,4)}, v{GA+3}, {K} sc1"]]
        for c in range(2):
            for j in range(4): G.append([f"buffer_load_dwordx4 {a(S.STG+32+16*c+4*j,4)}, v1, s[{S.sU}:{S.sU+3}], s50 offen offset:{1024*j+16-4*c} sc1"])
        G[-1].append(("tv", "KU"))
        return G
    def peel(self, h):
        S = self; f = {}
        if h == 0:
            for i, x in enumerate(S.setup()): f.setdefault(2 + i // 3, []).append(x)
            assert max(f) < 29
        p = 29 if h == 0 else 4
        for st in ((0, 1, 2) if h == 0 else (3, 4)):
            L, post = S.dmaW(st)
            f.setdefault(p - 1, []).append(L[0])
            for x in L[1:]:
                f.setdefault(p, []).append(x); p += 3 if h == 0 else 6
            f[p - (3 if h == 0 else 6)] += post
        return f
    def g1_exit(self, sTT1, sFT1):
        o = self.o
        o(f"""
        v_mov_b32 v23, 0
        s_lshl_b32 s{self.sHC}, s{sTT1}, 1
        s_cmp_ge_u32 s{sFT1}, 14
        s_addc_u32 s{self.sHC}, s{self.sHC}, 0
        s_lshl_b32 s{self.sHC}, s{self.sHC}, 8
        s_add_u32 s{self.sHC}, s{self.sHC}, {HCNT}
        v_mov_b32 v22, 32
        s_cmp_eq_u32 s24, 0
        s_cselect_b32 s{self.sHC}, s{self.sHC}, 0
        """)
        self.G = self.pf()
    def epi_merge(self, n, E):
        pb = self.opt.get("pollblk", 4)
        if n == pb - 2:
            self.emit(["s_cmp_lg_u32 s24, 0", f"s_cbranch_scc1 {self.name}_np", "!global_load_dword v22, v23, s[98:99] sc1", f"{self.name}_np:", ("tv", "auxp")])
        if n == 3: E = merge(E, self.setup2(), 8)
        if n < pb: return E
        if n == pb:
            self.emit(self.spin("sa", 22, 23, 98, 32, ("wv", "auxp")) + ["s_barrier"])
        k = self.opt.get("pfrate", 3)
        take, self.G = self.G[:k], self.G[k:]
        out = []; step = len(E) // (k + 1)
        for i, x in enumerate(E):
            out.append(x)
            if i % step == step - 1 and take and not E[i + 1].startswith("s_nop") and not x.startswith("s_nop"): out += take.pop(0)
        for g in take: out += g
        return [x for x in out if not any(isinstance(x, str) and p in x for p in self.opt.get('edrop', []))]
    def aux_exit(self):
        o = self.o; S = self
        o(f"""
        s_waitcnt vmcnt(0)
        s_barrier
        v_mov_b32 v23, 0
        v_mov_b32 v22, 1
        v_lshlrev_b32 v1, 4, v0
        s_mov_b32 s{S.sHC}, 0
        s_cmp_lg_u32 s24, 0
        s_cbranch_scc1 {S.name}_ax1
        s_mov_b64 exec, 1
        global_atomic_add v23, v22, s[98:99] sc1
        s_mov_b64 exec, -1
        {S.name}_ax1:
        """)
        S.stamp(1); S.stamp(2)
        for x in S.setup(): o(x)
        srd(o, S.sH, 6, WS_H_SIZE)
        for st in range(S.PW):
            L, post = S.dmaW(st)
            S.emit(L[:1] + ["s_nop 0"] + L[1:] + post)
        for x in S.setup2(): o(x)
        S.emit(["s_cmp_lg_u32 s24, 0", f"s_cbranch_scc1 {S.name}_sb_go", "global_load_dword v22, v23, s[98:99] sc1"] + S.spin("sb", 22, 23, 98, 32, "s_waitcnt vmcnt(0)") + ["s_barrier"])
        for g in S.pf():
            for x in g:
                o(x)
                if isinstance(x, str) and "m0" in x: o("s_nop 0")
        o(f"s_waitcnt vmcnt(0)\ns_branch {S.name}_p2")
    def phase2(self):
        o = self.o; S = self; C = S.C; opt = S.opt; name = S.name
        assert not S.G
        o(("wv", "KU"))
        o.label(f"{name}_p2")
        S.stamp(3)
        o(f"v_add_u32 v{C.vOR}, s{S.sCB}, v1")
        UW = [f"ds_write_b128 v{C.vOR}, {a(S.STG+32+16*q+4*j,4)} offset:{off+1024*j}" for q, off in enumerate([UOFF + 64, UOFF + USTR + 64]) for j in range(4)]
        GB, SL, OB, sC = S.GB, 56, 68, S.sC
        D = [GB + 8, GB + 9, GB + 10, GB + 6, GB + 7]
        def pm(d, hi, lo, sel): return f"v_perm_b32 v{d}, v{hi}, v{lo}, {sel}"
        L = []
        for c in range(2):
            for kb in range(4):
                ob = OB + 16 * c + 4 * kb
                if kb < 2: L += [pm(ob + j, GB + 2 * kb + 1, GB + 2 * kb, f"v{SL+q}") for j, q in enumerate((0, 2 + c, 1, 1))]
                elif kb == 2: L += [pm(ob + j, GB + 5, GB + 4, f"s{sC[q]}") for j, q in enumerate((3, 1, 4, 2) if c else (0, 1, 2, 2))]
                else: L += [pm(ob + j, D[4 - j], D[3 - j], f"v{SL+4+3*c+q}") for j, q in enumerate((0, 1, 0, 2))]
                L.append(f"ds_write_b128 v{C.vOR}, {v(ob,4)} offset:{KSTR*c+1024*kb}")
        for x in merge(L, UW, 0): o(x)
        C.addrs(); C.zeroK(); C.zeroU()
        o(f"v_mov_b32 v24, s{S.sHC}\nv_mov_b32 v25, 1")
        t = A()
        t(f"""
        s_and_b32 s36, s24, 1
        s_lshr_b32 s37, s24, 1
        s_lshl_b32 s38, s{S.sTT}, 3
        s_lshl_b32 s39, s36, 2
        s_add_u32 s38, s38, s39
        s_lshl_b32 s39, s37, 1
        s_add_u32 s35, s38, s39
        s_xor_b32 s38, s35, 2
        s_mul_i32 s39, s{S.sKH}, 56
        s_add_u32 s39, s39, s37
        s_mul_i32 s100, s35, 112
        s_mul_i32 s38, s38, 112
        s_add_u32 s100, s100, s39
        s_add_u32 s38, s38, s39
        s_lshl_b32 s100, s100, 10
        s_lshl_b32 s38, s38, 10
        v_add_u32 v{S.vH[0]}, s100, v1
        v_add_u32 v{S.vH[2]}, s38, v1
        v_add_u32 v{S.vH[1]}, {112*1024}, v{S.vH[0]}
        v_add_u32 v{S.vH[3]}, {112*1024}, v{S.vH[2]}
        v_lshrrev_b32 v16, 2, v0
        v_lshlrev_b32 v17, 8, v16
        v_and_b32 v16, 7, v16
        s_lshl_b32 s38, s{S.sKH}, 2
        v_xor_b32 v16, s38, v16
        v_lshl_add_u32 v17, v16, 5, v17
        v_and_b32 v16, 3, v0
        v_lshl_add_u32 v17, v16, 3, v17
        s_lshl_b32 s38, s37, 13
        v_add_u32 v{S.vA}, s38, v17
        s_lshr_b32 s38, s{S.sTT}, 1
        s_lshl_b32 s38, s38, 1
        s_add_u32 s38, s38, s{S.sKH}
        s_lshl_b32 s38, s38, 8
        s_add_u32 s38, s38, {HCNT}
        v_mov_b32 v23, s38
        v_add_u32 v26, s{S.sM0}, v1
        v_add_u32 v27, 65536, v26
        """)
        for m in range(1, 8): t(f"v_xor_b32 v{S.vA+m}, {32*m}, v{S.vA}")
        for m in range(8): t(f"v_xor_b32 v{S.vA+8+m}, {32*m + 65536}, v{S.vA}")
        srd(t, S.sO, 96, 2048 * 2048)
        t(f"s_add_u32 s4, s6, {WS_G}\ns_addc_u32 s5, s7, 0"); srd(t, S.sG, 4, 2048 * 4)
        t(f"s_add_u32 s4, s6, {WS_X}\ns_addc_u32 s5, s7, 0"); srd(t, S.sX, 4, 256 * 32768)
        T = []
        for x in [x.strip() for x in t.l if x.strip()]:
            if x.startswith("s_addc"): T[-1] += "\n" + x
            else: T.append(x)
        fills = {}
        for i, x in enumerate(T): fills.setdefault((2 + i // 36, i % 36), []).append(x)
        def sig_h():
            o(f"""
            s_waitcnt vmcnt(0)
            s_barrier
            s_cmp_eq_u32 s{S.sHC}, 0
            s_cbranch_scc1 {name}_nh
            s_mov_b64 exec, 1
            """)
            o.raw("    global_atomic_add v24, v25, s[56:57] sc1")
            o(f"s_mov_b64 exec, -1\n{name}_nh:")
            S.stamp(1)
        cs = opt.get("csig", 0); cp = opt.get("cpoll", 6)
        fills.setdefault((cp - 1, 20), []).extend(["s_cmp_lg_u32 s24, 0", f"s_cbranch_scc1 {name}_nq", "!global_load_dword v22, v23, s[56:57] sc1", f"{name}_nq:"])
        S.P = S.sched(cp)
        for (kd, c, g), L in S.P.items():
            if kd == "c": fills.setdefault((c, g), []).extend(L)
        def poll_h():
            S.emit(["s_cmp_lg_u32 s24, 0", f"s_cbranch_scc1 {name}_sh_go"] + S.spin("sh", 22, 23, 56, 14, "s_waitcnt vmcnt(0)") + ["s_barrier"]); S.stamp(4)
        C.main(hooks={cs: sig_h, cp: poll_h}, fills=fills)
        S.gemm2()
    def gemm2(self):
        o = self.o; S = self; C = S.C; opt = S.opt; name = S.name
        ACC = 32
        def acc(mb, nb): return ACC + (((mb >> 2) * 2 + (nb >> 1)) * 8 + (nb & 1) * 4 + (mb & 3)) * 4
        def fa(st, i): return st * 32 + i * 4
        NF = 20
        steps = []
        for s_ in range(NF): steps.append(([(s_, mb) for mb in range(8)], [(mb, s_, mb, nb) for nb in range(4) for mb in range(8)]))
        for half in (1, 0):
            for p in range(4):
                fr = [(NF + 2 * p + e, 4 * half + m) for e in range(2) for m in range(4)]
                if p < 3: mf = [(4 * e + m, NF + 2 * p + e, 4 * half + m, nb) for e in range(2) for nb in range(4) for m in range(4)]
                else: mf = [(4 * e + m, NF + 2 * p + e, 4 * half + m, nb) for hn in (1, 0) for e in range(2) for nb in (2 * hn, 2 * hn + 1) for m in range(4)]
                steps.append((fr, mf))
        def reads(k):
            return [f"ds_read_b64_tr_b16 {a(fa(k & 1, i) + 2 * r2, 2)}, v{S.vA + 8 * ((st & 7) >> 2) + mb} offset:{(st & 3) * 16384 + r2 * 4096}"
                    for i, (st, mb) in enumerate(steps[k][0]) for r2 in range(2)]
        for x in reads(0): o(x)
        C.out()
        o(("tv", "AT"))
        S.stamp(5)
        XR = 160; PR = 208; ATF = 240; SEL = 24; OMG = [2, 3]; vG = [4, 5]
        vXW, vXR_, vFo, vFp, vAT, vOut, vCn = 6, 7, 8, 9, 10, 11, 16
        sDT = 35
        t = A()
        t(f"""
        s_lshr_b32 s36, s2, 4
        s_lshl_b32 s36, s36, 8
        s_add_u32 s36, s36, 32768
        v_mov_b32 v{vCn}, s36
        s_lshl_b32 s36, s2, 2
        s_add_u32 s36, s36, s24
        s_lshl_b32 s37, s36, 5
        v_mov_b32 v{vFo}, s37
        s_xor_b32 s37, s37, {4 << 7}
        v_mov_b32 v{vFp}, s37
        s_lshl_b32 s100, s36, 13
        s_xor_b32 s101, s100, {4 << 15}
        s_lshl_b32 s36, s24, 13
        s_add_u32 s36, s36, {XOFF2}
        v_add_u32 v{vXW}, s36, v1
        v_xor_b32 v{vXR_}, {2 << 13}, v{vXW}
        s_lshl_b32 s{sDT}, s{S.sDP}, 1
        s_add_u32 s{sDT}, s{sDT}, s{S.sKH}
        s_lshl_b32 s36, s{sDT}, 8
        s_add_u32 s36, s36, 32768
        v_mov_b32 v23, s36
        s_and_b32 s36, s24, 1
        s_lshl_b32 s36, s36, 7
        s_lshr_b32 s37, s24, 1
        s_lshl_b32 s37, s37, 6
        s_add_u32 s36, s36, s37
        s_lshl_b32 s37, s{S.sTT}, 8
        s_add_u32 s37, s37, s36
        s_lshl_b32 s38, s{sDT}, 18
        s_add_u32 s38, s38, s37
        s_lshl_b32 s39, s37, 1
        s_lshl_b32 s25, s37, 10
        s_lshl_b32 s36, s{sDT}, 7
        s_add_u32 s25, s25, s36
        s_add_u32 s26, s25, {16*2048}
        v_and_b32 v30, 15, v0
        v_lshrrev_b32 v31, 4, v0
        v_lshlrev_b32 v{vAT}, 12, v30
        v_lshl_add_u32 v{vAT}, v31, 4, v{vAT}
        v_lshlrev_b32 v17, 2, v30
        v_lshlrev_b32 v{vOut}, 11, v30
        v_and_b32 v28, 1, v31
        buffer_load_dword v{vG[0]}, v17, s[{S.sG}:{S.sG+3}], s39 offen sc1
        v_lshl_add_u32 v{vOut}, v28, 5, v{vOut}
        v_lshrrev_b32 v28, 1, v31
        buffer_load_dword v{vG[1]}, v17, s[{S.sG}:{S.sG+3}], s39 offen offset:64 sc1
        v_lshl_add_u32 v{vOut}, v28, 4, v{vOut}
        v_lshlrev_b32 v31, 3, v31
        v_sub_u32 v17, v30, v31
        """)
        SET = [x.strip() for x in t.l if x.strip()] + [("tv", "G")]
        NSET = len(SET)
        SELL = [("wv", "G")]
        for nb in range(2):
            g = vG[nb]
            SELL += [x.strip() for x in f"""v_sub_f32 v{OMG[nb]}, 1.0, v{g}
            v_add_u32 v30, {16*nb}, v17
            v_cvt_pk_bf16_f32 v{OMG[nb]}, v{OMG[nb]}, v{OMG[nb]}
            v_and_b32 v31, 1, v30
            v_lshlrev_b32 v{OMG[nb]}, 16, v{OMG[nb]}
            v_cmp_eq_u32 vcc, 1, v31
            v_lshrrev_b32 v31, 16, v{g}
            v_and_b32 v{g}, 0xffff0000, v{g}
            v_ashrrev_i32 v30, 1, v30
            v_cndmask_b32 v{g}, v31, v{g}, vcc""".split("\n")]
            for q in range(4): SELL += [f"v_cmp_eq_u32 vcc, {q}, v30", f"v_cndmask_b32 v{XR+32+16+4*nb+q if False else 248+4*nb+q}, 0, v{g}, vcc"]
        SELR = 248
        ATR = 224
        seen = set()
        for k, (fr, mf) in enumerate(steps):
            if k in opt.get("kst", []): S.stamp(1 + opt["kst"].index(k), True)
            fill = {}
            def add(i, *x): fill.setdefault(i, []).extend(x)
            stages = sorted(set(x[1] for x in mf))
            if k < 24: o(("wv",) + tuple(f"H{s_}" for s_ in stages))
            o("s_waitcnt lgkmcnt(0)")
            ka = opt.get("ka", 5)
            if k < 23:
                tg = tuple(f"W{s_}" for s_, _ in steps[k + 1][0] if S.wpath[s_] == "d" and s_ >= S.PW) + (("AT",) if k == ka else ())
                if tg: add(0, ("wv",) + tg)
                add(0, "s_barrier")
            rpos = [2 + (i * 3) // 2 for i in range(16)]
            if k == 23: rpos = list(range(16))
            if k == 24: rpos = [9 + i for i in range(16)]
            if k in (24, 25): add(0, "s_barrier")
            if k + 1 < 28:
                for i, x in enumerate(reads(k + 1)): add(rpos[i], x)
            for (kd, kk, g), L in S.P.items():
                if kd == "g" and kk == k: add(g, *L)
            if k == ka:
                add(1, "s_cmp_lg_u32 s24, 0", f"s_cbranch_scc1 {name}_na", "s_mov_b64 exec, 1", f"!global_atomic_add v{vCn}, v25, s[56:57] sc1", "s_mov_b64 exec, -1", f"{name}_na:")
            kp = opt.get("kp", 21)
            if k == kp: add(10, "global_load_dword v22, v23, s[56:57] sc1", ("tv", "ap"))
            if k == kp + 1:
                assert len(SET) < 12
                add(19, *S.spin("st", 22, 23, 56, 16, ("wv", "ap")))
                for mb in range(4):
                    add(22 + 3 * mb, f"buffer_load_dwordx4 {v(ATR+4*mb,4)}, v{vAT}, s[{S.sAT}:{S.sAT+3}], s38 offen sc1", "s_add_u32 s38, s38, 65536")
            if k in (23, 27):
                q = 3 if k == 23 else 1
                for i in range(8): add(17 + 2 * i, f"ds_write_b128 v{vXW}, {v(ACC+32*q+4*i,4)} offset:{1024*i}")
            if k == 24:
                for i in range(8): add(1 + i, f"ds_read_b128 {v(XR+4*i,4)}, v{vXR_} offset:{1024*i}", ("tl", f"x{i}"))
            if k in (24, 25):
                sp = opt.get("xsp", 2)
                for i in range(8):
                    b = ACC + 64 + 4 * i; p = 12 + sp * i
                    L = [[("wl", f"x{i}")] * (p < 32) + [f"v_add_f32 v{b+r}, v{b+r}, v{XR+4*i+r}" for r in range(2)], [f"v_add_f32 v{b+r}, v{b+r}, v{XR+4*i+r}" for r in range(2, 4)],
                         [f"buffer_store_dwordx4 {v(b,4)}, v1, s[{S.sX}:{S.sX+3}], s100 offen offset:{1024*(i&3)} sc1"] + ["s_add_u32 s100, s100, 4096"] * (i == 3) + [("tv", "XS")]]
                    for j, x in enumerate(L):
                        if (p + j) // 32 == k - 24: add((p + j) % 32, *x)
            fk, fp = opt.get("flagpos", (27, 8))
            if k == fk:
                add(fp, ("wv", "XS"), "s_mov_b64 exec, 1", f"global_store_dword v{vFo}, v25, s[56:57] sc1", "s_mov_b64 exec, -1")
            if k == 27: add(opt.get("ppos", 30), f"global_load_dword v22, v{vFp}, s[56:57] sc1")
            BG = SET if SET else SELL
            if k == 23: assert not SET
            for i in range(1, 32):
                if i not in fill and BG and (k >= opt.get("kbg", 16) or len(SET) > NSET - 4) and not (BG is SELL and k < 25):
                    add(i, BG.pop(0))
                    while BG and isinstance(fill[i][-1], tuple) or (BG and isinstance(BG[0], tuple) and BG[0][0] == "tv"): add(i, BG.pop(0))
            for i, (fi, st, mb, nb) in enumerate(mf):
                c = v(acc(mb, nb), 4) if (mb, nb) in seen else "0"
                seen.add((mb, nb))
                o(f"v_mfma_f32_16x16x32_bf16 {v(acc(mb,nb),4)}, {a(fa(k&1,fi),4)}, {S.fh(st,nb)}, {c}")
                S.emit([x for x in fill.get(i, []) if not any(isinstance(x, str) and x.startswith(p) for p in opt.get("g2drop", []))])
            if k == 23: S.stamp(6)
        S.stamp(7)
        o("s_waitcnt lgkmcnt(0)\ns_barrier")
        for i in range(8): o(f"ds_read_b128 {v(XR+4*i,4)}, v{vXR_} offset:{1024*i}"); o(("tl", f"y{i}"))
        assert not SELL
        S.emit(S.spin("sp", 22, vFp, 56, 1, "s_waitcnt vmcnt(0)"))
        P2 = 96
        for i in range(8):
            o(f"buffer_load_dwordx4 {v(P2+4*i,4)}, v1, s[{S.sX}:{S.sX+3}], s101 offen offset:{1024*(i&3)} sc1"); o(("tv", f"p{i}"))
            if i == 3: o("s_add_u32 s101, s101, 4096")
        S.stamp(8)
        o("s_waitcnt lgkmcnt(0)")
        for i in range(8):
            b = ACC + 4 * i
            for r in range(4): o(f"v_add_f32 v{b+r}, v{b+r}, v{XR+4*i+r}")
            for r in range(4): o(f"v_mul_f32 v{b+r}, v{OMG[i>>2]}, v{b+r}")
        o("s_nop 1")
        for nb in range(2):
            for mb in range(4):
                o(f"v_mfma_f32_16x16x32_bf16 {v(acc(mb,nb),4)}, {v(ATR+4*mb,4)}, {v(SELR+4*nb,4)}, {v(acc(mb,nb),4)}")
        o("s_nop 7")
        for nb in range(2):
            for pr in range(2):
                b = acc(2 * pr, nb); d = XR + 4 * (2 * nb + pr); i = 4 * nb + 2 * pr
                o(("wv", f"p{i+1}"))
                for r in range(8): o(f"v_fma_f32 v{b+r}, v{P2+4*i+r}, v{OMG[nb]}, v{b+r}")
                for q in range(4): o(f"v_cvt_pk_bf16_f32 v{d+q}, v{b+2*q}, v{b+2*q+1}")
                o(f"s_nop 1\nv_permlane16_swap_b32 v{d}, v{d+2}\nv_permlane16_swap_b32 v{d+1}, v{d+3}")
                o(f"buffer_store_dwordx4 {v(d,4)}, v{vOut}, s[{S.sO}:{S.sO+3}], s{25+nb} offen offset:{64*pr}")
        if S.st:
            o("s_waitcnt vmcnt(0)"); S.stamp(9)
            o(f"""
            s_add_u32 s4, s6, {WS_STAMP}
            s_addc_u32 s5, s7, 0
            s_lshl_b32 s36, s2, 2
            s_add_u32 s36, s36, s24
            s_lshl_b32 s36, s36, 6
            v_mov_b32 v1, s36
            s_waitcnt lgkmcnt(0)
            """)
            for i in range(12): o(f"v_mov_b32 v{4+i}, s{60+2*min(i,9)}")
            for i in range(3): o(f"global_store_dwordx4 v1, {v(4+4*i,4)}, s[4:5] offset:{16*i}")
            if "dstamp" in opt:
                o(f"s_cmp_lg_u32 s36, {opt['dstamp'] * 256}\ns_cbranch_scc1 {name}_nd\nv_mov_b32 v1, 16")
                for i in range(1, 12): o(f"v_subrev_u32 v{4+i}, s60, v{4+i}")
                for i in range(3): o(f"global_store_dwordx4 v1, {v(4+4*i,4)}, s[98:99] offset:{16*i}")
                o(f"{name}_nd:")

def fused(o, name="fused_kernel", stamp=False, opt=None):
    opt = dict(opt or {}); opt["stamp"] = False; opt["ct"] = 1; opt.setdefault("pf", 3)
    return gemm1(o, name, False, opt, F=Fused(o, name, opt))
```

```python
from asmlib import *

def stamp_begin(o):
    o("s_memtime s[60:61]\ns_memrealtime s[68:69]")
def stamp_mid1(o): o("s_memtime s[62:63]\ns_memrealtime s[72:73]")
def stamp_mid2(o): o("s_memtime s[64:65]\ns_memrealtime s[74:75]")
def stamp_end(o, sWave, ws_lo, off=0, nw_shift=2):
    o(f"""
    s_waitcnt vmcnt(0)
    s_memtime s[66:67]
    s_memrealtime s[70:71]
    s_waitcnt lgkmcnt(0)
    s_sub_u32 s70, s70, s68
    s_sub_u32 s62, s62, s60
    s_sub_u32 s64, s64, s60
    s_sub_u32 s66, s66, s60
    s_add_u32 s76, s{ws_lo}, {WS_STAMP + off}
    s_addc_u32 s77, s{ws_lo+1}, 0
    s_lshl_b32 s78, s2, {nw_shift}
    s_add_u32 s78, s78, s{sWave}
    s_lshl_b32 s78, s78, 5
    s_sub_u32 s72, s72, s68
    s_sub_u32 s74, s74, s68
    v_mov_b32 v8, s72
    v_mov_b32 v9, s74
    v_mov_b32 v10, s70
    v_mov_b32 v11, s68
    v_mov_b32 v2, s62
    v_mov_b32 v3, s64
    v_mov_b32 v4, s66
    s_getreg_b32 s79, hwreg(HW_REG_XCC_ID)
    s_getreg_b32 s80, hwreg(HW_REG_HW_ID)
    s_and_b32 s79, s79, 15
    s_lshl_b32 s80, s80, 4
    s_or_b32 s79, s79, s80
    v_mov_b32 v5, s79
    v_mov_b32 v6, s78
    global_store_dwordx4 v6, v[2:5], s[76:77]
    global_store_dwordx4 v6, v[8:11], s[76:77] offset:16
    """)

def gemm1(o, name="gemm1_kernel", stamp=False, opt=None, F=None):
    opt = opt or {}
    kernel_begin(o, name)
    XB = 65536
    accA = opt.get("accA", False)
    def acc(mb, nb):
        i = nb * 8 + mb
        if accA: return ("a", 4 * i)
        if i < 56: return ("v", 32 + 4 * i)
        return ("a", 128 + 4 * (i - 56))
    def accs(mb, nb):
        k, b = acc(mb, nb); return rng(k, b, 4)
    fk = "v" if accA else "a"
    fo = 32 if accA else 0
    def fa(set_, mb): return fo + set_ * 64 + mb * 4
    def fb(set_, nb): return fo + set_ * 64 + 32 + nb * 4
    vW = [2, 3, 4, 5]
    vX = [6, 7]
    vWd = [8, 9, 10, 11]
    vXd = [12, 13, 14, 15]
    vS = 1
    sX, sWs, sH = 8, 12, 20
    sWave, sTT, sFT = 24, 25, 26
    sWoff, sXoff, sXoff2 = 27, 28, 29
    sWm0, sXm0 = 30, 31
    sCnt, sXd, sXs, sRs = 32, 33, 34, 35
    sXe, sNeg, sPos = 44, 45, 46
    sRot, sTx, sTw, sTmp = 47, 48, 49, 50
    rotm = opt.get('rot', 1); rl = opt.get('rotlate', 0)
    o(f"""
    s_cmp_ge_u32 s2, {opt.get("nwg", 224)}
    s_cbranch_scc1 {name}_aux
    s_load_dwordx2 s[4:5], s[0:1], {KA['u']}
    s_load_dwordx4 s[40:43], s[0:1], {KA['wg']}
    s_load_dwordx2 s[6:7], s[0:1], {KA['ws']}
    """)
    if stamp: stamp_begin(o)
    if F: F.stamp(0)
    o(f"""
    v_lshrrev_b32 v1, 6, v0
    v_and_b32 v0, 63, v0
    s_and_b32 s3, s2, 7
    v_readfirstlane_b32 s{sWave}, v1
    s_lshr_b32 s36, s2, 3
    s_and_b32 s37, s3, 1
    s_lshl_b32 s37, s37, 2
    s_and_b32 s38, s36, 3
    s_add_u32 s{sTT}, s37, s38
    s_lshr_b32 s37, s3, 1
    s_mul_i32 s37, s37, 7
    s_lshr_b32 s38, s36, 2
    s_add_u32 s{sFT}, s37, s38
    v_lshlrev_b32 v{vS}, 4, v0
    """)
    mix = opt.get("mix", 0)
    if mix == 1:
        mixv = "v_and_b32 v19, 128, v18\nv_add_u32 v18, v18, v19"
        mixs = f"s_and_b32 s39, s{sFT}, 1\ns_lshl_b32 s39, s39, 7\ns_lshl_b32 s38, s{sFT}, 8\ns_sub_u32 s38, s38, s39"
    elif mix == 7:
        mixv = f"v_and_b32 v19, 128, v18\nv_mul_u32_u24 v19, 13, v19\nv_add_u32 v18, v18, v19"
        mixs = f"s_cmp_ge_u32 s{sFT}, 14\ns_cselect_b32 s39, 14, 0\ns_add_u32 s38, s{sFT}, s39\ns_lshl_b32 s38, s38, 7"
    else:
        mixv = "s_nop 0"; mixs = f"s_lshl_b32 s38, s{sFT}, 8"
    o(f"""
    v_lshrrev_b32 v17, 4, v0
    v_and_b32 v18, 15, v0
    v_lshlrev_b32 v19, 2, v17
    v_xor_b32 v18, v18, v19
    v_lshlrev_b32 v18, 4, v18
    {mixv}
    v_mul_u32_u24 v19, 7168, v17
    v_add_u32 v18, v18, v19
    s_and_b32 s36, s{sWave}, 1
    s_mul_i32 s37, s36, {16*7168}
    {mixs}
    s_add_u32 s37, s37, s38
    v_add_u32 v{vWd[0]}, s37, v18
    v_xor_b32 v18, 32, v{vWd[0]}
    v_add_u32 v{vWd[1]}, {1*(28672-1024)}, v{vWd[0]}
    v_add_u32 v{vWd[2]}, {2*(28672-1024)}, v18
    v_add_u32 v{vWd[3]}, {3*(28672-1024)}, v18
    """)
    o(f"""
    v_lshrrev_b32 v18, 3, v0
    v_lshlrev_b32 v18, 11, v18
    v_and_b32 v19, 7, v0
    v_xor_b32 v19, v19, v17
    v_lshlrev_b32 v19, 4, v19
    v_add_u32 v18, v18, v19
    s_lshl_b32 s37, s{sTT}, 8
    s_lshl_b32 s38, s{sWave}, 6
    s_add_u32 s37, s37, s38
    s_lshl_b32 s37, s37, 11
    v_add_u32 v{vXd[0]}, s37, v18
    v_xor_b32 v18, 64, v{vXd[0]}
    v_add_u32 v{vXd[1]}, {8*2048-1024}, v18
    v_add_u32 v{vXd[2]}, {2*(8*2048-1024)}, v{vXd[0]}
    v_add_u32 v{vXd[3]}, {3*(8*2048-1024)}, v18
    """)
    o(f"""
    v_lshlrev_b32 v18, 11, v17
    v_bfe_u32 v19, v0, 2, 2
    v_lshlrev_b32 v20, 8, v19
    v_add_u32 v18, v18, v20
    v_lshlrev_b32 v19, 1, v19
    v_and_b32 v20, 1, v17
    v_xor_b32 v19, v19, v20
    s_lshl_b32 s37, s36, 2
    v_xor_b32 v19, s37, v19
    v_lshlrev_b32 v19, 5, v19
    v_add_u32 v18, v18, v19
    v_and_b32 v19, 3, v0
    v_lshlrev_b32 v19, 3, v19
    v_add_u32 v{vW[0]}, v18, v19
    """)
    for m in range(1, 4): o(f"v_xor_b32 v{vW[m]}, {32*m}, v{vW[0]}")
    o(f"""
    s_lshr_b32 s37, s{sWave}, 1
    s_lshl_b32 s37, s37, 14
    s_add_u32 s37, s37, {XB}
    v_and_b32 v18, 15, v0
    v_lshlrev_b32 v18, 7, v18
    v_add_u32 v18, s37, v18
    v_bfe_u32 v20, v0, 1, 3
    v_xor_b32 v19, v17, v20
    v_lshlrev_b32 v19, 4, v19
    v_add_u32 v{vX[0]}, v18, v19
    v_xor_b32 v{vX[1]}, 64, v{vX[0]}
    """)
    pst = F and opt.get("pst")
    if pst and opt.get("pmode", 1) < 4: F.stamp(1, True)
    o("s_waitcnt lgkmcnt(0)")
    if pst and opt.get("pmode", 1) < 4: F.stamp(2, True)
    srd(o, sX, 4, 2048 * 2048)
    o(f"""
    s_cmp_lt_u32 s{sWave}, 2
    s_cselect_b32 s40, s40, s42
    s_cselect_b32 s41, s41, s43
    """)
    srd(o, sWs, 40, 1024 * 7168)
    srd(o, sH, 6, WS_H_SIZE)
    o(f"""
    s_add_u32 s{sRot}, s{sTT}, s{sFT}
    s_and_b32 s{sRot}, s{sRot}, {rotm}
    s_mov_b32 s{sTx}, 0
    s_mov_b32 s{sTw}, 0
    s_lshl_b32 s{sXoff}, s{sRot if not rl else sTx}, 7
    s_mul_i32 s{sWoff}, s{sRot if not rl else sTx}, {64*7168}
    s_lshl_b32 s{sWm0}, s{sWave}, 12
    s_lshl_b32 s{sXm0}, s{sWave}, 13
    s_add_u32 s{sXm0}, s{sXm0}, {XB}
    """)
    advW0 = [f"s_add_u32 s{sWoff}, s{sWoff}, {32*7168}"]
    advW1 = [f"s_add_u32 s{sTw}, s{sTw}, 1", f"s_xor_b32 s{sTmp}, s{sTw}, s{sRot}", f"s_mul_i32 s{sWoff}, s{sTmp}, {64*7168}"]
    advX = [f"s_add_u32 s{sTx}, s{sTx}, 1", f"s_xor_b32 s{sTmp}, s{sTx}, s{sRot}", f"s_lshl_b32 s{sXoff}, s{sTmp}, 7"]
    def dmaW(j): return f"buffer_load_dwordx4 v{vWd[j]}, s[{sWs}:{sWs+3}], s{sWoff} offen offset:{1024*j} lds"
    def dmaX(j, half): return f"buffer_load_dwordx4 v{vXd[j]}, s[{sX}:{sX+3}], s{sXoff2 if half else sXoff} offen offset:{1024*j} lds"
    def grpW(slot):
        o(f"s_add_u32 m0, s{sWm0}, {slot*16384}")
        o("s_nop 0")
        for j in range(4): o(dmaW(j))
        for x in (advW1 if slot & 1 else advW0): o(x.replace(f", s{sRot}", ", 0") if rl and slot == 1 else x)
    def grpX(slot, half):
        o(f"s_add_u32 m0, s{sXm0}, {slot*32768 + half*4096}")
        o(f"s_add_u32 s{sXoff2}, s{sXoff}, 65536")
        for j in range(4): o(dmaX(j, half))
        if half:
            for x in advX: o(x.replace(f", s{sRot}", ", 0") if rl and slot == 0 else x)
    ZI = []
    for mb in range(8):
        for nb in range(8):
            k, b = acc(mb, nb)
            for r in range(4):
                ZI.append(f"v_mov_b32 v{b+r}, 0" if k == "v" else f"v_accvgpr_write_b32 a{b+r}, 0")
    pm = opt.get("pmode", 1)
    def zi(n):
        for _ in range(min(n, len(ZI))): o(ZI.pop(0))
    G = [lambda: grpX(0, 0), lambda: grpW(0), lambda: grpX(0, 1), lambda: grpW(1), lambda: grpX(1, 0), lambda: grpW(2), lambda: grpX(1, 1), lambda: grpW(3), lambda: grpX(2, 0)]
    for i, g in enumerate(G):
        g()
        if pm == 1 and i >= 2: zi(43)
        if pm == 2 and i == 2:
            if pst: F.stamp(3, True)
            zi(256)
            if pst: F.stamp(4, True); o("s_waitcnt vmcnt(8)"); F.stamp(5, True); o("s_waitcnt vmcnt(0)"); F.stamp(6, True)
        if pm == 3 and i == 2: zi(256)
        if pm == 4 and i >= 2: F.stamp(i - 1, True)
        if pm == 5 and i == 2:
            for q, w in enumerate((10, 8, 6, 4, 2, 0)): o(f"s_waitcnt vmcnt({w})"); F.stamp(q + 1, True)
    if pm == 4: o("s_waitcnt vmcnt(24)"); F.stamp(8, True)
    if pm in (4, 5): pst = 0
    npf1 = 0
    if pst and pm != 2: F.stamp(3, True)
    g1pf = F and opt.get("g1pf", 2)
    if g1pf == 1:
        o(f"""
        s_lshl_b32 s36, s2, 2
        s_add_u32 s36, s36, s{sWave}
        s_lshl_b32 s36, s36, 13
        v_lshrrev_b32 v18, 3, v0
        v_lshlrev_b32 v18, 7, v18
        s_add_u32 s84, s92, s36
        s_addc_u32 s85, s93, 0
        s_and_b32 s85, s85, 0xffff
        s_movk_i32 s86, 0x2000
        s_mov_b32 s87, 0x20000
        """)
    if g1pf == 1 and opt.get("wdelay"): o(f"v_subrev_u32 v18, {1024*opt['wdelay']}, v18")
    if g1pf == 3:
        lead = opt.get("lead", 8); wd0 = opt.get("wd0", 7)
        o(f"""
        s_lshr_b32 s36, s2, 5
        s_lshl_b32 s36, s36, 3
        s_add_u32 s36, s36, s{sTT}
        s_lshl_b32 s36, s36, 1
        s_and_b32 s37, s{sWave}, 1
        s_add_u32 s36, s36, s37
        s_lshl_b32 s36, s36, 3
        v_and_b32 v28, 7, v0
        v_add_u32 v29, s36, v28
        v_mul_u32_u24 v30, 4682, v29
        v_lshrrev_b32 v30, 16, v30
        v_lshlrev_b32 v29, 7, v29
        v_mul_u32_u24 v30, {7168 - 1792}, v30
        v_add_u32 v29, v29, v30
        s_bfe_u32 s37, s2, 0x20001
        s_mul_i32 s37, s37, 1792
        s_add_u32 s36, s37, {lead*64*7168}
        s_add_u32 s36, s40, s36
        s_addc_u32 s37, s41, 0
        v_mov_b32 v19, s37
        v_add_co_u32 v18, vcc, s36, v29
        v_addc_co_u32 v19, vcc, 0, v19, vcc
        s_and_b32 s36, s{sFT}, 15
        s_lshl_b32 s36, s36, 2
        s_add_u32 s36, s36, s{sWave}
        s_lshl_b32 s36, s36, 13
        s_lshl_b32 s37, s{sTT}, 19
        s_add_u32 s36, s36, s37
        s_add_u32 s36, s36, {lead*128}
        s_add_u32 s36, s4, s36
        s_addc_u32 s37, s5, 0
        v_and_b32 v29, 3, v0
        v_lshlrev_b32 v29, 11, v29
        v_mov_b32 v21, s37
        v_add_co_u32 v20, vcc, s36, v29
        v_addc_co_u32 v21, vcc, 0, v21, vcc
        s_lshl_b32 s36, s2, 2
        s_add_u32 s36, s36, s{sWave}
        s_lshl_b32 s36, s36, 13
        s_add_u32 s36, s92, s36
        s_addc_u32 s37, s93, 0
        v_lshlrev_b32 v29, 7, v28
        v_mov_b32 v23, s37
        v_add_co_u32 v22, vcc, s36, v29
        v_addc_co_u32 v23, vcc, 0, v23, vcc
        v_bfe_u32 v28, v0, 3, 2
        v_mov_b32 v24, {64*7168}
        v_mov_b32 v25, 0
        v_mov_b32 v26, 128
        v_mov_b32 v27, 1024
        v_cmp_eq_u32 vcc, 1, v28
        v_cndmask_b32 v18, v18, v20, vcc
        v_cndmask_b32 v19, v19, v21, vcc
        v_cndmask_b32 v24, v24, v26, vcc
        v_cmp_lt_u32 vcc, 1, v28
        v_cndmask_b32 v18, v18, v22, vcc
        v_cndmask_b32 v19, v19, v23, vcc
        v_cndmask_b32 v24, v24, v25, vcc
        v_cndmask_b32 v25, v25, v27, vcc
        """)
    TQ = dict(zip(opt.get("tord", "1x2d"), (18, 20, 22, 24)))
    ROT = [f"v_mov_b32 v{r}, v{r+2}" for r in range(18, 26)]
    TL = "global_load_dword v16, v[18:19], off"
    if g1pf == 2:
        r0 = opt.get("tr0", 128); nr = (1024 - r0) // 2
        o(f"""
        s_lshr_b32 s36, s2, 5
        s_lshl_b32 s36, s36, 3
        s_add_u32 s36, s36, s{sTT}
        s_lshl_b32 s36, s36, 1
        s_and_b32 s37, s{sWave}, 1
        s_add_u32 s36, s36, s37
        s_mul_i32 s36, s36, {4*7168}
        s_bfe_u32 s37, s2, 0x20001
        s_mul_i32 s37, s37, 1792
        s_add_u32 s36, s36, s37
        s_add_u32 s36, s36, {r0*7168}
        s_add_u32 s36, s40, s36
        s_addc_u32 s37, s41, 0
        v_and_b32 v28, 15, v0
        v_min_u32 v29, 13, v28
        v_lshlrev_b32 v29, 7, v29
        v_mul_u32_u24 v30, 7168, v17
        v_add_u32 v29, v29, v30
        v_mov_b32 v{TQ['1']+1}, s37
        v_add_co_u32 v{TQ['1']}, vcc, s36, v29
        v_addc_co_u32 v{TQ['1']+1}, vcc, 0, v{TQ['1']+1}, vcc
        v_add_co_u32 v{TQ['2']}, vcc, {nr*7168}, v{TQ['1']}
        v_addc_co_u32 v{TQ['2']+1}, vcc, 0, v{TQ['1']+1}, vcc
        s_and_b32 s36, s{sFT}, 15
        s_lshl_b32 s36, s36, 2
        s_add_u32 s36, s36, s{sWave}
        s_lshl_b32 s36, s36, 13
        s_lshl_b32 s37, s{sTT}, 19
        s_add_u32 s36, s36, s37
        s_add_u32 s36, s4, s36
        s_addc_u32 s37, s5, 0
        v_max_u32 v29, 3, v28
        v_lshlrev_b32 v29, 7, v29
        v_lshl_add_u32 v29, v17, 11, v29
        v_mov_b32 v{TQ['x']+1}, s37
        v_add_co_u32 v{TQ['x']}, vcc, s36, v29
        v_addc_co_u32 v{TQ['x']+1}, vcc, 0, v{TQ['x']+1}, vcc
        s_lshl_b32 s36, s2, 2
        s_add_u32 s36, s36, s{sWave}
        s_lshl_b32 s36, s36, 13
        s_add_u32 s36, s92, s36
        s_addc_u32 s37, s93, 0
        v_lshlrev_b32 v29, 7, v0
        v_mov_b32 v{TQ['d']+1}, s37
        v_add_co_u32 v{TQ['d']}, vcc, s36, v29
        v_addc_co_u32 v{TQ['d']+1}, vcc, 0, v{TQ['d']+1}, vcc
        v_mov_b32 v26, s36
        v_mov_b32 v27, s37
        """)
        if opt.get("tpro", 1):
            o(TL); npf1 = 1; opt.setdefault("vm", 17)
            for x in ROT: o(x)
    zi(256)
    def reads(set_, sl, ks2):
        Aa = []
        for mb in range(8):
            for r2 in range(2):
                Aa.append(f"ds_read_b64_tr_b16 {rng(fk, fa(set_, mb)+2*r2, 2)}, v{vW[mb&3]} offset:{sl*16384 + (mb>>2)*8192 + r2*1024}")
        Bb = [f"ds_read_b128 {rng(fk, fb(set_, nb), 4)}, v{vX[ks2]} offset:{nb*2048}" for nb in range(8)]
        L = []
        for i in range(8): L += Aa[2*i:2*i+2] + [Bb[i]]
        return L
    o(f"""
    s_mov_b32 s{sCnt}, 0
    s_add_u32 s{sXs}, s{sXm0}, {2*32768}
    s_add_u32 s{sXe}, s{sXm0}, {3*32768}
    s_mov_b32 s{sNeg}, {(-65536) & 0xffffffff}
    s_mov_b32 s{sPos}, 32768
    s_mov_b32 s{sRs}, 0
    """)
    if pst and pm != 2: F.stamp(4, True); o("s_waitcnt vmcnt(32)"); F.stamp(5, True)
    o(f"s_waitcnt vmcnt({24 + npf1})")
    if pst and pm != 2: F.stamp(6, True)
    o("s_barrier")
    if pst: F.stamp(7, True)
    if stamp: stamp_mid1(o)
    if F: F.stamp(1)
    for r in reads(0, 0, 0): o(r)
    o(".p2align 3")
    o.label(f"{name}_loop")
    order = []
    if opt.setdefault("order", "nb") == "snake":
        for mb in range(8):
            for nb in (range(8) if mb % 2 == 0 else range(7, -1, -1)): order.append((mb, nb))
    elif opt["order"] == "mb":
        order = [(mb, nb) for mb in range(8) for nb in range(8)]
    elif opt["order"] == "nb":
        order = [(mb, nb) for nb in range(8) for mb in range(8)]
    elif opt["order"] == "diag":
        order = [((i + j) % 8, j) for i in range(8) for j in range(8)]
    def substep(set_, fill, vm=None):
        o("s_waitcnt lgkmcnt(0)")
        for i, (mb, nb) in enumerate(order):
            o(f"v_mfma_f32_16x16x32_bf16 {accs(mb,nb)}, {rng(fk,fa(set_,mb),4)}, {rng(fk,fb(set_,nb),4)}, {accs(mb,nb)}")
            if i == 1:
                if vm != -1: o("s_waitcnt vmcnt(%d)" % (opt.get("vm", 16) if vm is None else vm))
                o("s_barrier")
            for ins in fill.get(i, []): o(ins)
    nodma = opt.get("nodma", False); nord = opt.get("noread", False)
    def mkfill(rd, dW, dX):
        f = {}
        def add(i, x): f.setdefault(i, []).append(x)
        for k, x in enumerate(rd):
            if not nord: add(4 + 2 * k, x)
        add(3, dW[0])
        for k, x in enumerate(dW[1:]):
            if not nodma and not opt.get("noW"): add(5 + 8 * k, x)
        add(33, dX[0])
        for k, x in enumerate(dX[1:]):
            if not nodma and not opt.get("noX"): add(35 + 8 * k, x)
        return f
    def dmW(slotoff): return [f"s_add_u32 m0, s{sWm0}, {slotoff}"] + [dmaW(j) for j in range(4)]
    def dmX(half): return [f"s_add_u32 m0, s{sXs}, {half*4096}"] + [dmaX(j, half) for j in range(4)]
    def ext(f, i, L): f.setdefault(i, []).extend(L)
    f = mkfill(reads(1, 1, 1), dmW(0), dmX(1))
    ext(f, 31, [f"s_add_u32 s{sXoff2}, s{sXoff}, 65536", f"s_add_u32 s{sWoff}, s{sWoff}, {32*7168}"])
    ext(f, 60, advX[0:2]);
    ext(f, 52, [f"s_add_u32 s{sXs}, s{sXs}, 32768"])
    ext(f, 61, advX[2:] + [f"s_cmp_eq_u32 s{sXs}, s{sXe}", f"s_cselect_b32 s{sXs}, s{sXm0}, s{sXs}"])
    ext(f, 53, [f"s_add_u32 s{sRs}, s{sRs}, 1", f"s_cmp_eq_u32 s{sRs}, 3"])
    ext(f, 54, [f"s_cselect_b32 s{sXd}, s{sNeg}, s{sPos}", f"s_cselect_b32 s{sRs}, 0, s{sRs}"])
    for m in range(4): ext(f, 55 + m, [f"v_xor_b32 v{vW[m]}, 0x8000, v{vW[m]}"])
    ext(f, 62, [f"v_add_u32 v{vX[0]}, s{sXd}, v{vX[0]}", f"s_cmp_ge_u32 s{sCnt}, 13"])
    ext(f, 63, [f"v_add_u32 v{vX[1]}, s{sXd}, v{vX[1]}", f"s_cselect_b32 s{sX+2}, 0, s{sX+2}"])
    substep(0, f)
    f = mkfill(reads(0, 0, 0), dmW(16384), dmX(0))
    ext(f, 31, advW1[0:2]); ext(f, 37, advW1[2:] + [f"s_xor_b32 s{sWm0}, s{sWm0}, 0x8000"])
    if g1pf == 2:
        ext(f, 55, [TL])
        for i, x in enumerate(ROT): ext(f, 40 + 2 * i if False else 56 + i // 2, [x])
    if g1pf == 3:
        ext(f, 55, [TL])
        ext(f, 39, [f"s_cmp_lt_u32 s{sCnt}, {15 - lead}", "s_cselect_b32 s84, -1, 0"])
        ext(f, 41, [f"s_sub_u32 s85, s{sCnt}, {wd0}", "s_cmp_lt_u32 s85, 7", "s_cselect_b32 s85, -1, 0"])
        ext(f, 45, ["v_and_b32 v20, s84, v24"]); ext(f, 47, ["v_and_or_b32 v20, s85, v25, v20"])
        ext(f, 57, ["v_add_co_u32 v18, vcc, v18, v20"]); ext(f, 58, ["v_addc_co_u32 v19, vcc, 0, v19, vcc"])
    if g1pf == 1: ext(f, 55, ["buffer_load_dword v16, v18, s[84:87], 0 offen"]); ext(f, 57, ["v_add_u32 v18, 1024, v18"])
    ext(f, 62, [f"s_add_u32 s{sCnt}, s{sCnt}, 1", f"s_cmp_lt_u32 s{sCnt}, {15 if F else 16}"])
    ext(f, 63, [f"s_cbranch_scc1 {name}_loop"])
    substep(1, f)
    if F:
        f = F.peel(0)
        for k, x in enumerate(reads(1, 1, 1)): f.setdefault(4 + 2 * k, []).insert(0, x)
        substep(0, f, 0)
        substep(1, F.peel(1), -1)
    if stamp: stamp_mid2(o)
    if pst: F.stamp(8, True)
    if F: F.stamp(2); F.g1_exit(sTT, sFT)
    stm = opt.get("hst", "sc1") if F else ""
    o(f"""
    s_lshr_b32 s36, s{sWave}, 1
    s_lshl_b32 s36, s36, 3
    s_lshl_b32 s37, s{sTT}, 4
    s_add_u32 s36, s36, s37
    s_mul_i32 s36, s36, 112
    s_and_b32 s37, s{sWave}, 1
    s_mul_i32 s37, s37, {4 * mix if mix else 2}
    s_add_u32 s36, s36, s37
    {mixs}
    s_lshr_b32 s37, s38, 6
    s_add_u32 s36, s36, s37
    s_lshl_b32 s36, s36, 10
    s_mov_b32 s38, 0xbfb8aa3b
    s_mov_b32 s39, 0xbfb8aa3b
    s_nop 7
    """)
    T = 2
    n = 0
    for nb in range(8):
        for pr in range(2):
            st = 24 + 4 * (n & 1); n += 1
            gk, gb = acc(2 * pr, nb); uk, ub = acc(4 + 2 * pr, nb)
            E = []
            if gk == "a":
                gt = 32 if accA else 32
                for r in range(8): E.append(f"v_accvgpr_read_b32 v{gt+r}, a{gb+r}")
                gb = gt
            if uk == "a":
                for r in range(8): E.append(f"v_accvgpr_read_b32 v{10+r}, a{ub+r}")
                ub = 10
            for p in range(4): E.append(f"v_pk_mul_f32 {v(T+2*p,2)}, {v(gb+2*p,2)}, s[38:39]")
            for r in range(8): E.append(f"v_exp_f32 v{T+r}, v{T+r}")
            for p in range(4): E.append(f"v_pk_mul_f32 {v(gb+2*p,2)}, {v(gb+2*p,2)}, {v(ub+2*p,2)}")
            for p in range(4): E.append(f"v_pk_add_f32 {v(T+2*p,2)}, {v(T+2*p,2)}, 1.0 op_sel_hi:[1,0]")
            for r in range(8): E.append(f"v_rcp_f32 v{T+r}, v{T+r}")
            E.append("s_nop 0")
            for p in range(4): E.append(f"v_pk_mul_f32 {v(gb+2*p,2)}, {v(gb+2*p,2)}, {v(T+2*p,2)}")
            for p in range(4): E.append(f"v_cvt_pk_bf16_f32 v{st+p}, v{gb+2*p}, v{gb+2*p+1}")
            E.append(f"buffer_store_dwordx4 {v(st,4)}, v{vS}, s[{sH}:{sH+3}], s36 offen offset:{pr*1024} {stm}")
            if F: E = F.epi_merge(n - 1, E)
            for x in E: o(x)
        o(f"s_add_u32 s36, s36, {112*1024}")
    if F:
        F.phase2()
    if stamp: stamp_end(o, sWave, 6)
    o.label(f"{name}_end")
    o("s_endpgm")
    o.label(f"{name}_aux")
    o(f"s_cmp_ge_u32 s2, 256\ns_cbranch_scc1 {name}_end2\ns_sub_u32 s3, s2, 224")
    from aux import aux_body
    if stamp: stamp_begin(o)
    if F: F.stamp(0)
    aux_body(o, name, 3, opt, stmod='sc1' if F else '')
    if F: F.aux_exit()
    if stamp:
        stamp_end(o, 24, 6)
    o.label(f"{name}_end2")
    o("s_endpgm")
    if F: kernel_desc(o, name, 512, 256)
    elif accA: kernel_desc(o, name, 160 + 256, 160)
    else: kernel_desc(o, name, 256 + 160, 256)
    return f"; @launch kernel={name} grid=(256,1,1) block=(256,1,1) lds=163840"
```

```python
from asmlib import *
from gemm1b import gemm1
from conv import Conv, CWSTR, KSTR, UOFF, USTR
from aux import merge, gather_setup
COFF = 163840 - 4 * CWSTR
XOFF2 = 131072
REPL = 65536
HCNT = 32768 + 4096

class Fused:
    def __init__(self, o, name, opt):
        self.o = o; self.name = name; self.opt = opt; self.st = opt.get("fstamp", False)
        self.sWs, self.sK, self.sU, self.sH, self.sAT, self.sO, self.sG, self.sX = 8, 12, 16, 20, 84, 88, 40, 52
        (self.sTT, self.sDP, self.sKH, self.sD, self.sCB, self.sM0, self.sWoff, self.sHoff) = range(27, 35)
        self.sSW = [44, 45]; self.sSH = [46, 47]; self.sHC = 51
        self.vWd = [18, 19, 20, 21]; self.vH = [12, 13, 14, 15]; self.vA = 192
        self.STG = 192
        self.C = Conv(o, self.sD, self.sCB, self.sU, self.sK, self.sAT, 1, 2, 32, ldmod="sc1", stmod="sc1", tmp=(48, 49, 50))
        self.GA = 40; self.SL = 10; self.GB = 44; self.sC = [25, 26, 37, 58, 59]
        self.PW = 5; self.NF = 20
    def stamp(self, i, force=False):
        if self.opt.get("kst") and 0 < i < 9 and not force: return
        if i == 0:
            self.o(f"s_load_dwordx2 s[92:93], s[0:1], {KA['wd']}\ns_load_dwordx4 s[96:99], s[0:1], {KA['out']}")
        if self.st: self.o(f"{'s_memtime' if self.st == 2 else 's_memrealtime'} s[{60+2*i}:{61+2*i}]")
    def spin(self, lbl, vdst, vaddr, sbase, need, first_wait, two=False):
        n = f"{self.name}_{lbl}"
        rd = f"v_readfirstlane_b32 s48, v{vdst}" + (f"\nv_readlane_b32 s50, v{vdst}, 1\ns_min_u32 s48, s48, s50" if two else "")
        return [first_wait, rd, f"s_mov_b32 s49, 0", f"s_cmp_ge_u32 s48, {need}", f"s_cbranch_scc1 {n}_go",
                f"{n}:", f"s_sleep {self.opt.get('sleep', 4)}", f"!global_load_dword v{vdst}, v{vaddr}, s[{sbase}:{sbase+1}] sc1", "s_add_u32 s49, s49, 1",
                "s_waitcnt vmcnt(0)", rd, "s_cmp_ge_u32 s49, 0x40000", f"s_cbranch_scc1 {n}_go",
                f"s_cmp_lt_u32 s48, {need}", f"s_cbranch_scc1 {n}", f"{n}_go:"]
    def emit(self, L):
        for x in L:
            if isinstance(x, str) and x.startswith("!"): self.o.raw("    " + x[1:])
            else: self.o(x)
    def setup(self):
        S = self; t = A()
        rot = S.opt.get("rot2", 1); rev = S.opt.get("rev2", 1)
        t(f"""
        s_and_b32 s3, s2, 7
        s_lshr_b32 s48, s2, 3
        s_and_b32 s49, s3, 1
        s_lshl_b32 s49, s49, 3
        s_and_b32 s50, s48, 7
        s_add_u32 s{S.sTT}, s49, s50
        s_bfe_u32 s35, s3, 0x10001
        s_lshl_b32 s49, s35, 2
        s_lshr_b32 s50, s48, 3
        s_add_u32 s{S.sDP}, s49, s50
        s_lshr_b32 s{S.sKH}, s3, 2
        s_lshl_b32 s{S.sD}, s2, 2
        s_add_u32 s{S.sD}, s{S.sD}, s24
        s_mul_i32 s{S.sCB}, s24, {CWSTR}
        s_add_u32 s{S.sCB}, s{S.sCB}, {COFF}
        s_lshl_b32 s{S.sM0}, s24, 12
        s_add_u32 s48, s{S.sTT}, s{S.sDP}
        s_and_b32 s48, s48, {rot}
        s_and_b32 s35, s35, {rev}
        s_lshl_b32 s49, s48, 1
        s_sub_u32 s{S.sSH[0]}, 1, s49
        s_add_u32 s{S.sSH[1]}, 1, s49
        s_sub_u32 s49, 27, s48
        s_cmp_eq_u32 s35, 1
        s_cselect_b32 s{S.sHoff}, s49, s48
        s_cselect_b32 s49, -1, 1
        s_mul_i32 s{S.sSH[0]}, s{S.sSH[0]}, s49
        s_mul_i32 s{S.sSH[1]}, s{S.sSH[1]}, s49
        s_lshl_b32 s{S.sWoff}, s{S.sHoff}, 17
        s_lshl_b32 s{S.sHoff}, s{S.sHoff}, 11
        s_lshl_b32 s{S.sSW[0]}, s{S.sSH[0]}, 17
        s_lshl_b32 s{S.sSW[1]}, s{S.sSH[1]}, 17
        s_lshl_b32 s{S.sSH[0]}, s{S.sSH[0]}, 11
        s_lshl_b32 s{S.sSH[1]}, s{S.sSH[1]}, 11
        v_lshrrev_b32 v19, 4, v0
        v_lshlrev_b32 v18, 11, v19
        v_bfe_u32 v20, v0, 1, 3
        v_xor_b32 v20, v20, v19
        v_lshlrev_b32 v20, 5, v20
        v_and_b32 v21, 1, v0
        v_lshl_add_u32 v20, v21, 4, v20
        v_add_u32 v18, v18, v20
        s_lshl_b32 s48, s24, 15
        s_lshl_b32 s49, s{S.sDP}, 8
        s_add_u32 s48, s48, s49
        s_mul_i32 s49, s{S.sKH}, {1792*2048}
        s_add_u32 s48, s48, s49
        v_add_u32 v18, s48, v18
        v_xor_b32 v21, 128, v18
        v_add_u32 v19, {1*(8192-1024)}, v21
        v_add_u32 v20, {2*(8192-1024)}, v18
        v_add_u32 v21, {3*(8192-1024)}, v21
        s_add_u32 s56, s6, {WS_FLAG}
        s_addc_u32 s57, s7, 0
        """)
        if "h" in S.opt.get("hot", ""): t("s_mov_b32 s46, 0\ns_mov_b32 s47, 0")
        if "w" in S.opt.get("hot", ""): t("s_mov_b32 s44, 0\ns_mov_b32 s45, 0")
        srd(t, S.sWs, 92, 3584 * 2048)
        c = Conv(t, S.sD, S.sCB, S.sU, S.sK, S.sAT, 1, 2, 32)
        c.srds()
        return [x.strip() for x in t.l if x.strip()]
    def setup2(self):
        S = self
        return [f"s_lshl_b32 s50, s{S.sD}, 11", "s_add_u32 s50, s50, 16"] + gather_setup(50, range(S.GA, S.GA + 4), 56, 66, 67, S.sC)
    def dmaW(self, st):
        S = self
        L = [f"s_add_u32 m0, s{S.sM0}, {(st & 7) * 16384}"]
        L += [f"buffer_load_dwordx4 v{S.vWd[j]}, s[{S.sWs}:{S.sWs+3}], s{S.sWoff} offen offset:{1024*j} lds" for j in range(4)]
        return L, [("tv", f"W{st}"), f"s_add_u32 s{S.sWoff}, s{S.sWoff}, s{S.sSW[st & 1]}"]
    def fh(self, st, nb):
        kd, base = self.hb[st]; return rng(kd, base + 4 * nb, 4)
    def ldH(self, st, nb):
        S = self
        L = [f"buffer_load_dwordx4 {S.fh(st, nb)}, v{S.vH[nb]}, s[{S.sH}:{S.sH+3}], s{S.sHoff} offen sc1"]
        if nb == 3: L += [("tv", f"H{st}"), f"s_add_u32 s{S.sHoff}, s{S.sHoff}, s{S.sSH[st & 1]}"]
        return L
    def sched(self, cp):
        S = self; opt = S.opt; NF = S.NF; P = {}
        def add(p, *x): P.setdefault(p, []).extend(x)
        use = lambda st: st if st < NF else NF + (st - NF) // 2
        pool = [[("v", 208), -9, 20], [("v", 224), -9, 20], [("v", 240), -9, 20]] + [[("a", b), -9, 99] for b in range(240, 63, -16)] + [[("v", 160), 0, 23], [("v", 176), 0, 23]]
        def alloc(k, rel):
            c = [b for b in pool if b[1] <= k and rel <= b[2]]
            if not c: return None
            c.sort(key=lambda b: b[2]); c[0][1] = 999; return c[0]
        S.hb = {}; S.wpath = {st: "d" for st in range(S.PW)}
        wb = {}; wiss = {}; st_ = dict(h=0, w=S.PW * 4)
        def issueW(p, k, prev):
            st, j = divmod(st_["w"], 4)
            if j == 0:
                if k >= max(0, st - 8) and p[2] >= 2: S.wpath[st] = "d"; add(prev, S.dmaW(st)[0][0])
                else:
                    b = alloc(k, use(st) - 1)
                    if b is None: return False
                    S.wpath[st] = "r"; wb[st] = b
            if S.wpath[st] == "d": add(p, S.dmaW(st)[0][1 + j])
            else: add(p, f"buffer_load_dwordx4 {rng(wb[st][0][0], wb[st][0][1] + 4 * j, 4)}, v{S.vWd[j]}, s[{S.sWs}:{S.sWs+3}], s{S.sWoff} offen offset:{1024*j}")
            if j == 3: add(p, *S.dmaW(st)[1]); wiss[st] = k
            st_["w"] += 1; return True
        def issueH(p, k):
            st, nb = divmod(st_["h"], 4)
            if nb == 0:
                b = alloc(k, st + 1 if st < NF else 99)
                if b is None: return False
                S.hb[st] = b[0]
                if st < NF: b[1] = st + 1
            add(p, *S.ldH(st, nb)); st_["h"] += 1; return True
        n = opt.get("NPW", 8) * 4; c0 = opt.get("csig", 0) * 36 + 2; c1 = opt.get("wend", (cp - 1) * 36 + 10)
        for i in range(n):
            g = c0 + (i * (c1 - c0)) // n
            assert issueW(("c", g // 36, g % 36), -5, None)
        slots = [("c", g // 36, g % 36) for g in range(cp * 36, 8 * 36) if g - cp * 36 < opt.get("hburst", 6) or g % opt.get("cpace", 4) == 0]
        lp = opt.get("lpos", [4, 7, 13, 16, 22, 27, 30])
        fp = opt.get("fpos", [1, 10, 19, 25, 26, 28, 29, 31])
        flushed = {}
        for k in range(-1, 24):
            if k >= 0:
                i = 0
                for st in sorted(wb):
                    if st in flushed or k < st - 8 or (wiss.get(st, 99) > k - opt.get("flag", 3) and k < use(st) - 2) or i + 4 > opt.get("frate", 4): continue
                    (kd, base) = wb[st][0]
                    add(("g", k, fp[i]), ("wv", f"W{st}"))
                    for j in range(4): add(("g", k, fp[i + j]), f"ds_write_b128 v{26 + ((st & 7) >> 2)}, {rng(kd, base + 4 * j, 4)} offset:{(st & 3) * 16384 + 1024 * j}")
                    i += 4; flushed[st] = k; wb[st][1] = k + 1
                    assert k <= use(st) - 2, (st, k)
            for p in (slots if k < 0 else [("g", k, g) for g in lp]):
                hd = use(st_["h"] // 4) if st_["h"] < 112 else 999
                wd = use(st_["w"] // 4) - opt.get("wlead", 1) if st_["w"] < 112 else 999
                if hd == wd == 999: break
                prev = (p[0], p[1], p[2] - 1)
                wst, wj = divmod(st_["w"], 4)
                dm = wj > 0 or (k >= max(0, wst - 8) and p[2] >= 2)
                if hd <= wd or not dm: ok = (hd < 999 and issueH(p, k)) or (wd < 999 and (dm or opt.get("regw", 1)) and issueW(p, k, prev))
                else: ok = issueW(p, k, prev) or (hd < 999 and issueH(p, k))
            if opt.get("verbose"): print(k, st_, "flushed", [s_ for s_ in flushed if flushed[s_] == k])
        assert st_["h"] == st_["w"] == 112 and set(flushed) == set(wb)
        return P
    def pf(self):
        S = self; G = []
        G.append([f"s_lshl_b32 s50, s{S.sD}, 12"])
        K = f"s[{S.sK}:{S.sK+3}], 0 offen"; GA, GB = S.GA, S.GB
        G += [[f"buffer_load_dwordx2 {v(GB,2)}, v{GA}, {K} offset:128 sc1"], [f"buffer_load_dwordx2 {v(GB+2,2)}, v{GA}, {K} sc1"],
              [f"buffer_load_dwordx2 {v(GB+4,2)}, v{GA+1}, {K} sc1"], [f"buffer_load_dwordx2 {v(GB+6,2)}, v{GA+2}, {K} sc1"],
              [f"buffer_load_dwordx4 {v(GB+8,4)}, v{GA+3}, {K} sc1"]]
        for c in range(2):
            for j in range(4): G.append([f"buffer_load_dwordx4 {a(S.STG+32+16*c+4*j,4)}, v1, s[{S.sU}:{S.sU+3}], s50 offen offset:{1024*j+16-4*c} sc1"])
        G[-1].append(("tv", "KU"))
        return G
    def peel(self, h):
        S = self; f = {}
        if h == 0:
            for i, x in enumerate(S.setup()): f.setdefault(2 + i // 3, []).append(x)
            assert max(f) < 29
            f[2].insert(0, "v_mov_b32 v23, 128"); f[3] += ["global_load_dword v22, v23, s[98:99] sc1", ("tv", "zd")]
        p = 29 if h == 0 else 4
        for st in ((0, 1, 2) if h == 0 else (3, 4)):
            L, post = S.dmaW(st)
            f.setdefault(p - 1, []).append(L[0])
            for x in L[1:]:
                f.setdefault(p, []).append(x); p += 3 if h == 0 else 6
            f[p - (3 if h == 0 else 6)] += post
        return f
    def repl(self):
        return [f"s_and_b32 s48, s{self.sD}, 63", "s_lshl_b32 s48, s48, 7", f"s_add_u32 s48, s48, {REPL}", "v_mov_b32 v23, s48"]
    def g1_exit(self, sTT1, sFT1):
        o = self.o
        o(f"""
        s_lshl_b32 s{self.sHC}, s{sTT1}, 2
        s_and_b32 s48, s24, 2
        s_add_u32 s{self.sHC}, s{self.sHC}, s48
        s_cmp_ge_u32 s{sFT1}, 14
        s_addc_u32 s{self.sHC}, s{self.sHC}, 0
        s_lshl_b32 s{self.sHC}, s{self.sHC}, 8
        s_add_u32 s{self.sHC}, s{self.sHC}, {HCNT}
        """)
        self.emit(self.spin("sz", 22, 23, 98, 128, ("wv", "zd")) + self.repl())
        self.G = self.pf()
    def late(self):
        o = self.o; S = self
        o(f"""
        {S.name}_late:
        s_waitcnt vmcnt(0)
        v_mov_b32 v24, s{S.sHC}
        v_mov_b32 v25, 1
        s_mov_b64 exec, 1
        global_atomic_add v24, v25, s[56:57] sc1
        s_mov_b64 exec, -1
        s_mov_b32 s{S.sHC}, 0
        s_mov_b32 s{S.sK+2}, {1024 * 8192}
        s_mov_b32 s{S.sU+2}, {1024 * 4096 + 16}
        {S.name}_late2:
        """)
        S.emit(["global_load_dword v22, v23, s[56:57] sc1"] + S.spin("sb", 22, 23, 56, 32, "s_waitcnt vmcnt(0)"))
        for g in S.pf():
            for x in g: o(x)
        o(f"s_waitcnt vmcnt(0)\ns_branch {S.name}_p2")
    def epi_merge(self, n, E):
        pb = self.opt.get("pollblk", 4)
        if n == pb - 2: self.emit(["global_load_dword v22, v23, s[56:57] sc1", ("tv", "auxp")])
        if n == 3: E = merge(E, self.setup2(), 8)
        if n < pb: return E
        if n == pb:
            self.emit([("wv", "auxp"), "v_readfirstlane_b32 s48, v22", "s_nop 0", "s_cmp_ge_u32 s48, 32",
                       f"s_cselect_b32 s{self.sK+2}, s{self.sK+2}, 0", f"s_cselect_b32 s{self.sU+2}, s{self.sU+2}, 0"])
        k = self.opt.get("pfrate", 3)
        take, self.G = self.G[:k], self.G[k:]
        out = []; step = len(E) // (k + 1)
        for i, x in enumerate(E):
            out.append(x)
            if i % step == step - 1 and take and not E[i + 1].startswith("s_nop") and not x.startswith("s_nop"): out += take.pop(0)
        for g in take: out += g
        return [x for x in out if not any(isinstance(x, str) and p in x for p in self.opt.get('edrop', []))]
    def aux_zero(self):
        self.o("v_mov_b32 v58, 128\nv_mov_b32 v57, 1\ns_mov_b64 exec, 1\nglobal_atomic_add v58, v57, s[98:99] sc1\ns_mov_b64 exec, -1")
    def aux_pre(self): self.o("global_load_dword v57, v58, s[98:99] sc1")
    def aux_exit(self):
        o = self.o; S = self
        o(f"""
        s_add_u32 s56, s6, {WS_FLAG}
        s_addc_u32 s57, s7, 0
        v_lshlrev_b32 v23, 7, v0
        v_add_u32 v23, {REPL}, v23
        v_mov_b32 v22, 1
        v_lshlrev_b32 v1, 4, v0
        s_mov_b32 s{S.sHC}, 0
        s_waitcnt vmcnt(0)
        """)
        S.emit(S.spin("sy", 57, 58, 98, 128, "s_nop 0"))
        o(f"""
        s_barrier
        s_cmp_lg_u32 s24, 0
        s_cbranch_scc1 {S.name}_ax1
        global_atomic_add v23, v22, s[56:57] sc1
        {S.name}_ax1:
        """)
        S.stamp(1); S.stamp(2)
        for x in S.setup() + S.repl(): o(x)
        srd(o, S.sH, 6, WS_H_SIZE)
        for st in range(S.PW):
            L, post = S.dmaW(st)
            S.emit(L[:1] + ["s_nop 0"] + L[1:] + post)
        for x in S.setup2(): o(x)
        o(f"s_branch {S.name}_late2")
    def phase2(self):
        o = self.o; S = self; C = S.C; opt = S.opt; name = S.name
        assert not S.G
        o(f"s_cmp_eq_u32 s{S.sK+2}, 0\ns_cbranch_scc1 {name}_late")
        o(("wv", "KU"))
        o.label(f"{name}_p2")
        S.stamp(3)
        o(f"v_add_u32 v{C.vOR}, s{S.sCB}, v1")
        UW = [f"ds_write_b128 v{C.vOR}, {a(S.STG+32+16*q+4*j,4)} offset:{off+1024*j}" for q, off in enumerate([UOFF + 64, UOFF + USTR + 64]) for j in range(4)]
        GB, SL, OB, sC = S.GB, 56, 68, S.sC
        D = [GB + 8, GB + 9, GB + 10, GB + 6, GB + 7]
        def pm(d, hi, lo, sel): return f"v_perm_b32 v{d}, v{hi}, v{lo}, {sel}"
        L = []
        for c in range(2):
            for kb in range(4):
                ob = OB + 16 * c + 4 * kb
                if kb < 2: L += [pm(ob + j, GB + 2 * kb + 1, GB + 2 * kb, f"v{SL+q}") for j, q in enumerate((0, 2 + c, 1, 1))]
                elif kb == 2: L += [pm(ob + j, GB + 5, GB + 4, f"s{sC[q]}") for j, q in enumerate((3, 1, 4, 2) if c else (0, 1, 2, 2))]
                else: L += [pm(ob + j, D[4 - j], D[3 - j], f"v{SL+4+3*c+q}") for j, q in enumerate((0, 1, 0, 2))]
                L.append(f"ds_write_b128 v{C.vOR}, {v(ob,4)} offset:{KSTR*c+1024*kb}")
        for x in merge(L, UW, 0): o(x)
        C.addrs(); C.zeroK(); C.zeroU()
        o(f"v_mov_b32 v24, s{S.sHC}\nv_mov_b32 v25, 1")
        t = A()
        t(f"""
        s_and_b32 s36, s24, 1
        s_lshr_b32 s37, s24, 1
        s_lshl_b32 s38, s{S.sTT}, 3
        s_lshl_b32 s39, s36, 2
        s_add_u32 s38, s38, s39
        s_lshl_b32 s39, s37, 1
        s_add_u32 s35, s38, s39
        s_xor_b32 s38, s35, 2
        s_mul_i32 s39, s{S.sKH}, 56
        s_add_u32 s39, s39, s37
        s_mul_i32 s100, s35, 112
        s_mul_i32 s38, s38, 112
        s_add_u32 s100, s100, s39
        s_add_u32 s38, s38, s39
        s_lshl_b32 s100, s100, 10
        s_lshl_b32 s38, s38, 10
        v_add_u32 v{S.vH[0]}, s100, v1
        v_add_u32 v{S.vH[2]}, s38, v1
        v_add_u32 v{S.vH[1]}, {112*1024}, v{S.vH[0]}
        v_add_u32 v{S.vH[3]}, {112*1024}, v{S.vH[2]}
        v_lshrrev_b32 v16, 2, v0
        v_lshlrev_b32 v17, 8, v16
        v_and_b32 v16, 7, v16
        s_lshl_b32 s38, s{S.sKH}, 2
        v_xor_b32 v16, s38, v16
        v_lshl_add_u32 v17, v16, 5, v17
        v_and_b32 v16, 3, v0
        v_lshl_add_u32 v17, v16, 3, v17
        s_lshl_b32 s38, s37, 13
        v_add_u32 v{S.vA}, s38, v17
        s_lshl_b32 s38, s{S.sTT}, 1
        s_add_u32 s38, s38, s{S.sKH}
        s_lshl_b32 s38, s38, 8
        s_add_u32 s38, s38, {HCNT}
        v_mov_b32 v23, s38
        v_add_u32 v26, s{S.sM0}, v1
        v_add_u32 v27, 65536, v26
        """)
        for m in range(1, 8): t(f"v_xor_b32 v{S.vA+m}, {32*m}, v{S.vA}")
        for m in range(8): t(f"v_xor_b32 v{S.vA+8+m}, {32*m + 65536}, v{S.vA}")
        srd(t, S.sO, 96, 2048 * 2048)
        t(f"s_add_u32 s4, s6, {WS_G}\ns_addc_u32 s5, s7, 0"); srd(t, S.sG, 4, 2048 * 4)
        t(f"s_add_u32 s4, s6, {WS_X}\ns_addc_u32 s5, s7, 0"); srd(t, S.sX, 4, 256 * 32768)
        T = []
        for x in [x.strip() for x in t.l if x.strip()]:
            if x.startswith("s_addc"): T[-1] += "\n" + x
            else: T.append(x)
        fills = {}
        for i, x in enumerate(T): fills.setdefault((2 + i // 36, i % 36), []).append(x)
        def sig_h():
            o(f"""
            s_waitcnt vmcnt(0)
            s_cmp_eq_u32 s{S.sHC}, 0
            s_cbranch_scc1 {name}_nh
            s_mov_b64 exec, 1
            """)
            o.raw("    global_atomic_add v24, v25, s[56:57] sc1")
            o(f"s_mov_b64 exec, -1\n{name}_nh:")
            S.stamp(1)
        cs = opt.get("csig", 0); cp = opt.get("cpoll", 6)
        fills.setdefault((cp - 1, 20), []).extend(["s_cmp_lg_u32 s24, 0", f"s_cbranch_scc1 {name}_nq", "!global_load_dword v22, v23, s[56:57] sc1", f"{name}_nq:"])
        S.P = S.sched(cp)
        for (kd, c, g), L in S.P.items():
            if kd == "c": fills.setdefault((c, g), []).extend(L)
        def poll_h():
            S.emit(["s_cmp_lg_u32 s24, 0", f"s_cbranch_scc1 {name}_sh_go"] + S.spin("sh", 22, 23, 56, 28, "s_waitcnt vmcnt(0)") + ["s_barrier"]); S.stamp(4)
        C.main(hooks={cs: sig_h, cp: poll_h}, fills=fills)
        S.gemm2()
    def gemm2(self):
        o = self.o; S = self; C = S.C; opt = S.opt; name = S.name
        ACC = 32
        def acc(mb, nb): return ACC + (((mb >> 2) * 2 + (nb >> 1)) * 8 + (nb & 1) * 4 + (mb & 3)) * 4
        def fa(st, i): return st * 32 + i * 4
        NF = 20
        steps = []
        for s_ in range(NF): steps.append(([(s_, mb) for mb in range(8)], [(mb, s_, mb, nb) for nb in range(4) for mb in range(8)]))
        for half in (1, 0):
            for p in range(4):
                fr = [(NF + 2 * p + e, 4 * half + m) for e in range(2) for m in range(4)]
                if p < 3: mf = [(4 * e + m, NF + 2 * p + e, 4 * half + m, nb) for e in range(2) for nb in range(4) for m in range(4)]
                else: mf = [(4 * e + m, NF + 2 * p + e, 4 * half + m, nb) for hn in (1, 0) for e in range(2) for nb in (2 * hn, 2 * hn + 1) for m in range(4)]
                steps.append((fr, mf))
        def reads(k):
            return [f"ds_read_b64_tr_b16 {a(fa(k & 1, i) + 2 * r2, 2)}, v{S.vA + 8 * ((st & 7) >> 2) + mb} offset:{(st & 3) * 16384 + r2 * 4096}"
                    for i, (st, mb) in enumerate(steps[k][0]) for r2 in range(2)]
        for x in reads(0): o(x)
        C.out()
        o(("tv", "AT"))
        S.stamp(5)
        XR = 160; PR = 208; ATF = 240; SEL = 24; OMG = [2, 3]; vG = [4, 5]
        vXW, vXR_, vFo, vFp, vAT, vOut, vCn = 6, 7, 8, 9, 10, 11, 16
        sDT = 35
        t = A()
        t(f"""
        s_lshr_b32 s36, s2, 4
        s_lshl_b32 s36, s36, 8
        s_add_u32 s36, s36, 32768
        v_mov_b32 v{vCn}, s36
        s_lshl_b32 s36, s2, 2
        s_add_u32 s36, s36, s24
        s_lshl_b32 s37, s36, 5
        v_mov_b32 v{vFo}, s37
        s_xor_b32 s37, s37, {4 << 7}
        v_mov_b32 v{vFp}, s37
        s_lshl_b32 s100, s36, 13
        s_xor_b32 s101, s100, {4 << 15}
        s_lshl_b32 s36, s24, 13
        s_add_u32 s36, s36, {XOFF2}
        v_add_u32 v{vXW}, s36, v1
        v_xor_b32 v{vXR_}, {2 << 13}, v{vXW}
        s_lshl_b32 s{sDT}, s{S.sDP}, 1
        s_add_u32 s{sDT}, s{sDT}, s{S.sKH}
        s_lshl_b32 s36, s{sDT}, 8
        s_add_u32 s36, s36, 32768
        v_mov_b32 v23, s36
        s_and_b32 s36, s24, 1
        s_lshl_b32 s36, s36, 7
        s_lshr_b32 s37, s24, 1
        s_lshl_b32 s37, s37, 6
        s_add_u32 s36, s36, s37
        s_lshl_b32 s37, s{S.sTT}, 8
        s_add_u32 s37, s37, s36
        s_lshl_b32 s38, s{sDT}, 18
        s_add_u32 s38, s38, s37
        s_lshl_b32 s39, s37, 1
        s_lshl_b32 s25, s37, 10
        s_lshl_b32 s36, s{sDT}, 7
        s_add_u32 s25, s25, s36
        s_add_u32 s26, s25, {16*2048}
        v_and_b32 v30, 15, v0
        v_lshrrev_b32 v31, 4, v0
        v_lshlrev_b32 v{vAT}, 12, v30
        v_lshl_add_u32 v{vAT}, v31, 4, v{vAT}
        v_lshlrev_b32 v17, 2, v30
        v_lshlrev_b32 v{vOut}, 11, v30
        v_and_b32 v28, 1, v31
        buffer_load_dword v{vG[0]}, v17, s[{S.sG}:{S.sG+3}], s39 offen sc1
        v_lshl_add_u32 v{vOut}, v28, 5, v{vOut}
        v_lshrrev_b32 v28, 1, v31
        buffer_load_dword v{vG[1]}, v17, s[{S.sG}:{S.sG+3}], s39 offen offset:64 sc1
        v_lshl_add_u32 v{vOut}, v28, 4, v{vOut}
        v_lshlrev_b32 v31, 3, v31
        v_sub_u32 v17, v30, v31
        """)
        SET = [x.strip() for x in t.l if x.strip()] + [("tv", "G")]
        NSET = len(SET)
        SELL = [("wv", "G")]
        for nb in range(2):
            g = vG[nb]
            SELL += [x.strip() for x in f"""v_sub_f32 v{OMG[nb]}, 1.0, v{g}
            v_add_u32 v30, {16*nb}, v17
            v_cvt_pk_bf16_f32 v{OMG[nb]}, v{OMG[nb]}, v{OMG[nb]}
            v_and_b32 v31, 1, v30
            v_lshlrev_b32 v{OMG[nb]}, 16, v{OMG[nb]}
            v_cmp_eq_u32 vcc, 1, v31
            v_lshrrev_b32 v31, 16, v{g}
            v_and_b32 v{g}, 0xffff0000, v{g}
            v_ashrrev_i32 v30, 1, v30
            v_cndmask_b32 v{g}, v31, v{g}, vcc""".split("\n")]
            for q in range(4): SELL += [f"v_cmp_eq_u32 vcc, {q}, v30", f"v_cndmask_b32 v{XR+32+16+4*nb+q if False else 248+4*nb+q}, 0, v{g}, vcc"]
        SELR = 248
        ATR = 224
        seen = set()
        for k, (fr, mf) in enumerate(steps):
            if k in opt.get("kst", []): S.stamp(1 + opt["kst"].index(k), True)
            fill = {}
            def add(i, *x): fill.setdefault(i, []).extend(x)
            stages = sorted(set(x[1] for x in mf))
            if k < 24: o(("wv",) + tuple(f"H{s_}" for s_ in stages))
            o("s_waitcnt lgkmcnt(0)")
            ka = opt.get("ka", 5)
            if k < 23:
                tg = tuple(f"W{s_}" for s_, _ in steps[k + 1][0] if S.wpath[s_] == "d" and s_ >= S.PW) + (("AT",) if k == ka else ())
                if tg: add(0, ("wv",) + tg)
                add(0, "s_barrier")
            rpos = [2 + (i * 3) // 2 for i in range(16)]
            if k == 23: rpos = list(range(16))
            if k == 24: rpos = [9 + i for i in range(16)]
            if k in (24, 25): add(0, "s_barrier")
            if k + 1 < 28:
                for i, x in enumerate(reads(k + 1)): add(rpos[i], x)
            for (kd, kk, g), L in S.P.items():
                if kd == "g" and kk == k: add(g, *L)
            if k == ka:
                add(1, "s_cmp_lg_u32 s24, 0", f"s_cbranch_scc1 {name}_na", "s_mov_b64 exec, 1", f"!global_atomic_add v{vCn}, v25, s[56:57] sc1", "s_mov_b64 exec, -1", f"{name}_na:")
            kp = opt.get("kp", 21)
            if k == kp: add(10, "global_load_dword v22, v23, s[56:57] sc1", ("tv", "ap"))
            if k == kp + 1:
                assert len(SET) < 12
                add(19, *S.spin("st", 22, 23, 56, 16, ("wv", "ap")))
                for mb in range(4):
                    add(22 + 3 * mb, f"buffer_load_dwordx4 {v(ATR+4*mb,4)}, v{vAT}, s[{S.sAT}:{S.sAT+3}], s38 offen sc1", "s_add_u32 s38, s38, 65536")
            if k in (23, 27):
                q = 3 if k == 23 else 1
                for i in range(8): add(17 + 2 * i, f"ds_write_b128 v{vXW}, {v(ACC+32*q+4*i,4)} offset:{1024*i}")
            if k == 24:
                for i in range(8): add(1 + i, f"ds_read_b128 {v(XR+4*i,4)}, v{vXR_} offset:{1024*i}", ("tl", f"x{i}"))
            if k in (24, 25):
                sp = opt.get("xsp", 2)
                for i in range(8):
                    b = ACC + 64 + 4 * i; p = 12 + sp * i
                    L = [[("wl", f"x{i}")] * (p < 32) + [f"v_add_f32 v{b+r}, v{b+r}, v{XR+4*i+r}" for r in range(2)], [f"v_add_f32 v{b+r}, v{b+r}, v{XR+4*i+r}" for r in range(2, 4)],
                         [f"buffer_store_dwordx4 {v(b,4)}, v1, s[{S.sX}:{S.sX+3}], s100 offen offset:{1024*(i&3)} sc1"] + ["s_add_u32 s100, s100, 4096"] * (i == 3) + [("tv", "XS")]]
                    for j, x in enumerate(L):
                        if (p + j) // 32 == k - 24: add((p + j) % 32, *x)
            fk, fp = opt.get("flagpos", (27, 8))
            if k == fk:
                add(fp, ("wv", "XS"), "s_mov_b64 exec, 1", f"global_store_dword v{vFo}, v25, s[56:57] sc1", "s_mov_b64 exec, -1")
            if k == 27: add(opt.get("ppos", 30), f"global_load_dword v22, v{vFp}, s[56:57] sc1")
            BG = SET if SET else SELL
            if k == 23: assert not SET
            for i in range(1, 32):
                if i not in fill and BG and (k >= opt.get("kbg", 16) or len(SET) > NSET - 4) and not (BG is SELL and k < 25):
                    add(i, BG.pop(0))
                    while BG and isinstance(fill[i][-1], tuple) or (BG and isinstance(BG[0], tuple) and BG[0][0] == "tv"): add(i, BG.pop(0))
            for i, (fi, st, mb, nb) in enumerate(mf):
                c = v(acc(mb, nb), 4) if (mb, nb) in seen else "0"
                seen.add((mb, nb))
                o(f"v_mfma_f32_16x16x32_bf16 {v(acc(mb,nb),4)}, {a(fa(k&1,fi),4)}, {S.fh(st,nb)}, {c}")
                S.emit([x for x in fill.get(i, []) if not any(isinstance(x, str) and x.startswith(p) for p in opt.get("g2drop", []))])
            if k == 23: S.stamp(6)
        S.stamp(7)
        o("s_waitcnt lgkmcnt(0)\ns_barrier")
        for i in range(8): o(f"ds_read_b128 {v(XR+4*i,4)}, v{vXR_} offset:{1024*i}"); o(("tl", f"y{i}"))
        assert not SELL
        S.emit(S.spin("sp", 22, vFp, 56, 1, "s_waitcnt vmcnt(0)"))
        P2 = 96
        for i in range(8):
            o(f"buffer_load_dwordx4 {v(P2+4*i,4)}, v1, s[{S.sX}:{S.sX+3}], s101 offen offset:{1024*(i&3)} sc1"); o(("tv", f"p{i}"))
            if i == 3: o("s_add_u32 s101, s101, 4096")
        S.stamp(8)
        o("s_waitcnt lgkmcnt(0)")
        for i in range(8):
            b = ACC + 4 * i
            for r in range(4): o(f"v_add_f32 v{b+r}, v{b+r}, v{XR+4*i+r}")
            for r in range(4): o(f"v_mul_f32 v{b+r}, v{OMG[i>>2]}, v{b+r}")
        o("s_nop 1")
        for nb in range(2):
            for mb in range(4):
                o(f"v_mfma_f32_16x16x32_bf16 {v(acc(mb,nb),4)}, {v(ATR+4*mb,4)}, {v(SELR+4*nb,4)}, {v(acc(mb,nb),4)}")
        o("s_nop 7")
        for nb in range(2):
            for pr in range(2):
                b = acc(2 * pr, nb); d = XR + 4 * (2 * nb + pr); i = 4 * nb + 2 * pr
                o(("wv", f"p{i+1}"))
                for r in range(8): o(f"v_fma_f32 v{b+r}, v{P2+4*i+r}, v{OMG[nb]}, v{b+r}")
                for q in range(4): o(f"v_cvt_pk_bf16_f32 v{d+q}, v{b+2*q}, v{b+2*q+1}")
                o(f"s_nop 1\nv_permlane16_swap_b32 v{d}, v{d+2}\nv_permlane16_swap_b32 v{d+1}, v{d+3}")
                o(f"buffer_store_dwordx4 {v(d,4)}, v{vOut}, s[{S.sO}:{S.sO+3}], s{25+nb} offen offset:{64*pr}")
        if S.st:
            o("s_waitcnt vmcnt(0)"); S.stamp(9)
            o(f"""
            s_add_u32 s4, s6, {WS_STAMP}
            s_addc_u32 s5, s7, 0
            s_lshl_b32 s36, s2, 2
            s_add_u32 s36, s36, s24
            s_lshl_b32 s36, s36, 6
            v_mov_b32 v1, s36
            s_waitcnt lgkmcnt(0)
            """)
            for i in range(12): o(f"v_mov_b32 v{4+i}, s{60+2*min(i,9)}")
            for i in range(3): o(f"global_store_dwordx4 v1, {v(4+4*i,4)}, s[4:5] offset:{16*i}")
            if "dstamp" in opt:
                o(f"s_cmp_lg_u32 s36, {opt['dstamp'] * 256}\ns_cbranch_scc1 {name}_nd\nv_mov_b32 v1, 16")
                for i in range(1, 12): o(f"v_subrev_u32 v{4+i}, s60, v{4+i}")
                for i in range(3): o(f"global_store_dwordx4 v1, {v(4+4*i,4)}, s[98:99] offset:{16*i}")
                o(f"{name}_nd:")

def fused(o, name="fused_kernel", stamp=False, opt=None):
    opt = dict(opt or {}); opt["stamp"] = False; opt["ct"] = 1; opt.setdefault("pf", 3); opt.setdefault("pollblk", 8); opt.setdefault("NPW", 10); opt.setdefault("frate", 8); opt.setdefault("g1pf", 3); opt.setdefault("lead", 4); opt.setdefault("wd0", 3)
    return gemm1(o, name, False, opt, F=Fused(o, name, opt))
```

```python
from asmlib import *

def stamp_begin(o):
    o("s_memtime s[60:61]\ns_memrealtime s[68:69]")
def stamp_mid1(o): o("s_memtime s[62:63]\ns_memrealtime s[72:73]")
def stamp_mid2(o): o("s_memtime s[64:65]\ns_memrealtime s[74:75]")
def stamp_end(o, sWave, ws_lo, off=0, nw_shift=2):
    o(f"""
    s_waitcnt vmcnt(0)
    s_memtime s[66:67]
    s_memrealtime s[70:71]
    s_waitcnt lgkmcnt(0)
    s_sub_u32 s70, s70, s68
    s_sub_u32 s62, s62, s60
    s_sub_u32 s64, s64, s60
    s_sub_u32 s66, s66, s60
    s_add_u32 s76, s{ws_lo}, {WS_STAMP + off}
    s_addc_u32 s77, s{ws_lo+1}, 0
    s_lshl_b32 s78, s2, {nw_shift}
    s_add_u32 s78, s78, s{sWave}
    s_lshl_b32 s78, s78, 5
    s_sub_u32 s72, s72, s68
    s_sub_u32 s74, s74, s68
    v_mov_b32 v8, s72
    v_mov_b32 v9, s74
    v_mov_b32 v10, s70
    v_mov_b32 v11, s68
    v_mov_b32 v2, s62
    v_mov_b32 v3, s64
    v_mov_b32 v4, s66
    s_getreg_b32 s79, hwreg(HW_REG_XCC_ID)
    s_getreg_b32 s80, hwreg(HW_REG_HW_ID)
    s_and_b32 s79, s79, 15
    s_lshl_b32 s80, s80, 4
    s_or_b32 s79, s79, s80
    v_mov_b32 v5, s79
    v_mov_b32 v6, s78
    global_store_dwordx4 v6, v[2:5], s[76:77]
    global_store_dwordx4 v6, v[8:11], s[76:77] offset:16
    """)

def gemm1(o, name="gemm1_kernel", stamp=False, opt=None, F=None):
    opt = opt or {}
    kernel_begin(o, name)
    XB = 65536
    accA = opt.get("accA", False)
    def acc(mb, nb):
        i = nb * 8 + mb
        if accA: return ("a", 4 * i)
        if i < 56: return ("v", 32 + 4 * i)
        return ("a", 128 + 4 * (i - 56))
    def accs(mb, nb):
        k, b = acc(mb, nb); return rng(k, b, 4)
    fk = "v" if accA else "a"
    fo = 32 if accA else 0
    def fa(set_, mb): return fo + set_ * 64 + mb * 4
    def fb(set_, nb): return fo + set_ * 64 + 32 + nb * 4
    vW = [2, 3, 4, 5]
    vX = [6, 7]
    vWd = [8, 9, 10, 11]
    vXd = [12, 13, 14, 15]
    vS = 1
    sX, sWs, sH = 8, 12, 20
    sWave, sTT, sFT = 24, 25, 26
    sWoff, sXoff, sXoff2 = 27, 28, 29
    sWm0, sXm0 = 30, 31
    sCnt, sXd, sXs, sRs = 32, 33, 34, 35
    sXe, sNeg, sPos = 44, 45, 46
    sRot, sTx, sTw, sTmp = 47, 48, 49, 50
    rotm = opt.get('rot', 1); rl = opt.get('rotlate', 0)
    if opt.get("afirst", 1): o(f"s_cmp_ge_u32 s2, 256\ns_cbranch_scc1 {name}_end\ns_sub_u32 s2, s2, 32\ns_and_b32 s2, s2, 255")
    o(f"""
    s_cmp_ge_u32 s2, {opt.get("nwg", 224)}
    s_cbranch_scc1 {name}_aux
    s_load_dwordx2 s[4:5], s[0:1], {KA['u']}
    s_load_dwordx4 s[40:43], s[0:1], {KA['wg']}
    s_load_dwordx2 s[6:7], s[0:1], {KA['ws']}
    """)
    if stamp: stamp_begin(o)
    if F: F.stamp(0)
    o(f"""
    v_lshrrev_b32 v1, 6, v0
    v_and_b32 v0, 63, v0
    s_and_b32 s3, s2, 7
    v_readfirstlane_b32 s{sWave}, v1
    s_lshr_b32 s36, s2, 3
    s_and_b32 s37, s3, 1
    s_lshl_b32 s37, s37, 2
    s_and_b32 s38, s36, 3
    s_add_u32 s{sTT}, s37, s38
    s_lshr_b32 s37, s3, 1
    s_mul_i32 s37, s37, 7
    s_lshr_b32 s38, s36, 2
    s_add_u32 s{sFT}, s37, s38
    v_lshlrev_b32 v{vS}, 4, v0
    """)
    mix = opt.get("mix", 0)
    if mix == 1:
        mixv = "v_and_b32 v19, 128, v18\nv_add_u32 v18, v18, v19"
        mixs = f"s_and_b32 s39, s{sFT}, 1\ns_lshl_b32 s39, s39, 7\ns_lshl_b32 s38, s{sFT}, 8\ns_sub_u32 s38, s38, s39"
    elif mix == 7:
        mixv = f"v_and_b32 v19, 128, v18\nv_mul_u32_u24 v19, 13, v19\nv_add_u32 v18, v18, v19"
        mixs = f"s_cmp_ge_u32 s{sFT}, 14\ns_cselect_b32 s39, 14, 0\ns_add_u32 s38, s{sFT}, s39\ns_lshl_b32 s38, s38, 7"
    else:
        mixv = "s_nop 0"; mixs = f"s_lshl_b32 s38, s{sFT}, 8"
    o(f"""
    v_lshrrev_b32 v17, 4, v0
    v_and_b32 v18, 15, v0
    v_lshlrev_b32 v19, 2, v17
    v_xor_b32 v18, v18, v19
    v_lshlrev_b32 v18, 4, v18
    {mixv}
    v_mul_u32_u24 v19, 7168, v17
    v_add_u32 v18, v18, v19
    s_and_b32 s36, s{sWave}, 1
    s_mul_i32 s37, s36, {16*7168}
    {mixs}
    s_add_u32 s37, s37, s38
    v_add_u32 v{vWd[0]}, s37, v18
    v_xor_b32 v18, 32, v{vWd[0]}
    v_add_u32 v{vWd[1]}, {1*(28672-1024)}, v{vWd[0]}
    v_add_u32 v{vWd[2]}, {2*(28672-1024)}, v18
    v_add_u32 v{vWd[3]}, {3*(28672-1024)}, v18
    """)
    o(f"""
    v_lshrrev_b32 v18, 3, v0
    v_lshlrev_b32 v18, 11, v18
    v_and_b32 v19, 7, v0
    v_xor_b32 v19, v19, v17
    v_lshlrev_b32 v19, 4, v19
    v_add_u32 v18, v18, v19
    s_lshl_b32 s37, s{sTT}, 8
    s_lshl_b32 s38, s{sWave}, 6
    s_add_u32 s37, s37, s38
    s_lshl_b32 s37, s37, 11
    v_add_u32 v{vXd[0]}, s37, v18
    v_xor_b32 v18, 64, v{vXd[0]}
    v_add_u32 v{vXd[1]}, {8*2048-1024}, v18
    v_add_u32 v{vXd[2]}, {2*(8*2048-1024)}, v{vXd[0]}
    v_add_u32 v{vXd[3]}, {3*(8*2048-1024)}, v18
    """)
    o(f"""
    v_lshlrev_b32 v18, 11, v17
    v_bfe_u32 v19, v0, 2, 2
    v_lshlrev_b32 v20, 8, v19
    v_add_u32 v18, v18, v20
    v_lshlrev_b32 v19, 1, v19
    v_and_b32 v20, 1, v17
    v_xor_b32 v19, v19, v20
    s_lshl_b32 s37, s36, 2
    v_xor_b32 v19, s37, v19
    v_lshlrev_b32 v19, 5, v19
    v_add_u32 v18, v18, v19
    v_and_b32 v19, 3, v0
    v_lshlrev_b32 v19, 3, v19
    v_add_u32 v{vW[0]}, v18, v19
    """)
    for m in range(1, 4): o(f"v_xor_b32 v{vW[m]}, {32*m}, v{vW[0]}")
    o(f"""
    s_lshr_b32 s37, s{sWave}, 1
    s_lshl_b32 s37, s37, 14
    s_add_u32 s37, s37, {XB}
    v_and_b32 v18, 15, v0
    v_lshlrev_b32 v18, 7, v18
    v_add_u32 v18, s37, v18
    v_bfe_u32 v20, v0, 1, 3
    v_xor_b32 v19, v17, v20
    v_lshlrev_b32 v19, 4, v19
    v_add_u32 v{vX[0]}, v18, v19
    v_xor_b32 v{vX[1]}, 64, v{vX[0]}
    """)
    pst = F and opt.get("pst")
    if pst and opt.get("pmode", 1) < 4: F.stamp(1, True)
    o("s_waitcnt lgkmcnt(0)")
    if pst and opt.get("pmode", 1) < 4: F.stamp(2, True)
    srd(o, sX, 4, 2048 * 2048)
    o(f"""
    s_cmp_lt_u32 s{sWave}, 2
    s_cselect_b32 s40, s40, s42
    s_cselect_b32 s41, s41, s43
    """)
    srd(o, sWs, 40, 1024 * 7168)
    srd(o, sH, 6, WS_H_SIZE)
    o(f"""
    s_add_u32 s{sRot}, s{sTT}, s{sFT}
    s_and_b32 s{sRot}, s{sRot}, {rotm}
    s_mov_b32 s{sTx}, 0
    s_mov_b32 s{sTw}, 0
    s_lshl_b32 s{sXoff}, s{sRot if not rl else sTx}, 7
    s_mul_i32 s{sWoff}, s{sRot if not rl else sTx}, {64*7168}
    s_lshl_b32 s{sWm0}, s{sWave}, 12
    s_lshl_b32 s{sXm0}, s{sWave}, 13
    s_add_u32 s{sXm0}, s{sXm0}, {XB}
    """)
    advW0 = [f"s_add_u32 s{sWoff}, s{sWoff}, {32*7168}"]
    advW1 = [f"s_add_u32 s{sTw}, s{sTw}, 1", f"s_xor_b32 s{sTmp}, s{sTw}, s{sRot}", f"s_mul_i32 s{sWoff}, s{sTmp}, {64*7168}"]
    advX = [f"s_add_u32 s{sTx}, s{sTx}, 1", f"s_xor_b32 s{sTmp}, s{sTx}, s{sRot}", f"s_lshl_b32 s{sXoff}, s{sTmp}, 7"]
    def dmaW(j): return f"buffer_load_dwordx4 v{vWd[j]}, s[{sWs}:{sWs+3}], s{sWoff} offen offset:{1024*j} lds"
    def dmaX(j, half): return f"buffer_load_dwordx4 v{vXd[j]}, s[{sX}:{sX+3}], s{sXoff2 if half else sXoff} offen offset:{1024*j} lds"
    def grpW(slot):
        o(f"s_add_u32 m0, s{sWm0}, {slot*16384}")
        o("s_nop 0")
        for j in range(4): o(dmaW(j))
        for x in (advW1 if slot & 1 else advW0): o(x.replace(f", s{sRot}", ", 0") if rl and slot == 1 else x)
    def grpX(slot, half):
        o(f"s_add_u32 m0, s{sXm0}, {slot*32768 + half*4096}")
        o(f"s_add_u32 s{sXoff2}, s{sXoff}, 65536")
        for j in range(4): o(dmaX(j, half))
        if half:
            for x in advX: o(x.replace(f", s{sRot}", ", 0") if rl and slot == 0 else x)
    ZI = []
    for mb in range(8):
        for nb in range(8):
            k, b = acc(mb, nb)
            for r in range(4):
                ZI.append(f"v_mov_b32 v{b+r}, 0" if k == "v" else f"v_accvgpr_write_b32 a{b+r}, 0")
    pm = opt.get("pmode", 1)
    def zi(n):
        for _ in range(min(n, len(ZI))): o(ZI.pop(0))
    G = [lambda: grpX(0, 0), lambda: grpW(0), lambda: grpX(0, 1), lambda: grpW(1), lambda: grpX(1, 0), lambda: grpW(2), lambda: grpX(1, 1), lambda: grpW(3), lambda: grpX(2, 0)]
    for i, g in enumerate(G):
        g()
        if pm == 1 and i >= 2: zi(43)
        if pm == 2 and i == 2:
            if pst: F.stamp(3, True)
            zi(256)
            if pst: F.stamp(4, True); o("s_waitcnt vmcnt(8)"); F.stamp(5, True); o("s_waitcnt vmcnt(0)"); F.stamp(6, True)
        if pm == 3 and i == 2: zi(256)
        if pm == 4 and i >= 2: F.stamp(i - 1, True)
        if pm == 5 and i == 2:
            for q, w in enumerate((10, 8, 6, 4, 2, 0)): o(f"s_waitcnt vmcnt({w})"); F.stamp(q + 1, True)
    if pm == 4: o("s_waitcnt vmcnt(24)"); F.stamp(8, True)
    if pm in (4, 5): pst = 0
    npf1 = 0
    if pst and pm != 2: F.stamp(3, True)
    g1pf = F and opt.get("g1pf", 2)
    if g1pf == 1:
        o(f"""
        s_lshl_b32 s36, s2, 2
        s_add_u32 s36, s36, s{sWave}
        s_lshl_b32 s36, s36, 13
        v_lshrrev_b32 v18, 3, v0
        v_lshlrev_b32 v18, 7, v18
        s_add_u32 s84, s92, s36
        s_addc_u32 s85, s93, 0
        s_and_b32 s85, s85, 0xffff
        s_movk_i32 s86, 0x2000
        s_mov_b32 s87, 0x20000
        """)
    if g1pf == 1 and opt.get("wdelay"): o(f"v_subrev_u32 v18, {1024*opt['wdelay']}, v18")
    if g1pf == 3:
        lead = opt.get("lead", 8); wd0 = opt.get("wd0", 7)
        o(f"""
        s_lshr_b32 s36, s2, 5
        s_lshl_b32 s36, s36, 3
        s_add_u32 s36, s36, s{sTT}
        s_lshl_b32 s36, s36, 1
        s_and_b32 s37, s{sWave}, 1
        s_add_u32 s36, s36, s37
        s_lshl_b32 s36, s36, 3
        v_and_b32 v28, 7, v0
        v_add_u32 v29, s36, v28
        v_mul_u32_u24 v30, 4682, v29
        v_lshrrev_b32 v30, 16, v30
        v_lshlrev_b32 v29, 7, v29
        v_mul_u32_u24 v30, {7168 - 1792}, v30
        v_add_u32 v29, v29, v30
        s_bfe_u32 s37, s2, 0x20001
        s_mul_i32 s37, s37, 1792
        s_add_u32 s36, s37, {lead*64*7168}
        s_add_u32 s36, s40, s36
        s_addc_u32 s37, s41, 0
        v_mov_b32 v19, s37
        v_add_co_u32 v18, vcc, s36, v29
        v_addc_co_u32 v19, vcc, 0, v19, vcc
        s_and_b32 s36, s{sFT}, 15
        s_lshl_b32 s36, s36, 2
        s_add_u32 s36, s36, s{sWave}
        s_lshl_b32 s36, s36, 13
        s_lshl_b32 s37, s{sTT}, 19
        s_add_u32 s36, s36, s37
        s_add_u32 s36, s36, {lead*128}
        s_add_u32 s36, s4, s36
        s_addc_u32 s37, s5, 0
        v_and_b32 v29, 3, v0
        v_lshlrev_b32 v29, 11, v29
        v_mov_b32 v21, s37
        v_add_co_u32 v20, vcc, s36, v29
        v_addc_co_u32 v21, vcc, 0, v21, vcc
        s_lshl_b32 s36, s2, 2
        s_add_u32 s36, s36, s{sWave}
        s_lshl_b32 s36, s36, 13
        s_add_u32 s36, s92, s36
        s_addc_u32 s37, s93, 0
        v_lshlrev_b32 v29, 7, v28
        v_mov_b32 v23, s37
        v_add_co_u32 v22, vcc, s36, v29
        v_addc_co_u32 v23, vcc, 0, v23, vcc
        v_bfe_u32 v28, v0, 3, 2
        v_mov_b32 v24, {64*7168}
        v_mov_b32 v25, 0
        v_mov_b32 v26, 128
        v_mov_b32 v27, 1024
        v_cmp_eq_u32 vcc, 1, v28
        v_cndmask_b32 v18, v18, v20, vcc
        v_cndmask_b32 v19, v19, v21, vcc
        v_cndmask_b32 v24, v24, v26, vcc
        v_cmp_lt_u32 vcc, 1, v28
        v_cndmask_b32 v18, v18, v22, vcc
        v_cndmask_b32 v19, v19, v23, vcc
        v_cndmask_b32 v24, v24, v25, vcc
        v_cndmask_b32 v25, v25, v27, vcc
        v_mov_b32 v26, 0
        """)
        t0 = opt.get("l2t", None)
        if t0 is not None: o(f"""
        s_lshr_b32 s36, s2, 3
        s_lshl_b32 s36, s36, 2
        s_add_u32 s36, s36, s{sWave}
        s_lshl_b32 s36, s36, 2
        v_add_u32 v28, s36, v28
        v_sub_u32 v29, 1791, v28
        s_bitcmp1_b32 s2, 1
        s_cselect_b64 vcc, -1, 0
        s_cselect_b32 s38, {(-448*2048) & 0xffffffff}, {448*2048} if False else 0
        s_cselect_b32 s36, 1024, 0
        v_cndmask_b32 v28, v28, v29, vcc
        s_bfe_u32 s37, s2, 0x10002
        s_mul_i32 s37, s37, {1792*2048}
        s_add_u32 s36, s36, s37
        s_add_u32 s36, s92, s36
        s_addc_u32 s37, s93, 0
        v_and_b32 v29, 7, v0
        v_lshlrev_b32 v29, 7, v29
        v_lshl_add_u32 v29, v28, 11, v29
        v_mov_b32 v23, s37
        v_add_co_u32 v22, vcc, s36, v29
        v_addc_co_u32 v23, vcc, 0, v23, vcc
        v_mov_b32 v27, s38
        v_cmp_lt_u32 vcc, 31, v0
        v_cndmask_b32 v18, v18, v22, vcc
        v_cndmask_b32 v19, v19, v23, vcc
        v_cndmask_b32 v24, v24, v26, vcc
        v_cndmask_b32 v25, v25, v26, vcc
        v_cndmask_b32 v26, v26, v27, vcc
        """.replace(f"s_cselect_b32 s38, {(-448*2048) & 0xffffffff}, {448*2048} if False else 0", f"s_cselect_b32 s38, -1, 1\ns_mul_i32 s38, s38, {448*2048}"))
    TQ = dict(zip(opt.get("tord", "1x2d"), (18, 20, 22, 24)))
    ROT = [f"v_mov_b32 v{r}, v{r+2}" for r in range(18, 26)]
    TL = "global_load_dword v16, v[18:19], off"
    if g1pf == 2:
        r0 = opt.get("tr0", 128); nr = (1024 - r0) // 2
        o(f"""
        s_lshr_b32 s36, s2, 5
        s_lshl_b32 s36, s36, 3
        s_add_u32 s36, s36, s{sTT}
        s_lshl_b32 s36, s36, 1
        s_and_b32 s37, s{sWave}, 1
        s_add_u32 s36, s36, s37
        s_mul_i32 s36, s36, {4*7168}
        s_bfe_u32 s37, s2, 0x20001
        s_mul_i32 s37, s37, 1792
        s_add_u32 s36, s36, s37
        s_add_u32 s36, s36, {r0*7168}
        s_add_u32 s36, s40, s36
        s_addc_u32 s37, s41, 0
        v_and_b32 v28, 15, v0
        v_min_u32 v29, 13, v28
        v_lshlrev_b32 v29, 7, v29
        v_mul_u32_u24 v30, 7168, v17
        v_add_u32 v29, v29, v30
        v_mov_b32 v{TQ['1']+1}, s37
        v_add_co_u32 v{TQ['1']}, vcc, s36, v29
        v_addc_co_u32 v{TQ['1']+1}, vcc, 0, v{TQ['1']+1}, vcc
        v_add_co_u32 v{TQ['2']}, vcc, {nr*7168}, v{TQ['1']}
        v_addc_co_u32 v{TQ['2']+1}, vcc, 0, v{TQ['1']+1}, vcc
        s_and_b32 s36, s{sFT}, 15
        s_lshl_b32 s36, s36, 2
        s_add_u32 s36, s36, s{sWave}
        s_lshl_b32 s36, s36, 13
        s_lshl_b32 s37, s{sTT}, 19
        s_add_u32 s36, s36, s37
        s_add_u32 s36, s4, s36
        s_addc_u32 s37, s5, 0
        v_max_u32 v29, 3, v28
        v_lshlrev_b32 v29, 7, v29
        v_lshl_add_u32 v29, v17, 11, v29
        v_mov_b32 v{TQ['x']+1}, s37
        v_add_co_u32 v{TQ['x']}, vcc, s36, v29
        v_addc_co_u32 v{TQ['x']+1}, vcc, 0, v{TQ['x']+1}, vcc
        s_lshl_b32 s36, s2, 2
        s_add_u32 s36, s36, s{sWave}
        s_lshl_b32 s36, s36, 13
        s_add_u32 s36, s92, s36
        s_addc_u32 s37, s93, 0
        v_lshlrev_b32 v29, 7, v0
        v_mov_b32 v{TQ['d']+1}, s37
        v_add_co_u32 v{TQ['d']}, vcc, s36, v29
        v_addc_co_u32 v{TQ['d']+1}, vcc, 0, v{TQ['d']+1}, vcc
        v_mov_b32 v26, s36
        v_mov_b32 v27, s37
        """)
        if opt.get("tpro", 1):
            o(TL); npf1 = 1; opt.setdefault("vm", 17)
            for x in ROT: o(x)
    zi(256)
    def reads(set_, sl, ks2):
        Aa = []
        for mb in range(8):
            for r2 in range(2):
                Aa.append(f"ds_read_b64_tr_b16 {rng(fk, fa(set_, mb)+2*r2, 2)}, v{vW[mb&3]} offset:{sl*16384 + (mb>>2)*8192 + r2*1024}")
        Bb = [f"ds_read_b128 {rng(fk, fb(set_, nb), 4)}, v{vX[ks2]} offset:{nb*2048}" for nb in range(8)]
        L = []
        for i in range(8): L += Aa[2*i:2*i+2] + [Bb[i]]
        return L
    o(f"""
    s_mov_b32 s{sCnt}, 0
    s_add_u32 s{sXs}, s{sXm0}, {2*32768}
    s_add_u32 s{sXe}, s{sXm0}, {3*32768}
    s_mov_b32 s{sNeg}, {(-65536) & 0xffffffff}
    s_mov_b32 s{sPos}, 32768
    s_mov_b32 s{sRs}, 0
    """)
    if pst and pm != 2: F.stamp(4, True); o("s_waitcnt vmcnt(32)"); F.stamp(5, True)
    o(f"s_waitcnt vmcnt({24 + npf1})")
    if pst and pm != 2: F.stamp(6, True)
    o("s_barrier")
    if pst: F.stamp(7, True)
    if stamp: stamp_mid1(o)
    if F: F.stamp(1)
    for r in reads(0, 0, 0): o(r)
    o(".p2align 3")
    o.label(f"{name}_loop")
    order = []
    if opt.setdefault("order", "nb") == "snake":
        for mb in range(8):
            for nb in (range(8) if mb % 2 == 0 else range(7, -1, -1)): order.append((mb, nb))
    elif opt["order"] == "mb":
        order = [(mb, nb) for mb in range(8) for nb in range(8)]
    elif opt["order"] == "nb":
        order = [(mb, nb) for nb in range(8) for mb in range(8)]
    elif opt["order"] == "diag":
        order = [((i + j) % 8, j) for i in range(8) for j in range(8)]
    def substep(set_, fill, vm=None):
        o("s_waitcnt lgkmcnt(0)")
        for i, (mb, nb) in enumerate(order):
            o(f"v_mfma_f32_16x16x32_bf16 {accs(mb,nb)}, {rng(fk,fa(set_,mb),4)}, {rng(fk,fb(set_,nb),4)}, {accs(mb,nb)}")
            if i == 1:
                if vm != -1: o("s_waitcnt vmcnt(%d)" % (opt.get("vm", 16) if vm is None else vm))
                o("s_barrier")
            for ins in fill.get(i, []): o(ins)
    nodma = opt.get("nodma", False); nord = opt.get("noread", False)
    def mkfill(rd, dW, dX):
        f = {}
        def add(i, x): f.setdefault(i, []).append(x)
        for k, x in enumerate(rd):
            if not nord: add(4 + 2 * k, x)
        add(3, dW[0])
        for k, x in enumerate(dW[1:]):
            if not nodma and not opt.get("noW"): add(5 + 8 * k, x)
        add(33, dX[0])
        for k, x in enumerate(dX[1:]):
            if not nodma and not opt.get("noX"): add(35 + 8 * k, x)
        return f
    def dmW(slotoff): return [f"s_add_u32 m0, s{sWm0}, {slotoff}"] + [dmaW(j) for j in range(4)]
    def dmX(half): return [f"s_add_u32 m0, s{sXs}, {half*4096}"] + [dmaX(j, half) for j in range(4)]
    def ext(f, i, L): f.setdefault(i, []).extend(L)
    f = mkfill(reads(1, 1, 1), dmW(0), dmX(1))
    ext(f, 31, [f"s_add_u32 s{sXoff2}, s{sXoff}, 65536", f"s_add_u32 s{sWoff}, s{sWoff}, {32*7168}"])
    ext(f, 60, advX[0:2]);
    ext(f, 52, [f"s_add_u32 s{sXs}, s{sXs}, 32768"])
    ext(f, 61, advX[2:] + [f"s_cmp_eq_u32 s{sXs}, s{sXe}", f"s_cselect_b32 s{sXs}, s{sXm0}, s{sXs}"])
    ext(f, 53, [f"s_add_u32 s{sRs}, s{sRs}, 1", f"s_cmp_eq_u32 s{sRs}, 3"])
    ext(f, 54, [f"s_cselect_b32 s{sXd}, s{sNeg}, s{sPos}", f"s_cselect_b32 s{sRs}, 0, s{sRs}"])
    for m in range(4): ext(f, 55 + m, [f"v_xor_b32 v{vW[m]}, 0x8000, v{vW[m]}"])
    ext(f, 62, [f"v_add_u32 v{vX[0]}, s{sXd}, v{vX[0]}", f"s_cmp_ge_u32 s{sCnt}, 13"])
    ext(f, 63, [f"v_add_u32 v{vX[1]}, s{sXd}, v{vX[1]}", f"s_cselect_b32 s{sX+2}, 0, s{sX+2}"])
    substep(0, f)
    f = mkfill(reads(0, 0, 0), dmW(16384), dmX(0))
    ext(f, 31, advW1[0:2]); ext(f, 37, advW1[2:] + [f"s_xor_b32 s{sWm0}, s{sWm0}, 0x8000"])
    if g1pf == 2:
        ext(f, 55, [TL])
        for i, x in enumerate(ROT): ext(f, 40 + 2 * i if False else 56 + i // 2, [x])
    if g1pf == 3:
        ext(f, 55, [TL])
        ext(f, 39, [f"s_cmp_lt_u32 s{sCnt}, {15 - lead}", "s_cselect_b32 s84, -1, 0"])
        ext(f, 41, [f"s_sub_u32 s85, s{sCnt}, {wd0}", "s_cmp_lt_u32 s85, 7", "s_cselect_b32 s85, -1, 0"])
        ext(f, 45, ["v_and_b32 v20, s84, v24"]); ext(f, 47, ["v_and_or_b32 v20, s85, v25, v20"])
        ext(f, 49, [f"s_sub_u32 s86, s{sCnt}, {t0 or 0}", "s_cmp_lt_u32 s86, 3", "s_cselect_b32 s86, -1, 0"])
        ext(f, 53, ["v_and_or_b32 v20, s86, v26, v20"]); ext(f, 54, ["v_ashrrev_i32 v21, 31, v20"])
        ext(f, 57, ["v_add_co_u32 v18, vcc, v18, v20"]); ext(f, 58, ["v_addc_co_u32 v19, vcc, v21, v19, vcc"])
    if g1pf == 1: ext(f, 55, ["buffer_load_dword v16, v18, s[84:87], 0 offen"]); ext(f, 57, ["v_add_u32 v18, 1024, v18"])
    ext(f, 62, [f"s_add_u32 s{sCnt}, s{sCnt}, 1", f"s_cmp_lt_u32 s{sCnt}, {15 if F else 16}"])
    ext(f, 63, [f"s_cbranch_scc1 {name}_loop"])
    substep(1, f)
    if F:
        f = F.peel(0)
        for k, x in enumerate(reads(1, 1, 1)): f.setdefault(4 + 2 * k, []).insert(0, x)
        substep(0, f, 0)
        substep(1, F.peel(1), -1)
    if stamp: stamp_mid2(o)
    if pst: F.stamp(8, True)
    if F: F.stamp(2); F.g1_exit(sTT, sFT)
    stm = opt.get("hst", "sc1") if F else ""
    o(f"""
    s_lshr_b32 s36, s{sWave}, 1
    s_lshl_b32 s36, s36, 3
    s_lshl_b32 s37, s{sTT}, 4
    s_add_u32 s36, s36, s37
    s_mul_i32 s36, s36, 112
    s_and_b32 s37, s{sWave}, 1
    s_mul_i32 s37, s37, {4 * mix if mix else 2}
    s_add_u32 s36, s36, s37
    {mixs}
    s_lshr_b32 s37, s38, 6
    s_add_u32 s36, s36, s37
    s_lshl_b32 s36, s36, 10
    s_mov_b32 s38, 0xbfb8aa3b
    s_mov_b32 s39, 0xbfb8aa3b
    s_nop 7
    """)
    T = 2
    n = 0
    for nb in range(8):
        for pr in range(2):
            st = 24 + 4 * (n & 1); n += 1
            gk, gb = acc(2 * pr, nb); uk, ub = acc(4 + 2 * pr, nb)
            E = []
            if gk == "a":
                gt = 32 if accA else 32
                for r in range(8): E.append(f"v_accvgpr_read_b32 v{gt+r}, a{gb+r}")
                gb = gt
            if uk == "a":
                for r in range(8): E.append(f"v_accvgpr_read_b32 v{10+r}, a{ub+r}")
                ub = 10
            for p in range(4): E.append(f"v_pk_mul_f32 {v(T+2*p,2)}, {v(gb+2*p,2)}, s[38:39]")
            for r in range(8): E.append(f"v_exp_f32 v{T+r}, v{T+r}")
            for p in range(4): E.append(f"v_pk_mul_f32 {v(gb+2*p,2)}, {v(gb+2*p,2)}, {v(ub+2*p,2)}")
            for p in range(4): E.append(f"v_pk_add_f32 {v(T+2*p,2)}, {v(T+2*p,2)}, 1.0 op_sel_hi:[1,0]")
            for r in range(8): E.append(f"v_rcp_f32 v{T+r}, v{T+r}")
            E.append("s_nop 0")
            for p in range(4): E.append(f"v_pk_mul_f32 {v(gb+2*p,2)}, {v(gb+2*p,2)}, {v(T+2*p,2)}")
            for p in range(4): E.append(f"v_cvt_pk_bf16_f32 v{st+p}, v{gb+2*p}, v{gb+2*p+1}")
            E.append(f"buffer_store_dwordx4 {v(st,4)}, v{vS}, s[{sH}:{sH+3}], s36 offen offset:{pr*1024} {stm}")
            if F: E = F.epi_merge(n - 1, E)
            for x in E: o(x)
        o(f"s_add_u32 s36, s36, {112*1024}")
    if F:
        F.phase2()
    if stamp: stamp_end(o, sWave, 6)
    o.label(f"{name}_end")
    o("s_endpgm")
    if F: F.late()
    o.label(f"{name}_aux")
    o(f"s_cmp_ge_u32 s2, 256\ns_cbranch_scc1 {name}_end2\ns_sub_u32 s3, s2, 224")
    from aux import aux_body
    if stamp: stamp_begin(o)
    if F: F.stamp(0)
    aux_body(o, name, 3, opt, stmod='sc1' if F else '', F=F)
    if F: F.aux_exit()
    if stamp:
        stamp_end(o, 24, 6)
    o.label(f"{name}_end2")
    o("s_endpgm")
    if F: kernel_desc(o, name, 512, 256)
    elif accA: kernel_desc(o, name, 160 + 256, 160)
    else: kernel_desc(o, name, 256 + 160, 256)
    return f"; @launch kernel={name} grid=(256,1,1) block=(256,1,1) lds=163840"
```

```python
from asmlib import *
from ssm import WS_UT
LOG2E = 0x3fb8aa3b
INV2PI = 0x3e22f983
RS = 512
BLK = 16 * RS
TOFF = 60 * RS + 16
XOFF = 4 * BLK
AWSTR = XOFF + 4096
GOFF = 4 * AWSTR

class Em:
    def __init__(self, o): self.o = o; self.n = 0; self.tags = {}
    def __call__(self, ins):
        if isinstance(ins, tuple):
            k = ins[0]
            if k == "tag": self.tags[ins[1]] = self.n
            elif k == "wait":
                c = self.n - self.tags[ins[1]]
                self.o(f"s_waitcnt lgkmcnt({min(c, 14)})")
            return
        self.o(ins)
        if ins.startswith("ds_"): self.n += 1

def merge(A_, B_, start=0, step=None):
    if not A_: return list(B_)
    out = []; nb = len(B_); na = len(A_) - start
    done = 0
    for i, x in enumerate(A_):
        out.append(x)
        if i >= start:
            want = min(nb, ((i - start + 1) * nb + na - 1) // na if step is None else int((i - start + 1) * step))
            while done < want: out.append(B_[done]); done += 1
    out += B_[done:]
    return out

def gather_setup(sB, GAd, SL, t1, t2, sC):
    vG01, vG2, vG3h, vG3l = GAd
    L = f"""v_sub_u32 v{t1}, 575, v0
    v_lshrrev_b32 v{t1}, 1, v{t1}
    v_lshl_add_u32 v{vG01}, v{t1}, 2, s{sB}
    v_lshlrev_b32 v{t1}, 2, v0
    v_sub_u32 v{t1}, 1020, v{t1}
    v_add_u32 v{vG2}, s{sB}, v{t1}
    v_cmp_gt_u32 vcc, 32, v0
    v_lshlrev_b32 v{t1}, 3, v0
    v_lshlrev_b32 v{t2}, 4, v0
    v_sub_u32 v{t1}, 764, v{t1}
    v_sub_u32 v{t2}, 1016, v{t2}
    v_cndmask_b32 v{t1}, v{t2}, v{t1}, vcc
    v_add_u32 v{vG3h}, s{sB}, v{t1}
    v_cndmask_b32 v{t2}, 12, 8, vcc
    v_sub_u32 v{vG3l}, v{vG3h}, v{t2}
    v_cndmask_b32 v{t1}, 0, -1, vcc
    v_cmp_gt_u32 vcc, 31, v0
    v_bfe_i32 v{t2}, v0, 0, 1""".split("\n")
    L = [x.strip() for x in L]
    def csel(d, m, tv, fv): return [f"v_and_b32 v{d}, {tv ^ fv}, v{m}", f"v_xor_b32 v{d}, {fv}, v{d}"]
    for k, tv in enumerate([0x01000302, 0x01000100]): L += csel(SL + 4 + k, t1, tv, 0x03020504)
    for k, tv in enumerate([0x03020504, 0x01000100, 0x05040504]): L += csel(SL + 7 + k, t1, tv, 0x05040706)
    L += [f"v_cndmask_b32 v{t1}, 0, -1, vcc"]
    L += csel(SL + 0, t2, 0x03020302, 0x05040504) + csel(SL + 1, t2, 0x01000100, 0x03020302)
    L += csel(SL + 2, t2, 0x01000100, 0x03020504) + csel(SL + 3, t2, 0x01000302, 0x05040504)
    L += csel(SL + 6, t1, 0x05040504, 0x03020504)
    for r, c in zip(sC, [0x03020504, 0x03020302, 0x01000100, 0x05040504, 0x01000302]): L.append(f"s_mov_b32 s{r}, {c}")
    return L

def aux_body(o, name, sJ, opt=None, stmod="", F=None):
    opt = opt or {}
    ct = opt.get("ct", 0); nks = 2 if ct else 8
    sWave, sBase, sCh, sKo, sKo2, sXo, sUo, sGWo = 24, 26, 27, 28, 29, 30, 31, 32
    sX, sK, sU, sGW, sG = 8, 12, 16, 20, 84
    o(f"""
    s_load_dwordx8 s[40:47], s[0:1], {KA['A_re']}
    s_load_dwordx8 s[48:55], s[0:1], {KA['C_re']}
    s_load_dwordx2 s[4:5], s[0:1], {KA['u']}
    s_load_dwordx4 s[88:91], s[0:1], {KA['wd']}
    s_load_dwordx2 s[6:7], s[0:1], {KA['ws']}
    v_lshrrev_b32 v1, 6, v0
    v_and_b32 v0, 63, v0
    s_lshl_b32 s25, s{sJ}, 2
    v_readfirstlane_b32 s{sWave}, v1
    v_lshlrev_b32 v10, 2, v0
    v_lshlrev_b32 v12, 4, v0
    s_add_u32 s25, s25, s{sWave}
    s_mul_i32 s{sKo2}, s25, -6
    s_add_u32 s{sKo2}, s{sKo2}, 890
    s_add_u32 s38, s25, 896
    s_lshl_b32 s38, s38, 1
    s_mul_i32 s25, s25, 7
    s_mul_i32 s{sBase}, s{sWave}, {AWSTR}
    s_lshl_b32 s36, s25, 8
    s_lshl_b32 s37, s25, 1
    s_lshl_b32 s{sKo}, s25, 11
    s_lshl_b32 s{sKo2}, s{sKo2}, 8
    v_add_u32 v10, s36, v10
    v_and_b32 v11, 7, v0
    v_lshl_add_u32 v11, v11, 1, s37
    v_writelane_b32 v11, s38, 7
    s_mov_b32 s{sCh}, 0
    s_mov_b32 s56, {LOG2E}
    s_mov_b32 s57, {INV2PI}
    """)
    vStW, vStR, vT0, vT1a, vT1b, vT2, vL0, vDs = 13, 14, 15, 16, 17, 18, 19, 1
    vXd, vXtr, vXg, vUst, vGWa, vPf = 20, 21, 22, 23, 24, 25
    g, j_, t1, t2 = 26, 27, 28, 29
    SW = 30
    vStR2, vG01, vG2, vG3h, vG3l = 38, 39, 40, 41, 42
    RD = [vStR, vStR2, 43, 59]
    SL = 44
    vDt, vDtL, vDtP = 54, 55, 56
    GWR = 60; XR = 72; XU = 88
    KA_ = 92
    GB = 104
    OB = 116
    PK = [136, 140, 144, 148]
    PFD = 57
    POOL = list(range(152, 256, 4))
    aFR = 0; aG = 128; aTR = 144
    sDt, sDtL, sDtP, sDs = 58, 59, 82, 83
    sSel = [33 + 0]
    ldp = [f"global_load_dword v{2+k}, v10, s[{40+2*k}:{41+2*k}]" for k in range(6)]
    o(f"""
    v_lshrrev_b32 v{t1}, 2, v0
    v_lshlrev_b32 v{vXd}, 11, v{t1}
    v_and_b32 v{t2}, 3, v0
    v_lshl_add_u32 v{vXd}, v{t2}, 4, v{vXd}
    s_lshl_b32 s{sXo}, s{sJ}, 17
    s_lshl_b32 s36, s{sWave}, 9
    s_add_u32 s{sXo}, s{sXo}, s36
    s_mov_b32 s{sGWo}, s36
    v_lshrrev_b32 v{g}, 4, v0
    v_and_b32 v{j_}, 15, v0
    v_lshlrev_b32 v{vGWa}, 4, v{g}
    s_waitcnt lgkmcnt(0)
    """)
    o("global_load_ushort v8, v11, s[52:53]\nglobal_load_ushort v9, v11, s[54:55]")
    for x in ldp: o(x)
    srd(o, sX, 4, 2048 * 2048)
    srd(o, sGW, 90, 2048)
    def slice_ld():
        L = [f"s_add_u32 m0, s{sBase}, {XOFF}", f"s_add_u32 s33, s{sXo}, {16*2048 - 1024}"]
        L.append(f"buffer_load_dwordx4 v{vXd}, s[{sX}:{sX+3}], s{sXo} offen lds")
        L.append(f"s_add_u32 s34, s{sXo}, {32*2048 - 2048}")
        L.append(f"buffer_load_dwordx4 v{vXd}, s[{sX}:{sX+3}], s33 offen offset:1024 lds")
        L.append(f"s_add_u32 s33, s{sXo}, {48*2048 - 3072}")
        L.append(f"buffer_load_dwordx4 v{vXd}, s[{sX}:{sX+3}], s34 offen offset:2048 lds")
        L.append(f"s_add_u32 s{sXo}, s{sXo}, 64")
        L.append(f"buffer_load_dwordx4 v{vXd}, s[{sX}:{sX+3}], s33 offen offset:3072 lds")
        L.append(f"buffer_load_dwordx4 {v(GWR,4)}, v{vGWa}, s[{sGW}:{sGW+3}], s{sGWo} offen")
        L.append(f"s_add_u32 s{sGWo}, s{sGWo}, 64")
        return L
    for x in slice_ld(): o(x)
    o(f"s_add_u32 s4, s6, {WS_K}\ns_addc_u32 s5, s7, 0"); srd(o, sK, 4, 1024 * 8192)
    o(f"s_add_u32 s4, s6, {WS_UT}\ns_addc_u32 s5, s7, 0"); srd(o, sU, 4, 1024 * 4096)
    o(f"s_add_u32 s4, s6, {WS_G}\ns_addc_u32 s5, s7, 0"); srd(o, sG, 4, 2048 * 4)
    o(f"""
    s_add_u32 s4, s6, {WS_FLAG}
    s_addc_u32 s5, s7, 0
    s_lshl_b32 s36, s{sJ}, 2
    s_add_u32 s36, s36, s{sWave}
    s_lshl_b32 s37, s36, 10
    v_add_u32 v{t1}, s37, v12
    v_mov_b32 v{XU}, 0
    v_mov_b32 v{XU+1}, 0
    v_mov_b32 v{XU+2}, 0
    v_mov_b32 v{XU+3}, 0
    global_store_dwordx4 v{t1}, {v(XU,4)}, s[4:5] {stmod}
    s_mul_i32 s37, s36, {56*1024}
    v_lshlrev_b32 v{vPf}, 7, v0
    s_add_u32 s88, s88, s37
    s_addc_u32 s89, s89, 0
    s_and_b32 s89, s89, 0xffff
    s_mov_b32 s90, {56*1024}
    s_mov_b32 s91, 0x20000
    s_movk_i32 s95, 0x2000
    """)
    o(f"""
    v_lshlrev_b32 v{t1}, 3, v0
    v_add_u32 v{vStW}, s{sBase}, v{t1}
    v_and_b32 v{t2}, 7, v{j_}
    v_lshlrev_b32 v{t2}, 1, v{t2}
    v_xor_b32 v{t2}, v{t2}, v{g}
    v_lshlrev_b32 v{t1}, 9, v{j_}
    v_lshl_add_u32 v{t1}, v{t2}, 4, v{t1}
    v_add_u32 v{vStR}, s{sBase}, v{t1}
    v_xor_b32 v{RD[1]}, 64, v{vStR}
    v_xor_b32 v{RD[2]}, 128, v{vStR}
    v_xor_b32 v{RD[3]}, 192, v{vStR}
    s_add_u32 s39, s{sBase}, {TOFF}
    v_lshrrev_b32 v{t1}, 1, v{g}
    v_lshlrev_b32 v{t1}, 8, v{t1}
    v_and_b32 v{t2}, 1, v{g}
    v_lshl_add_u32 v{t1}, v{t2}, 3, v{t1}
    v_lshl_add_u32 v{t1}, v{j_}, 4, v{t1}
    v_add_u32 v{vT0}, s39, v{t1}
    v_lshlrev_b32 v{t1}, 7, v{g}
    v_add_u32 v{t1}, s39, v{t1}
    v_cmp_gt_u32 vcc, 2, v{g}
    v_lshlrev_b32 v{t2}, 2, v{j_}
    v_lshlrev_b32 v{vT1b}, 3, v{j_}
    v_cndmask_b32 v{t2}, v{t2}, v{vT1b}, vcc
    v_add_u32 v{vT1a}, v{t1}, v{t2}
    v_add_u32 v{vT1a}, 512, v{vT1a}
    v_cndmask_b32 v{t2}, 64, 4, vcc
    v_add_u32 v{vT1b}, v{vT1a}, v{t2}
    v_and_b32 v{t2}, 1, v{g}
    v_lshlrev_b32 v{t2}, 8, v{t2}
    v_lshl_add_u32 v{vT2}, v{j_}, 1, v{t2}
    v_lshrrev_b32 v{t2}, 1, v{g}
    v_lshl_add_u32 v{vT2}, v{t2}, 5, v{vT2}
    v_add_u32 v{vT2}, s39, v{vT2}
    v_add_u32 v{vT2}, 1024, v{vT2}
    v_cmp_eq_u32 vcc, 0, v0
    v_mov_b32 v{t1}, s{sBase}
    v_mov_b32 v{t2}, 0
    v_cndmask_b32 v{vL0}, 0, -1, vcc
    ds_write_b32 v{t1}, v{t2} offset:{TOFF-4}
    v_mov_b32 v{PK[0]}, 0x3f80
    v_mov_b32 v{PK[0]+1}, 0x3f80
    ds_write_b64 v{vStW}, {v(PK[0],2)} offset:{BLK}
    """)
    o(f"""
    s_add_u32 s36, s{sBase}, {XOFF}
    v_bfe_u32 v{t1}, v0, 2, 2
    v_lshl_add_u32 v{t1}, v{g}, 3, v{t1}
    v_lshlrev_b32 v{t1}, 6, v{t1}
    v_and_b32 v{t2}, 1, v0
    v_lshl_add_u32 v{t1}, v{t2}, 3, v{t1}
    v_bfe_u32 v{t2}, v0, 1, 1
    v_lshl_add_u32 v{t1}, v{t2}, 11, v{t1}
    v_add_u32 v{vXtr}, s36, v{t1}
    v_lshl_add_u32 v{t1}, v{j_}, 6, v{vGWa}
    v_add_u32 v{vXg}, s36, v{t1}
    v_and_b32 v{t1}, 7, v0
    v_lshl_add_u32 v{vUst}, v{t1}, 12, v{vGWa}
    v_bfe_u32 v{t1}, v0, 3, 1
    v_lshl_add_u32 v{vUst}, v{t1}, 6, v{vUst}
    s_lshl_b32 s{sUo}, s{sWave}, 20
    s_lshl_b32 s36, s{sJ}, 7
    s_add_u32 s{sUo}, s{sUo}, s36
    """)
    if opt.get("pf", 0) == 3:
        o(f"""
        s_getpc_b64 s[88:89]
        {name}_pc:
        s_sub_u32 s88, s88, {name}_pc-{name}_loop
        s_subb_u32 s89, s89, 0
        s_lshr_b32 s36, s{sJ}, 3
        s_lshl_b32 s36, s36, 2
        s_add_u32 s36, s36, s{sWave}
        s_lshl_b32 s36, s36, 12
        v_lshl_add_u32 v{t1}, v0, 6, s36
        v_min_u32 v{t1}, {name}_aux-{name}_loop, v{t1}
        v_mov_b32 v{GB+1}, s89
        v_add_co_u32 v{GB}, vcc, s88, v{t1}
        v_addc_co_u32 v{GB+1}, vcc, 0, v{GB+1}, vcc
        """)
    for k in range(8): o(f"v_xor_b32 v{SW+k}, {32*k}, v{vStW}")
    for r in range(16): o(f"v_accvgpr_write_b32 a{aG+r}, 0")
    sC = [35, 38, 80, 81, 94]
    if ct: o(f"v_add_u32 v{vG01}, s{sBase}, v12")
    else:
        for x in gather_setup(39, [vG01, vG2, vG3h, vG3l], SL, t1, t2, sC): o(x)
    o(f"""
    s_waitcnt vmcnt({6 + 5 + 1})
    v_lshlrev_b32 v{vDt}, 16, v8
    v_mul_f32 v{vDt}, s56, v{vDt}
    v_exp_f32 v{vDt}, v{vDt}
    v_lshlrev_b32 v9, 16, v9
    v_cvt_pk_bf16_f32 v{vDt}, v{vDt}, v{vDt}
    v_lshlrev_b32 v{vDt}, 16, v{vDt}
    v_mul_f32 v{vDtL}, s56, v{vDt}
    v_mul_f32 v{vDtP}, s57, v{vDt}
    """)

    def gen_head():
        L = []; free = list(POOL); R = {}
        def al(n): R[n] = free.pop(0); return R[n]
        Z = al("Z"); Bv = al("B"); Cv = al("C")
        L += f"""v_readlane_b32 s{sDtL}, v{vDtL}, s{sCh}
        v_readlane_b32 s{sDtP}, v{vDtP}, s{sCh}
        v_readlane_b32 s{sDt}, v{vDt}, s{sCh}
        v_readlane_b32 s{sDs}, v9, s{sCh}
        v_lshlrev_b32 v{Z}, 16, v2
        v_and_b32 v{Z+2}, 0xffff0000, v2
        v_lshlrev_b32 v{Z+1}, 16, v3
        v_and_b32 v{Z+3}, 0xffff0000, v3
        v_lshlrev_b32 v{Bv}, 16, v4
        v_and_b32 v{Bv+2}, 0xffff0000, v4
        v_mul_f32 v{Z}, s{sDtL}, v{Z}
        v_mul_f32 v{Z+1}, s{sDtP}, v{Z+1}
        v_mul_f32 v{Z+2}, s{sDtL}, v{Z+2}
        v_mul_f32 v{Z+3}, s{sDtP}, v{Z+3}
        v_lshlrev_b32 v{Bv+1}, 16, v5
        v_and_b32 v{Bv+3}, 0xffff0000, v5
        v_lshlrev_b32 v{Cv}, 16, v6
        v_and_b32 v{Cv+2}, 0xffff0000, v6
        v_lshlrev_b32 v{Cv+1}, 16, v7
        v_and_b32 v{Cv+3}, 0xffff0000, v7
        s_cmp_eq_u32 s{sCh}, 6
        s_cselect_b32 s36, s{sKo2}, 256
        s_cmp_lt_u32 s{sCh}, 7
        s_cselect_b32 s36, s36, 0
        v_add_u32 v10, s36, v10
        v_mul_f32 v{Bv}, s{sDt}, v{Bv}
        v_mul_f32 v{Bv+1}, s{sDt}, v{Bv+1}
        v_mul_f32 v{Bv+2}, s{sDt}, v{Bv+2}
        v_mul_f32 v{Bv+3}, s{sDt}, v{Bv+3}
        v_and_b32 v{vDs}, s{sDs}, v{vL0}""".split("\n")
        L = [x.strip() for x in L]
        D = []
        ds = [("G8", 3), ("E1", 0), ("H1", 7), ("E1024", 10)]
        for n, e in ds: al(n); al(n + "t")
        for n, e in ds:
            if e:
                for h in range(4): D.append(f"v_ldexp_f32 v{R[n+'t']+h}, v{Z+h}, {e}")
        for n, e in ds:
            for h in (0, 2): D.append(f"v_fract_f32 v{R[n+'t']+h+1}, v{(R[n+'t'] if e else Z)+h+1}")
        for n, e in ds:
            for h in (0, 2): D.append(f"v_exp_f32 v{R[n+'t']+h}, v{(R[n+'t'] if e else Z)+h}")
        for n, e in ds:
            for h in (0, 2): D += [f"v_cos_f32 v{R[n]+h}, v{R[n+'t']+h+1}", f"v_sin_f32 v{R[n]+h+1}, v{R[n+'t']+h+1}"]
        L += merge(D, ldp, 0, 0.5)
        W = al("Y0")
        for h in (0, 2): L.append(f"v_pk_mul_f32 {v(W+h,2)}, {v(Bv+h,2)}, {v(Cv+h,2)} op_sel:[0,0] op_sel_hi:[1,0] neg_hi:[1,0]")
        for n, e in ds[:2]:
            for h in (0, 2): L.append(f"v_pk_mul_f32 {v(R[n]+h,2)}, {v(R[n]+h,2)}, {v(R[n+'t']+h,2)} op_sel_hi:[1,0]" + (" neg_hi:[1,0]" if n == "G8" else ""))
        for h in (0, 2): L.append(f"v_pk_fma_f32 {v(W+h,2)}, {v(Bv+h,2)}, {v(Cv+h,2)}, {v(W+h,2)} op_sel:[1,1,0] op_sel_hi:[0,1,1] neg_lo:[1,0,0] neg_hi:[1,0,0]")
        for n, e in ds[2:]:
            for h in (0, 2): L.append(f"v_pk_mul_f32 {v(R[n]+h,2)}, {v(R[n]+h,2)}, {v(R[n+'t']+h,2)} op_sel_hi:[1,0]")
        for n in ["Z", "B", "C"] + [n + "t" for n, e in ds]: free.append(R.pop(n))
        return L, R, free
    row = {f"Y{k}": k for k in range(16)}
    row.update({f"E{e}": 16 + e for e in range(1, 8)}); row.update({f"u{e}": 24 + e for e in range(1, 8)}); row["H1"] = 24
    row.update({"H2": 32, "H3": 36, "H4": 40, "H5": 42, "H6": 44, "H7": 46, "E1024": 48, "w8": 52})
    row.update({f"b{h}{e}": 32 + 4 * (h - 2) + e for h in (2, 3) for e in (1, 2, 3)}); row.update({f"c{h}": 41 + 2 * (h - 4) for h in (4, 5, 6, 7)})
    row.update({f"w{h}": 48 + (h >> 1) + 8 * (h & 1) for h in range(1, 8)})
    N_ = None
    ops = [("G16", "G8", "G8", N_), ("E2", "E1", "E1", N_), ("G32", "G16", "G16", N_), ("H2", "H1", "H1", N_), ("G64", "G32", "G32", N_),
           ("u1", "E1", "H1", "E1"), ("Y1", "Y0", "G8", N_), ("Y8", "Y0", "G64", "Y0"), ("E4", "E2", "E2", N_), ("u2", "E2", "H1", "E2"),
           ("Y2", "Y0", "G16", N_), ("Y9", "Y1", "G64", "Y1"), ("Y4", "Y0", "G32", N_), ("Y10", "Y2", "G64", "Y2"), ("Y3", "Y1", "G16", N_),
           ("Y12", "Y4", "G64", "Y4"), ("Y5", "Y1", "G32", N_), ("Y11", "Y3", "G64", "Y3"), ("Y6", "Y2", "G32", N_), ("Y13", "Y5", "G64", "Y5"),
           ("Y7", "Y3", "G32", N_), ("Y14", "Y6", "G64", "Y6"), ("E3", "E2", "E1", N_), ("Y15", "Y7", "G64", "Y7"), ("E5", "E4", "E1", N_),
           ("u4", "E4", "H1", "E4"), ("E6", "E4", "E2", N_), ("u3", "E3", "H1", "E3"), ("E7", "E4", "E3", N_), ("u5", "E5", "H1", "E5"),
           ("H3", "H2", "H1", N_), ("u6", "E6", "H1", "E6"), ("=H1", N_, N_, ""), ("u7", "E7", "H1", "E7"), ("b21", "H2", "E2", N_), ("H4", "H2", "H2", "H2"),
           ("w8", "E1024", "E1024", ""), ("c4", "H4", "E4", "b21"), ("H5", "H4", "H1", N_), ("H6", "H4", "H2", "H3"), ("b22", "H2", "E4", "H5"),
           ("c5", "H5", "E4", N_), ("b23", "H2", "E6", "c5"), ("b31", "H3", "E2", N_), ("c6", "H6", "E4", "b31"), ("H7", "H4", "H3", N_),
           ("b32", "H3", "E4", "H7"), ("c7", "H7", "E4", N_), ("b33", "H3", "E6", "c7"), ("w2", "E1024", "H2", N_), ("w1", "E1024", "H1", "E1024"),
           ("w3", "E1024", "H3", "w2"), ("w4", "E1024", "H4", N_), ("w5", "E1024", "H5", "w4"), ("w6", "E1024", "H6", N_), ("w7", "E1024", "H7", "w6")]
    wr = [x[0].lstrip("=") for x in ops if x[3] is not None] + [x[3] for x in ops if x[3]]
    assert sorted(wr) == sorted(row), set(row) ^ set(wr)
    pos = {x[0]: i for i, x in enumerate(ops)}
    for i, x in enumerate(ops):
        for s_ in x[1:3]:
            if s_ in pos: assert pos[s_] <= i - 2, x
        if x[3]: assert pos.get(x[3], -1) < i and (row[x[3]] - row[x[0]]) % 8 == 0, x
    last = {}
    for i, x in enumerate(ops):
        nm = x[0].lstrip("=")
        last[nm] = max(last.get(nm, -1), i + 2 if x[3] is not None else i + 1)
        if x[3]: last[x[3]] = max(last.get(x[3], -1), i + 1)
        for s_ in x[1:3]:
            if s_: last[s_] = max(last.get(s_, -1), i + 1)
    def gen_body(R, free):
        L = []; N = len(ops); pkc = 0; pkof = {}; pend = []; rdat = {"Y15": 0, "u7": 1, "b33": 2}
        for k in range(N + 3):
            if k < N and ops[k][1]:
                n, a_, b_, _ = ops[k]; R[n] = free.pop(0); d = R[n]
                for h in (0, 2): L.append(f"v_pk_mul_f32 {v(d+h,2)}, {v(R[a_]+h,2)}, {v(R[b_]+h,2)} op_sel:[0,0] op_sel_hi:[1,0]")
            if 0 <= k - 3 < N and ops[k-3][3] is not None:
                r0 = row[ops[k-3][0].lstrip("=")]; p = pkof[k-3]
                if ops[k-3][3]: L.append(f"ds_write2st64_b64 v{SW+(r0&7)}, {v(p,2)}, {v(p+2,2)} offset0:{r0} offset1:{row[ops[k-3][3]]}")
                else: L.append(f"ds_write_b64 v{SW+(r0&7)}, {v(p,2)} offset:{r0*RS}")
            if 0 <= k - 1 < N and ops[k-1][1]:
                n, a_, b_, _ = ops[k-1]; d = R[n]
                for h in (0, 2): L.append(f"v_pk_fma_f32 {v(d+h,2)}, {v(R[a_]+h,2)}, {v(R[b_]+h,2)}, {v(d+h,2)} op_sel:[1,1,0] op_sel_hi:[0,1,1] neg_lo:[1,0,0]")
            if 0 <= k - 1 < N and ops[k-1][3] is not None:
                p = PK[pkc & 3]; pkc += 1; pkof[k-1] = p
                if ops[k-1][3]:
                    x = R[ops[k-1][3]]
                    L += [f"v_cvt_pk_bf16_f32 v{p+2}, v{x}, v{x+1}", f"v_cvt_pk_bf16_f32 v{p+3}, v{x+2}, v{x+3}"]
            if 0 <= k - 2 < N and ops[k-2][3] is not None:
                x = R[ops[k-2][0].lstrip("=")]; p = pkof[k-2]
                L += [f"v_cvt_pk_bf16_f32 v{p}, v{x}, v{x+1}", f"v_cvt_pk_bf16_f32 v{p+1}, v{x+2}, v{x+3}"]
            for n in [n for n in R if last[n] == k]: free.append(R.pop(n))
            if 0 <= k - 3 < N and ops[k-3][0] in rdat: pend += rd_blk(rdat[ops[k-3][0]])
            for _ in range(2 if k > N - 8 else 1):
                if pend: L.append(pend.pop(0))
        L += pend + [("tag", "fr2")]
        return L
    def rd_blk(blk): return [f"ds_read_b128 {a(aFR+32*blk+4*ks,4)}, v{RD[ks&3]} offset:{blk*BLK + 256*(ks>>2)}" for ks in range(8)]
    def frag_reads():
        L = rd_blk(3) + [("tag", "fr")]
        L += [f"v_mov_b32 v{KA_}, v{vDs}", f"v_mov_b32 v{KA_+1}, 0", f"v_mov_b32 v{KA_+2}, 0", f"v_mov_b32 v{KA_+3}, 0"]
        return L
    def tail_mfma():
        L = []
        def mf(blk, ks):
            c = v(KA_+4*blk, 4) if (ks or blk == 0) else "0"
            return f"v_mfma_f32_16x16x32_bf16 {v(KA_+4*blk,4)}, {a(aFR+32*(blk+1)+4*ks,4)}, {a(aFR+4*ks,4)}, {c}"
        L.append(("wait", "fr2"))
        for ks in range(4): L += [mf(0, ks), mf(1, ks)]
        L.append(("wait", "fr"))
        for ks in range(4): L += [mf(2, 2 * ks), mf(0, 4 + ks), mf(2, 2 * ks + 1), mf(1, 4 + ks)]
        return L
    def tail_rest():
        L = [f"v_cvt_pk_bf16_f32 v{KA_+2*q}, v{KA_+2*q}, v{KA_+2*q+1}" for q in (2, 3, 4, 5)]
        L += [f"v_cvt_pk_bf16_f32 v{KA_}, v{KA_}, v{KA_+1}", f"v_cvt_pk_bf16_f32 v{KA_+1}, v{KA_+2}, v{KA_+3}"]
        L += [f"ds_write_b32 v{vT1a}, v{KA_+4}", f"ds_write_b32 v{vT1b}, v{KA_+6}",
              f"ds_write_b16 v{vT2}, v{KA_+8}", f"ds_write_b16_d16_hi v{vT2}, v{KA_+8} offset:64",
              f"ds_write_b16 v{vT2}, v{KA_+10} offset:128", f"ds_write_b16_d16_hi v{vT2}, v{KA_+10} offset:192",
              f"ds_write_b64 v{vT0}, {v(KA_,2)}"]
        if ct:
            L += [f"ds_read_b128 {v(OB,4)}, v{vG01} offset:{TOFF-16}", f"ds_read_b128 {v(OB+4,4)}, v{vG01} offset:{TOFF-16+1024}", ("tag", "g"), ("tag", "pad"), ("tag", "pad"), ("wait", "g")]
            L += [f"buffer_store_dwordx4 {v(OB+4*k,4)}, v12, s[{sK}:{sK+3}], s{sKo} offen offset:{1024*k} {stmod}" for k in range(2)]
            return L + [f"s_add_u32 s{sKo}, s{sKo}, 2048"]
        L += [f"ds_read2_b32 {v(GB,2)}, v{vG01} offset0:32 offset1:33", f"ds_read2_b32 {v(GB+2,2)}, v{vG01} offset0:0 offset1:1",
              f"ds_read2_b32 {v(GB+4,2)}, v{vG2} offset0:0 offset1:1", f"ds_read2_b32 {v(GB+10,2)}, v{vG3h} offset0:0 offset1:1",
              f"ds_read2_b32 {v(GB+8,2)}, v{vG3l} offset0:1 offset1:2", f"ds_read_b32 v{GB+7}, v{vG3l}", ("tag", "g"), ("tag", "pad"), ("tag", "pad"), ("wait", "g")]
        def st(ob, c, kb): return f"buffer_store_dwordx4 {v(ob,4)}, v12, s[{sK}:{sK+3}], s{sKo2 if c else sKo} offen offset:{1024*kb} {stmod}"
        def pm(d, e, sel): return f"v_perm_b32 v{d}, v{e+1}, v{e}, {sel}"
        for kb in (0, 1):
            L += [pm(OB+4*kb+j, GB+2*kb, f"v{SL+q}") for j, q in enumerate((0, 2, 1, 1))] + [st(OB+4*kb, 0, kb)]
        L += [pm(OB+8+j, GB+4, f"s{sC[q]}") for j, q in enumerate((0, 1, 2, 2))] + [st(OB+8, 0, 2)]
        L += [pm(OB+12+j, GB+10-j, f"v{SL+4+q}") for j, q in enumerate((0, 1, 0, 2))] + [st(OB+12, 0, 3)]
        L += [pm(OB+16+j, GB+10-j, f"v{SL+7+q}") for j, q in enumerate((0, 1, 0, 2))] + [st(OB+16, 1, 3)]
        for kb in (0, 1): L += [pm(OB+4*kb+1, GB+2*kb, f"v{SL+3}"), st(OB+4*kb, 1, kb)]
        L += [pm(OB+8, GB+4, f"s{sC[3]}"), pm(OB+10, GB+4, f"s{sC[4]}"), st(OB+8, 1, 2)]
        L += [f"s_add_u32 s{sKo}, s{sKo}, 8192", f"s_add_u32 s{sKo2}, s{sKo2}, 8192"]
        return L
    def slice_work(more):
        L = []
        for blk in range(2):
            for th in range(2):
                for r2 in range(2):
                    L.append(f"ds_read_b64_tr_b16 {a(aTR+(blk*2+th)*4+2*r2,2)}, v{vXtr} offset:{blk*32 + th*16 + r2*256}")
        L.append(("tag", "tr"))
        for q in range(4): L.append(f"ds_read_b128 {v(XR+4*q,4)}, v{vXg} offset:{1024*q}")
        L.append(("tag", "xr"))
        L += [("tag", "pad"), ("tag", "pad"), ("wait", "xr")]
        for q in range(4): L.append(f"v_mfma_f32_16x16x32_bf16 {a(aG+4*q,4)}, {v(XR+4*q,4)}, {v(GWR,4)}, {a(aG+4*q,4)}")
        for blk in range(2):
            for th in range(2):
                L.append(f"buffer_store_dwordx4 {a(aTR+(blk*2+th)*4,4)}, v{vUst}, s[{sU}:{sU+3}], s{sUo} offen {stmod}")
                L.append(f"s_add_u32 s{sUo}, s{sUo}, {8*4096}")
        if more: L += slice_ld()
        return L
    def pf():
        if not opt.get("pf", 0): return []
        if opt["pf"] == 3: return [f"global_load_dword v{vPf}, {v(GB,2)}, off", "global_load_dword v57, v58, s[98:99] sc1"]
        if opt["pf"] == 2:
            return [f"buffer_load_dword v{PFD}, v{vPf}, s[88:91], 0 offen", f"buffer_load_dword v{PFD+1}, v{vPf}, s[88:91], 0 offen offset:64", f"v_add_u32 v{vPf}, 8192, v{vPf}"]
        return [f"buffer_load_dword v{PFD}, v{vPf}, s[88:91], 0 offen", f"buffer_load_dword v{PFD+1}, v{vPf}, s[88:91], s95 offen", f"v_add_u32 v{vPf}, 16384, v{vPf}"]
    em = Em(o)
    o("s_waitcnt vmcnt(6)")
    Hd, R, free = gen_head()
    B0 = gen_body(R, free); z0 = opt.get("z0", 2); pf0 = [pf()[0]] * 2
    if z0 == 2: B0 = merge(B0, ["s_waitcnt vmcnt(7)"] + slice_work(True) + pf0, int(len(B0) * opt.get("s0", 0.4)))
    for x in Hd + B0 + frag_reads(): em(x)
    o(f"s_mov_b32 s{sCh}, 1\ns_waitcnt vmcnt({11 if z0 == 2 else 0})")
    if opt.get("ast"): F.stamp(1, True)
    if z0 == 1:
        for x in slice_work(True) + pf0: em(x)
    F.aux_zero()
    if opt.get("stamp"):
        from gemm1b import stamp_mid1, stamp_mid2
        stamp_mid1(o)
    if opt.get("ast"): F.stamp(3, True)
    o.label(f"{name}_aloop")
    if opt.get("ast"): o("s_mov_b32 s74, s72\ns_mov_b32 s72, s70\ns_memrealtime s[70:71]\ns_waitcnt lgkmcnt(0)")
    npf = [0, 2, 2, 2][opt.get("pf", 0)]
    o(f"s_waitcnt vmcnt({nks + 4 + 5 + npf})")
    Hd, R, free = gen_head()
    S = merge(Hd[:-14], tail_mfma(), 4) + Hd[-14:]
    B = gen_body(R, free)
    T = tail_rest() + [f"s_waitcnt vmcnt({6 + nks + npf})"] + slice_work(True) + pf()
    M = merge(B, T, 0, len(T) / (opt.get("tcomp", 0.6) * len(B)))
    sp = int(len(M) * opt.get("sigpos", 0.9))
    while isinstance(M[sp], tuple) or M[sp].startswith("s_"): sp += 1
    S += M[:sp] + [f"s_cmp_lg_u32 s{sCh}, 7\ns_cbranch_scc1 {name}_nsig", F.aux_sig(), f"{name}_nsig:"] + M[sp:]
    S += frag_reads() + [f"s_add_u32 s{sCh}, s{sCh}, 1", f"s_cmp_lt_u32 s{sCh}, 8", f"s_cbranch_scc1 {name}_aloop"]
    def keep(x):
        if isinstance(x, tuple): return not (x[0] == 'wait' and 'wait' in opt.get('ax_drop', []))
        for pat in opt.get("ax_drop", []):
            if x.startswith(pat): return False
        return True
    for x in S:
        if keep(x): em(x)
    if opt.get("stamp"): stamp_mid2(o)
    if opt.get("ast"): F.stamp(4, True)
    o(f"s_lshl_b32 s36, s{sKo2}, 3\ns_add_u32 s{sKo}, s{sKo}, s36\ns_sub_u32 s{sKo}, s{sKo}, 2048")
    for x in tail_mfma() + ["s_nop 7"] + tail_rest(): em(x)
    F.aux_pre()
    o(f"""
    s_nop 7
    s_lshl_b32 s36, s{sWave}, 8
    s_add_u32 s36, s36, {GOFF}
    v_add_u32 v{t1}, s36, v{vGWa}
    """)
    for q in range(4): o(f"ds_write_b128 v{t1}, {a(aG+4*q,4)} offset:{64*q}")
    o(f"""
    v_lshlrev_b32 v{t2}, 2, v0
    v_add_u32 v{t1}, {GOFF}, v{t2}
    s_waitcnt lgkmcnt(0)
    s_barrier
    ds_read_b32 v{XU}, v{t1}
    ds_read_b32 v{XU+1}, v{t1} offset:256
    ds_read_b32 v{XU+2}, v{t1} offset:512
    ds_read_b32 v{XU+3}, v{t1} offset:768
    s_mov_b32 s38, 0xbfb8aa3b
    s_lshl_b32 s36, s{sJ}, 8
    s_waitcnt lgkmcnt(0)
    v_add_f32 v{XU}, v{XU}, v{XU+1}
    v_add_f32 v{XU+2}, v{XU+2}, v{XU+3}
    v_add_f32 v{XU}, v{XU}, v{XU+2}
    v_cvt_pk_bf16_f32 v{XU}, v{XU}, v{XU}
    v_lshlrev_b32 v{XU}, 16, v{XU}
    v_mul_f32 v{XU}, s38, v{XU}
    v_exp_f32 v{XU}, v{XU}
    s_nop 0
    v_add_f32 v{XU}, 1.0, v{XU}
    v_rcp_f32 v{XU}, v{XU}
    s_nop 0
    v_cvt_pk_bf16_f32 v{XU}, v{XU}, v{XU}
    v_lshlrev_b32 v{XU}, 16, v{XU}
    buffer_store_dword v{XU}, v{t2}, s[{sG}:{sG+3}], s36 offen {stmod}
    """)
```

```python
from asmlib import *
from gemm1b import gemm1
from conv import Conv, CWSTR, KSTR, UOFF, USTR
from aux import merge, gather_setup
COFF = 163840 - 4 * CWSTR
XOFF2 = 131072
REPL = 65536
GCNT = 49152
NREP = 32
HCNT = 32768 + 4096

class Fused:
    def __init__(self, o, name, opt):
        self.o = o; self.name = name; self.opt = opt; self.st = opt.get("fstamp", False)
        self.sWs, self.sK, self.sU, self.sH, self.sAT, self.sO, self.sG, self.sX = 8, 12, 16, 20, 84, 88, 40, 52
        (self.sTT, self.sDP, self.sKH, self.sD, self.sCB, self.sM0, self.sWoff, self.sHoff) = range(27, 35)
        self.sSW = [44, 45]; self.sSH = [46, 47]; self.sHC = 51
        self.vWd = [18, 19, 20, 21]; self.vH = [12, 13, 14, 15]; self.vA = 192
        self.STG = 192
        self.C = Conv(o, self.sD, self.sCB, self.sU, self.sK, self.sAT, 1, 2, 32, ldmod="sc1", stmod="sc1", tmp=(48, 49, 50))
        self.GA = 40; self.SL = 10; self.GB = 44; self.sC = [25, 26, 37, 58, 59]
        self.PW = 5; self.NF = 20
    def stamp(self, i, force=False):
        if self.opt.get("kst") and 0 < i < 9 and not force: return
        if i == 0:
            self.o(f"s_load_dwordx2 s[92:93], s[0:1], {KA['wd']}\ns_load_dwordx4 s[96:99], s[0:1], {KA['out']}")
        if self.st: self.o(f"{'s_memtime' if self.st == 2 else 's_memrealtime'} s[{60+2*i}:{61+2*i}]")
    def spin(self, lbl, vdst, vaddr, sbase, need, first_wait, two=False):
        n = f"{self.name}_{lbl}"
        rd = f"v_readfirstlane_b32 s48, v{vdst}" + (f"\nv_readlane_b32 s50, v{vdst}, 1\ns_lshr_b32 s50, s50, 3\ns_min_u32 s48, s48, s50" if two else "")
        return [first_wait, rd, f"s_mov_b32 s49, 0", f"s_cmp_ge_u32 s48, {need}", f"s_cbranch_scc1 {n}_go",
                f"{n}:", f"s_sleep {self.opt.get('sleep', 4)}", f"!global_load_dword v{vdst}, v{vaddr}, s[{sbase}:{sbase+1}] sc1", "s_add_u32 s49, s49, 1",
                "s_waitcnt vmcnt(0)", rd, "s_cmp_ge_u32 s49, 0x40000", f"s_cbranch_scc1 {n}_go",
                f"s_cmp_lt_u32 s48, {need}", f"s_cbranch_scc1 {n}", f"{n}_go:"]
    def emit(self, L):
        for x in L:
            if isinstance(x, str) and x.startswith("!"): self.o.raw("    " + x[1:])
            else: self.o(x)
    def setup(self):
        S = self; t = A()
        rot = S.opt.get("rot2", 1); rev = S.opt.get("rev2", 1)
        t(f"""
        s_and_b32 s3, s2, 7
        s_lshr_b32 s48, s2, 3
        s_and_b32 s49, s3, 1
        s_lshl_b32 s49, s49, 3
        s_and_b32 s50, s48, 7
        s_add_u32 s{S.sTT}, s49, s50
        s_bfe_u32 s35, s3, 0x10001
        s_lshl_b32 s49, s35, 2
        s_lshr_b32 s50, s48, 3
        s_add_u32 s{S.sDP}, s49, s50
        s_lshr_b32 s{S.sKH}, s3, 2
        s_lshl_b32 s{S.sD}, s2, 2
        s_add_u32 s{S.sD}, s{S.sD}, s24
        s_mul_i32 s{S.sCB}, s24, {CWSTR}
        s_add_u32 s{S.sCB}, s{S.sCB}, {COFF}
        s_lshl_b32 s{S.sM0}, s24, 12
        s_add_u32 s48, s{S.sTT}, s{S.sDP}
        s_and_b32 s48, s48, {rot}
        s_and_b32 s35, s35, {rev}
        s_lshl_b32 s49, s48, 1
        s_sub_u32 s{S.sSH[0]}, 1, s49
        s_add_u32 s{S.sSH[1]}, 1, s49
        s_sub_u32 s49, 27, s48
        s_cmp_eq_u32 s35, 1
        s_cselect_b32 s{S.sHoff}, s49, s48
        s_cselect_b32 s49, -1, 1
        s_mul_i32 s{S.sSH[0]}, s{S.sSH[0]}, s49
        s_mul_i32 s{S.sSH[1]}, s{S.sSH[1]}, s49
        s_lshl_b32 s{S.sWoff}, s{S.sHoff}, 17
        s_lshl_b32 s{S.sHoff}, s{S.sHoff}, 11
        s_lshl_b32 s{S.sSW[0]}, s{S.sSH[0]}, 17
        s_lshl_b32 s{S.sSW[1]}, s{S.sSH[1]}, 17
        s_lshl_b32 s{S.sSH[0]}, s{S.sSH[0]}, 11
        s_lshl_b32 s{S.sSH[1]}, s{S.sSH[1]}, 11
        v_lshrrev_b32 v19, 4, v0
        v_lshlrev_b32 v18, 11, v19
        v_bfe_u32 v20, v0, 1, 3
        v_xor_b32 v20, v20, v19
        v_lshlrev_b32 v20, 5, v20
        v_and_b32 v21, 1, v0
        v_lshl_add_u32 v20, v21, 4, v20
        v_add_u32 v18, v18, v20
        s_lshl_b32 s48, s24, 15
        s_lshl_b32 s49, s{S.sDP}, 8
        s_add_u32 s48, s48, s49
        s_mul_i32 s49, s{S.sKH}, {1792*2048}
        s_add_u32 s48, s48, s49
        v_add_u32 v18, s48, v18
        v_xor_b32 v21, 128, v18
        v_add_u32 v19, {1*(8192-1024)}, v21
        v_add_u32 v20, {2*(8192-1024)}, v18
        v_add_u32 v21, {3*(8192-1024)}, v21
        s_add_u32 s56, s6, {WS_FLAG}
        s_addc_u32 s57, s7, 0
        """)
        if "h" in S.opt.get("hot", ""): t("s_mov_b32 s46, 0\ns_mov_b32 s47, 0")
        if "w" in S.opt.get("hot", ""): t("s_mov_b32 s44, 0\ns_mov_b32 s45, 0")
        srd(t, S.sWs, 92, 3584 * 2048)
        c = Conv(t, S.sD, S.sCB, S.sU, S.sK, S.sAT, 1, 2, 32)
        c.srds()
        return [x.strip() for x in t.l if x.strip()]
    def setup2(self):
        S = self
        return [f"s_lshl_b32 s50, s{S.sD}, 11", "s_add_u32 s50, s50, 16"] + gather_setup(50, range(S.GA, S.GA + 4), 56, 66, 67, S.sC)
    def dmaW(self, st):
        S = self
        L = [f"s_add_u32 m0, s{S.sM0}, {(st & 7) * 16384}"]
        L += [f"buffer_load_dwordx4 v{S.vWd[j]}, s[{S.sWs}:{S.sWs+3}], s{S.sWoff} offen offset:{1024*j} lds" for j in range(4)]
        return L, [("tv", f"W{st}"), f"s_add_u32 s{S.sWoff}, s{S.sWoff}, s{S.sSW[st & 1]}"]
    def fh(self, st, nb):
        kd, base = self.hb[st]; return rng(kd, base + 4 * nb, 4)
    def ldH(self, st, nb):
        S = self
        L = [f"buffer_load_dwordx4 {S.fh(st, nb)}, v{S.vH[nb]}, s[{S.sH}:{S.sH+3}], s{S.sHoff} offen sc1"]
        if nb == 3: L += [("tv", f"H{st}"), f"s_add_u32 s{S.sHoff}, s{S.sHoff}, s{S.sSH[st & 1]}"]
        return L
    def sched(self, cp):
        S = self; opt = S.opt; NF = S.NF; P = {}
        def add(p, *x): P.setdefault(p, []).extend(x)
        use = lambda st: st if st < NF else NF + (st - NF) // 2
        pool = [[("v", 208), -9, 20], [("v", 224), -9, 20], [("v", 240), -9, 20]] + [[("a", b), -9, 99] for b in range(240, 63, -16)] + [[("v", 160), 0, 23], [("v", 176), 0, 23]]
        def alloc(k, rel):
            c = [b for b in pool if b[1] <= k and rel <= b[2]]
            if not c: return None
            c.sort(key=lambda b: b[2]); c[0][1] = 999; return c[0]
        S.hb = {}; S.wpath = {st: "d" for st in range(S.PW)}
        wb = {}; wiss = {}; st_ = dict(h=0, w=S.PW * 4)
        def issueW(p, k, prev):
            st, j = divmod(st_["w"], 4)
            if j == 0:
                if k >= max(0, st - 8) and p[2] >= 2: S.wpath[st] = "d"; add(prev, S.dmaW(st)[0][0])
                else:
                    b = alloc(k, use(st) - 1)
                    if b is None: return False
                    S.wpath[st] = "r"; wb[st] = b
            if S.wpath[st] == "d": add(p, S.dmaW(st)[0][1 + j])
            else: add(p, f"buffer_load_dwordx4 {rng(wb[st][0][0], wb[st][0][1] + 4 * j, 4)}, v{S.vWd[j]}, s[{S.sWs}:{S.sWs+3}], s{S.sWoff} offen offset:{1024*j}")
            if j == 3: add(p, *S.dmaW(st)[1]); wiss[st] = k
            st_["w"] += 1; return True
        def issueH(p, k):
            st, nb = divmod(st_["h"], 4)
            if nb == 0:
                b = alloc(k, st + 1 if st < NF else 99)
                if b is None: return False
                S.hb[st] = b[0]
                if st < NF: b[1] = st + 1
            add(p, *S.ldH(st, nb)); st_["h"] += 1; return True
        n = opt.get("NPW", 8) * 4; c0 = opt.get("csig", 0) * 36 + 2; c1 = opt.get("wend", (cp - 1) * 36 + 10)
        for i in range(n):
            g = c0 + (i * (c1 - c0)) // n
            assert issueW(("c", g // 36, g % 36), -5, None)
        slots = [("c", g // 36, g % 36) for g in range(cp * 36, 8 * 36) if g - cp * 36 < opt.get("hburst", 6) or g % opt.get("cpace", 4) == 0]
        lp = opt.get("lpos", [4, 7, 13, 16, 22, 27, 30])
        fp = opt.get("fpos", [1, 10, 19, 25, 26, 28, 29, 31])
        flushed = {}
        for k in range(-1, 24):
            if k >= 0:
                i = 0
                for st in sorted(wb):
                    if st in flushed or k < st - 8 or (wiss.get(st, 99) > k - opt.get("flag", 3) and k < use(st) - 2) or i + 4 > opt.get("frate", 4): continue
                    (kd, base) = wb[st][0]
                    add(("g", k, fp[i]), ("wv", f"W{st}"))
                    for j in range(4): add(("g", k, fp[i + j]), f"ds_write_b128 v{26 + ((st & 7) >> 2)}, {rng(kd, base + 4 * j, 4)} offset:{(st & 3) * 16384 + 1024 * j}")
                    i += 4; flushed[st] = k; wb[st][1] = k + 1
                    assert k <= use(st) - 2, (st, k)
            for p in (slots if k < 0 else [("g", k, g) for g in lp]):
                hd = use(st_["h"] // 4) if st_["h"] < 112 else 999
                wd = use(st_["w"] // 4) - opt.get("wlead", 1) if st_["w"] < 112 else 999
                if hd == wd == 999: break
                prev = (p[0], p[1], p[2] - 1)
                wst, wj = divmod(st_["w"], 4)
                dm = wj > 0 or (k >= max(0, wst - 8) and p[2] >= 2)
                if hd <= wd or not dm: ok = (hd < 999 and issueH(p, k)) or (wd < 999 and (dm or opt.get("regw", 1)) and issueW(p, k, prev))
                else: ok = issueW(p, k, prev) or (hd < 999 and issueH(p, k))
            if opt.get("verbose"): print(k, st_, "flushed", [s_ for s_ in flushed if flushed[s_] == k])
        assert st_["h"] == st_["w"] == 112 and set(flushed) == set(wb)
        return P
    def pf(self):
        S = self; G = []
        G.append([f"s_lshl_b32 s50, s{S.sD}, 12"])
        K = f"s[{S.sK}:{S.sK+3}], 0 offen"; GA, GB = S.GA, S.GB
        G += [[f"buffer_load_dwordx2 {v(GB,2)}, v{GA}, {K} offset:128 sc1"], [f"buffer_load_dwordx2 {v(GB+2,2)}, v{GA}, {K} sc1"],
              [f"buffer_load_dwordx2 {v(GB+4,2)}, v{GA+1}, {K} sc1"], [f"buffer_load_dwordx2 {v(GB+6,2)}, v{GA+2}, {K} sc1"],
              [f"buffer_load_dwordx4 {v(GB+8,4)}, v{GA+3}, {K} sc1"]]
        for c in range(2):
            for j in range(4): G.append([f"buffer_load_dwordx4 {a(S.STG+32+16*c+4*j,4)}, v1, s[{S.sU}:{S.sU+3}], s50 offen offset:{1024*j+16-4*c} sc1"])
        G[-1].append(("tv", "KU"))
        return G
    def peel(self, h):
        S = self; f = {}
        if h == 0:
            for i, x in enumerate(S.setup()): f.setdefault(2 + i // 3, []).append(x)
            assert max(f) < 29
            f[2].insert(0, "v_mov_b32 v23, 128"); f[3] += ["global_load_dword v22, v23, s[98:99] sc1", ("tv", "zd")]
        p = 29 if h == 0 else 4
        for st in ((0, 1, 2) if h == 0 else (3, 4)):
            L, post = S.dmaW(st)
            f.setdefault(p - 1, []).append(L[0])
            for x in L[1:]:
                f.setdefault(p, []).append(x); p += 3 if h == 0 else 6
            f[p - (3 if h == 0 else 6)] += post
        return f
    def repl(self):
        return [f"s_and_b32 s48, s{self.sD}, {NREP-1}", "s_lshl_b32 s48, s48, 7", f"s_add_u32 s48, s48, {REPL}", "v_mov_b32 v23, s48"]
    def g1_exit(self, sTT1, sFT1):
        o = self.o
        o(f"""
        s_lshl_b32 s{self.sHC}, s{sTT1}, 2
        s_and_b32 s48, s24, 2
        s_add_u32 s{self.sHC}, s{self.sHC}, s48
        s_cmp_ge_u32 s{sFT1}, 14
        s_addc_u32 s{self.sHC}, s{self.sHC}, 0
        s_lshl_b32 s{self.sHC}, s{self.sHC}, 8
        s_add_u32 s{self.sHC}, s{self.sHC}, {HCNT}
        """)
        self.emit(self.spin("sz", 22, 23, 98, 128, ("wv", "zd")) + self.repl())
        self.G = self.pf()
    def late(self):
        o = self.o; S = self
        o(f"""
        {S.name}_late:
        s_waitcnt vmcnt(0)
        v_mov_b32 v24, s{S.sHC}
        v_mov_b32 v25, 1
        s_mov_b64 exec, 1
        global_atomic_add v24, v25, s[56:57] sc1
        s_mov_b64 exec, -1
        s_mov_b32 s{S.sHC}, 0
        s_mov_b32 s{S.sK+2}, {1024 * 8192}
        s_mov_b32 s{S.sU+2}, {1024 * 4096 + 16}
        {S.name}_late2:
        """)
        S.emit(["global_load_dword v22, v23, s[56:57] sc1"] + S.spin("sb", 22, 23, 56, 128, "s_waitcnt vmcnt(0)"))
        for g in S.pf():
            for x in g: o(x)
        o(f"s_waitcnt vmcnt(0)\ns_branch {S.name}_p2")
    def epi_merge(self, n, E):
        pb = self.opt.get("pollblk", 4)
        if n == pb - 2: self.emit(["global_load_dword v22, v23, s[56:57] sc1", ("tv", "auxp")])
        if n == 3: E = merge(E, self.setup2(), 8)
        if n < pb: return E
        if n == pb:
            self.emit([("wv", "auxp"), "v_readfirstlane_b32 s48, v22", "s_nop 0", "s_cmp_ge_u32 s48, 128",
                       f"s_cselect_b32 s{self.sK+2}, s{self.sK+2}, 0", f"s_cselect_b32 s{self.sU+2}, s{self.sU+2}, 0"])
        k = self.opt.get("pfrate", 3)
        take, self.G = self.G[:k], self.G[k:]
        out = []; step = len(E) // (k + 1)
        for i, x in enumerate(E):
            out.append(x)
            if i % step == step - 1 and take and not E[i + 1].startswith("s_nop") and not x.startswith("s_nop"): out += take.pop(0)
        for g in take: out += g
        return [x for x in out if not any(isinstance(x, str) and p in x for p in self.opt.get('edrop', []))]
    def aux_zero(self):
        self.o("v_mov_b32 v58, 128\nv_mov_b32 v57, 1\ns_mov_b64 exec, 1\nglobal_atomic_add v58, v57, s[98:99] sc1\ns_mov_b64 exec, -1")
    def aux_sig(self):
        L = [f"s_add_u32 s56, s6, {WS_FLAG}", "s_addc_u32 s57, s7, 0"] + self.spin("sy", 57, 58, 98, 128, "s_waitcnt vmcnt(0)")
        L += ["v_lshlrev_b32 v58, 7, v0", f"v_add_u32 v58, {REPL}, v58", "v_mov_b32 v57, 1", "s_mov_b32 exec_hi, 0",
              "global_atomic_add v58, v57, s[56:57] sc1", "s_mov_b64 exec, -1"]
        if self.st: L.append("s_memrealtime s[64:65]")
        return "\n".join(x.lstrip("!") for x in L).replace("s48", "s36").replace("s49", "s37")
    def aux_exit(self):
        o = self.o; S = self
        o(f"""
        v_lshlrev_b32 v1, 4, v0
        s_mov_b32 s{S.sHC}, {GCNT}
        s_waitcnt vmcnt(0)
        s_barrier
        """)
        S.emit(S.spin("sx", 57, 58, 56, 128, "s_nop 0"))
        for x in S.setup() + S.setup2(): o(x)
        for g in S.pf():
            for x in g: o(x)
        srd(o, S.sH, 6, WS_H_SIZE)
        for st in range(S.PW):
            L, post = S.dmaW(st)
            S.emit(L[:1] + ["s_nop 0"] + L[1:] + post)
        o(f"s_waitcnt vmcnt({4 * S.PW})\ns_branch {S.name}_p2")
    def aux_pre(self):
        self.o(f"""
        s_lshl_b32 s36, s2, 2
        s_add_u32 s36, s36, s24
        s_and_b32 s36, s36, {NREP-1}
        s_lshl_b32 s36, s36, 7
        s_add_u32 s36, s36, {REPL}
        v_mov_b32 v58, s36
        s_add_u32 s56, s6, {WS_FLAG}
        s_addc_u32 s57, s7, 0
        global_load_dword v57, v58, s[56:57] sc1
        """)
    def phase2(self):
        o = self.o; S = self; C = S.C; opt = S.opt; name = S.name
        assert not S.G
        o(f"s_cmp_eq_u32 s{S.sK+2}, 0\ns_cbranch_scc1 {name}_late")
        o(("wv", "KU"))
        o.label(f"{name}_p2")
        S.stamp(3)
        o(f"v_add_u32 v{C.vOR}, s{S.sCB}, v1")
        UW = [f"ds_write_b128 v{C.vOR}, {a(S.STG+32+16*q+4*j,4)} offset:{off+1024*j}" for q, off in enumerate([UOFF + 64, UOFF + USTR + 64]) for j in range(4)]
        GB, SL, OB, sC = S.GB, 56, 68, S.sC
        D = [GB + 8, GB + 9, GB + 10, GB + 6, GB + 7]
        def pm(d, hi, lo, sel): return f"v_perm_b32 v{d}, v{hi}, v{lo}, {sel}"
        L = []
        for c in range(2):
            for kb in range(4):
                ob = OB + 16 * c + 4 * kb
                if kb < 2: L += [pm(ob + j, GB + 2 * kb + 1, GB + 2 * kb, f"v{SL+q}") for j, q in enumerate((0, 2 + c, 1, 1))]
                elif kb == 2: L += [pm(ob + j, GB + 5, GB + 4, f"s{sC[q]}") for j, q in enumerate((3, 1, 4, 2) if c else (0, 1, 2, 2))]
                else: L += [pm(ob + j, D[4 - j], D[3 - j], f"v{SL+4+3*c+q}") for j, q in enumerate((0, 1, 0, 2))]
                L.append(f"ds_write_b128 v{C.vOR}, {v(ob,4)} offset:{KSTR*c+1024*kb}")
        for x in merge(L, UW, 0): o(x)
        C.addrs(); C.zeroK(); C.zeroU()
        o(f"v_mov_b32 v24, s{S.sHC}\nv_mov_b32 v25, 1")
        t = A()
        t(f"""
        s_and_b32 s36, s24, 1
        s_lshr_b32 s37, s24, 1
        s_lshl_b32 s38, s{S.sTT}, 3
        s_lshl_b32 s39, s36, 2
        s_add_u32 s38, s38, s39
        s_lshl_b32 s39, s37, 1
        s_add_u32 s35, s38, s39
        s_xor_b32 s38, s35, 2
        s_mul_i32 s39, s{S.sKH}, 56
        s_add_u32 s39, s39, s37
        s_mul_i32 s100, s35, 112
        s_mul_i32 s38, s38, 112
        s_add_u32 s100, s100, s39
        s_add_u32 s38, s38, s39
        s_lshl_b32 s100, s100, 10
        s_lshl_b32 s38, s38, 10
        v_add_u32 v{S.vH[0]}, s100, v1
        v_add_u32 v{S.vH[2]}, s38, v1
        v_add_u32 v{S.vH[1]}, {112*1024}, v{S.vH[0]}
        v_add_u32 v{S.vH[3]}, {112*1024}, v{S.vH[2]}
        v_lshrrev_b32 v16, 2, v0
        v_lshlrev_b32 v17, 8, v16
        v_and_b32 v16, 7, v16
        s_lshl_b32 s38, s{S.sKH}, 2
        v_xor_b32 v16, s38, v16
        v_lshl_add_u32 v17, v16, 5, v17
        v_and_b32 v16, 3, v0
        v_lshl_add_u32 v17, v16, 3, v17
        s_lshl_b32 s38, s37, 13
        v_add_u32 v{S.vA}, s38, v17
        s_lshl_b32 s38, s{S.sTT}, 1
        s_add_u32 s38, s38, s{S.sKH}
        s_lshl_b32 s38, s38, 8
        s_add_u32 s38, s38, {HCNT}
        v_mov_b32 v23, s38
        v_add_u32 v26, s{S.sM0}, v1
        v_add_u32 v27, 65536, v26
        """)
        for m in range(1, 8): t(f"v_xor_b32 v{S.vA+m}, {32*m}, v{S.vA}")
        for m in range(8): t(f"v_xor_b32 v{S.vA+8+m}, {32*m + 65536}, v{S.vA}")
        srd(t, S.sO, 96, 2048 * 2048)
        t(f"s_add_u32 s4, s6, {WS_G}\ns_addc_u32 s5, s7, 0"); srd(t, S.sG, 4, 2048 * 4)
        t(f"s_add_u32 s4, s6, {WS_X}\ns_addc_u32 s5, s7, 0"); srd(t, S.sX, 4, 256 * 32768)
        T = []
        for x in [x.strip() for x in t.l if x.strip()]:
            if x.startswith("s_addc"): T[-1] += "\n" + x
            else: T.append(x)
        fills = {}
        for i, x in enumerate(T): fills.setdefault((2 + i // 36, i % 36), []).append(x)
        def sig_h():
            o(f"""
            s_waitcnt vmcnt(0)
            s_cmp_eq_u32 s{S.sHC}, 0
            s_cbranch_scc1 {name}_nh
            s_mov_b64 exec, 1
            """)
            o.raw("    global_atomic_add v24, v25, s[56:57] sc1")
            o(f"s_mov_b64 exec, -1\n{name}_nh:")
            S.stamp(1)
        cs = opt.get("csig", 0); cp = opt.get("cpoll", 6)
        fills.setdefault((cp - 1, 20), []).extend(["s_cmp_lg_u32 s24, 0", f"s_cbranch_scc1 {name}_nq", "!global_load_dword v22, v23, s[56:57] sc1", f"{name}_nq:"])
        S.P = S.sched(cp)
        for (kd, c, g), L in S.P.items():
            if kd == "c": fills.setdefault((c, g), []).extend(L)
        def poll_h():
            S.emit(["s_cmp_lg_u32 s24, 0", f"s_cbranch_scc1 {name}_sh_go"] + S.spin("sh", 22, 23, 56, 28, "s_waitcnt vmcnt(0)") + ["s_barrier"]); S.stamp(4)
        C.main(hooks={cs: sig_h, cp: poll_h}, fills=fills)
        S.gemm2()
    def gemm2(self):
        o = self.o; S = self; C = S.C; opt = S.opt; name = S.name
        ACC = 32
        def acc(mb, nb): return ACC + (((mb >> 2) * 2 + (nb >> 1)) * 8 + (nb & 1) * 4 + (mb & 3)) * 4
        def fa(st, i): return st * 32 + i * 4
        NF = 20
        steps = []
        for s_ in range(NF): steps.append(([(s_, mb) for mb in range(8)], [(mb, s_, mb, nb) for nb in range(4) for mb in range(8)]))
        for half in (1, 0):
            for p in range(4):
                fr = [(NF + 2 * p + e, 4 * half + m) for e in range(2) for m in range(4)]
                if p < 3: mf = [(4 * e + m, NF + 2 * p + e, 4 * half + m, nb) for e in range(2) for nb in range(4) for m in range(4)]
                else: mf = [(4 * e + m, NF + 2 * p + e, 4 * half + m, nb) for hn in (1, 0) for e in range(2) for nb in (2 * hn, 2 * hn + 1) for m in range(4)]
                steps.append((fr, mf))
        def reads(k):
            return [f"ds_read_b64_tr_b16 {a(fa(k & 1, i) + 2 * r2, 2)}, v{S.vA + 8 * ((st & 7) >> 2) + mb} offset:{(st & 3) * 16384 + r2 * 4096}"
                    for i, (st, mb) in enumerate(steps[k][0]) for r2 in range(2)]
        for x in reads(0): o(x)
        C.out()
        o(("tv", "AT"))
        S.stamp(5)
        XR = 160; PR = 208; ATF = 240; SEL = 24; OMG = [2, 3]; vG = [4, 5]
        vXW, vXR_, vFo, vFp, vAT, vOut, vCn = 6, 7, 8, 9, 10, 11, 16
        sDT = 35
        t = A()
        t(f"""
        s_lshr_b32 s36, s2, 4
        s_lshl_b32 s36, s36, 8
        s_add_u32 s36, s36, 32768
        v_mov_b32 v{vCn}, s36
        s_lshl_b32 s36, s2, 2
        s_add_u32 s36, s36, s24
        s_lshl_b32 s37, s36, 5
        v_mov_b32 v{vFo}, s37
        s_xor_b32 s37, s37, {4 << 7}
        v_mov_b32 v{vFp}, s37
        s_lshl_b32 s100, s36, 13
        s_xor_b32 s101, s100, {4 << 15}
        s_lshl_b32 s36, s24, 13
        s_add_u32 s36, s36, {XOFF2}
        v_add_u32 v{vXW}, s36, v1
        v_xor_b32 v{vXR_}, {2 << 13}, v{vXW}
        s_lshl_b32 s{sDT}, s{S.sDP}, 1
        s_add_u32 s{sDT}, s{sDT}, s{S.sKH}
        s_lshl_b32 s36, s{sDT}, 8
        s_add_u32 s36, s36, 32768
        v_mov_b32 v23, s36
        s_mov_b32 s36, {GCNT}
        v_writelane_b32 v23, s36, 1
        s_and_b32 s36, s24, 1
        s_lshl_b32 s36, s36, 7
        s_lshr_b32 s37, s24, 1
        s_lshl_b32 s37, s37, 6
        s_add_u32 s36, s36, s37
        s_lshl_b32 s37, s{S.sTT}, 8
        s_add_u32 s37, s37, s36
        s_lshl_b32 s38, s{sDT}, 18
        s_add_u32 s38, s38, s37
        s_lshl_b32 s39, s37, 1
        s_lshl_b32 s25, s37, 10
        s_lshl_b32 s36, s{sDT}, 7
        s_add_u32 s25, s25, s36
        s_add_u32 s26, s25, {16*2048}
        v_and_b32 v30, 15, v0
        v_lshrrev_b32 v31, 4, v0
        v_lshlrev_b32 v{vAT}, 12, v30
        v_lshl_add_u32 v{vAT}, v31, 4, v{vAT}
        v_lshlrev_b32 v29, 2, v30
        v_lshlrev_b32 v{vOut}, 11, v30
        v_and_b32 v28, 1, v31
        v_lshl_add_u32 v{vOut}, v28, 5, v{vOut}
        v_lshrrev_b32 v28, 1, v31
        v_lshl_add_u32 v{vOut}, v28, 4, v{vOut}
        v_lshlrev_b32 v31, 3, v31
        v_sub_u32 v17, v30, v31
        """)
        SET = [x.strip() for x in t.l if x.strip()]
        NSET = len(SET)
        SELL = [("wv", "G")]
        for nb in range(2):
            g = vG[nb]
            SELL += [x.strip() for x in f"""v_sub_f32 v{OMG[nb]}, 1.0, v{g}
            v_add_u32 v30, {16*nb}, v17
            v_cvt_pk_bf16_f32 v{OMG[nb]}, v{OMG[nb]}, v{OMG[nb]}
            v_and_b32 v31, 1, v30
            v_lshlrev_b32 v{OMG[nb]}, 16, v{OMG[nb]}
            v_cmp_eq_u32 vcc, 1, v31
            v_lshrrev_b32 v31, 16, v{g}
            v_and_b32 v{g}, 0xffff0000, v{g}
            v_ashrrev_i32 v30, 1, v30
            v_cndmask_b32 v{g}, v31, v{g}, vcc""".split("\n")]
            for q in range(4): SELL += [f"v_cmp_eq_u32 vcc, {q}, v30", f"v_cndmask_b32 v{XR+32+16+4*nb+q if False else 248+4*nb+q}, 0, v{g}, vcc"]
        SELR = 248
        ATR = 224
        seen = set()
        for k, (fr, mf) in enumerate(steps):
            if k in opt.get("kst", []): S.stamp(1 + opt["kst"].index(k), True)
            fill = {}
            def add(i, *x): fill.setdefault(i, []).extend(x)
            stages = sorted(set(x[1] for x in mf))
            if k < 24: o(("wv",) + tuple(f"H{s_}" for s_ in stages))
            o("s_waitcnt lgkmcnt(0)")
            ka = opt.get("ka", 5)
            if k < 23:
                tg = tuple(f"W{s_}" for s_, _ in steps[k + 1][0] if S.wpath[s_] == "d" and s_ >= S.PW) + (("AT",) if k == ka else ())
                if tg: add(0, ("wv",) + tg)
                add(0, "s_barrier")
            rpos = [2 + (i * 3) // 2 for i in range(16)]
            if k == 23: rpos = list(range(16))
            if k == 24: rpos = [9 + i for i in range(16)]
            if k in (24, 25): add(0, "s_barrier")
            if k + 1 < 28:
                for i, x in enumerate(reads(k + 1)): add(rpos[i], x)
            for (kd, kk, g), L in S.P.items():
                if kd == "g" and kk == k: add(g, *L)
            if k == ka:
                add(1, "s_cmp_lg_u32 s24, 0", f"s_cbranch_scc1 {name}_na", "s_mov_b64 exec, 1", f"!global_atomic_add v{vCn}, v25, s[56:57] sc1", "s_mov_b64 exec, -1", f"{name}_na:")
            kp = opt.get("kp", 21)
            if k == kp: add(10, "global_load_dword v22, v23, s[56:57] sc1", ("tv", "ap"))
            if k == kp + 1:
                assert len(SET) < 12
                add(19, *S.spin("st", 22, 23, 56, 16, ("wv", "ap"), two=True))
                for q in range(2): add(20 + q, f"buffer_load_dword v{vG[q]}, v29, s[{S.sG}:{S.sG+3}], s39 offen offset:{64*q} sc1", ("tv", "G"))
                for mb in range(4):
                    add(22 + 3 * mb, f"buffer_load_dwordx4 {v(ATR+4*mb,4)}, v{vAT}, s[{S.sAT}:{S.sAT+3}], s38 offen sc1", "s_add_u32 s38, s38, 65536")
            if k in (23, 27):
                q = 3 if k == 23 else 1
                for i in range(8): add(17 + 2 * i, f"ds_write_b128 v{vXW}, {v(ACC+32*q+4*i,4)} offset:{1024*i}")
            if k == 24:
                for i in range(8): add(1 + i, f"ds_read_b128 {v(XR+4*i,4)}, v{vXR_} offset:{1024*i}", ("tl", f"x{i}"))
            if k in (24, 25):
                sp = opt.get("xsp", 2)
                for i in range(8):
                    b = ACC + 64 + 4 * i; p = 12 + sp * i
                    L = [[("wl", f"x{i}")] * (p < 32) + [f"v_add_f32 v{b+r}, v{b+r}, v{XR+4*i+r}" for r in range(2)], [f"v_add_f32 v{b+r}, v{b+r}, v{XR+4*i+r}" for r in range(2, 4)],
                         [f"buffer_store_dwordx4 {v(b,4)}, v1, s[{S.sX}:{S.sX+3}], s100 offen offset:{1024*(i&3)} sc1"] + ["s_add_u32 s100, s100, 4096"] * (i == 3) + [("tv", "XS")]]
                    for j, x in enumerate(L):
                        if (p + j) // 32 == k - 24: add((p + j) % 32, *x)
            fk, fp = opt.get("flagpos", (27, 8))
            if k == fk:
                add(fp, ("wv", "XS"), "s_mov_b64 exec, 1", f"global_store_dword v{vFo}, v25, s[56:57] sc1", "s_mov_b64 exec, -1")
            if k == 27: add(opt.get("ppos", 30), f"global_load_dword v22, v{vFp}, s[56:57] sc1")
            BG = SET if SET else SELL
            if k == 23: assert not SET
            for i in range(1, 32):
                if i not in fill and BG and (k >= opt.get("kbg", 16) or len(SET) > NSET - 4) and not (BG is SELL and k < 25):
                    add(i, BG.pop(0))
                    while BG and isinstance(fill[i][-1], tuple) or (BG and isinstance(BG[0], tuple) and BG[0][0] == "tv"): add(i, BG.pop(0))
            for i, (fi, st, mb, nb) in enumerate(mf):
                c = v(acc(mb, nb), 4) if (mb, nb) in seen else "0"
                seen.add((mb, nb))
                o(f"v_mfma_f32_16x16x32_bf16 {v(acc(mb,nb),4)}, {a(fa(k&1,fi),4)}, {S.fh(st,nb)}, {c}")
                S.emit([x for x in fill.get(i, []) if not any(isinstance(x, str) and x.startswith(p) for p in opt.get("g2drop", []))])
            if k == 23: S.stamp(6)
        S.stamp(7)
        o("s_waitcnt lgkmcnt(0)\ns_barrier")
        for i in range(8): o(f"ds_read_b128 {v(XR+4*i,4)}, v{vXR_} offset:{1024*i}"); o(("tl", f"y{i}"))
        assert not SELL
        S.emit(S.spin("sp", 22, vFp, 56, 1, "s_waitcnt vmcnt(0)"))
        P2 = 96
        for i in range(8):
            o(f"buffer_load_dwordx4 {v(P2+4*i,4)}, v1, s[{S.sX}:{S.sX+3}], s101 offen offset:{1024*(i&3)} sc1"); o(("tv", f"p{i}"))
            if i == 3: o("s_add_u32 s101, s101, 4096")
        S.stamp(8)
        o("s_waitcnt lgkmcnt(0)")
        for i in range(8):
            b = ACC + 4 * i
            for r in range(4): o(f"v_add_f32 v{b+r}, v{b+r}, v{XR+4*i+r}")
            for r in range(4): o(f"v_mul_f32 v{b+r}, v{OMG[i>>2]}, v{b+r}")
        o("s_nop 1")
        for nb in range(2):
            for mb in range(4):
                o(f"v_mfma_f32_16x16x32_bf16 {v(acc(mb,nb),4)}, {v(ATR+4*mb,4)}, {v(SELR+4*nb,4)}, {v(acc(mb,nb),4)}")
        o("s_nop 7")
        for nb in range(2):
            for pr in range(2):
                b = acc(2 * pr, nb); d = XR + 4 * (2 * nb + pr); i = 4 * nb + 2 * pr
                o(("wv", f"p{i+1}"))
                for r in range(8): o(f"v_fma_f32 v{b+r}, v{P2+4*i+r}, v{OMG[nb]}, v{b+r}")
                for q in range(4): o(f"v_cvt_pk_bf16_f32 v{d+q}, v{b+2*q}, v{b+2*q+1}")
                o(f"s_nop 1\nv_permlane16_swap_b32 v{d}, v{d+2}\nv_permlane16_swap_b32 v{d+1}, v{d+3}")
                o(f"buffer_store_dwordx4 {v(d,4)}, v{vOut}, s[{S.sO}:{S.sO+3}], s{25+nb} offen offset:{64*pr}")
        if S.st:
            o("s_waitcnt vmcnt(0)"); S.stamp(9)
            o(f"""
            s_add_u32 s4, s6, {WS_STAMP}
            s_addc_u32 s5, s7, 0
            s_lshl_b32 s36, s2, 2
            s_add_u32 s36, s36, s24
            s_lshl_b32 s36, s36, 6
            v_mov_b32 v1, s36
            s_waitcnt lgkmcnt(0)
            """)
            for i in range(12): o(f"v_mov_b32 v{4+i}, s{60+2*min(i,9)}")
            for i in range(3): o(f"global_store_dwordx4 v1, {v(4+4*i,4)}, s[4:5] offset:{16*i}")
            if "dstamp" in opt:
                o(f"s_cmp_lg_u32 s36, {opt['dstamp'] * 256}\ns_cbranch_scc1 {name}_nd\nv_mov_b32 v1, 16")
                for i in range(1, 12): o(f"v_subrev_u32 v{4+i}, s60, v{4+i}")
                for i in range(3): o(f"global_store_dwordx4 v1, {v(4+4*i,4)}, s[98:99] offset:{16*i}")
                o(f"{name}_nd:")

def fused(o, name="fused_kernel", stamp=False, opt=None):
    opt = dict(opt or {}); opt["stamp"] = False; opt["ct"] = 1; opt.setdefault("pf", 3); opt.setdefault("pollblk", 8); opt.setdefault("NPW", 10); opt.setdefault("frate", 8); opt.setdefault("g1pf", 3); opt.setdefault("lead", 4); opt.setdefault("wd0", 3)
    return gemm1(o, name, False, opt, F=Fused(o, name, opt))
```

```python
from asmlib import *

def stamp_begin(o):
    o("s_memtime s[60:61]\ns_memrealtime s[68:69]")
def stamp_mid1(o): o("s_memtime s[62:63]\ns_memrealtime s[72:73]")
def stamp_mid2(o): o("s_memtime s[64:65]\ns_memrealtime s[74:75]")
def stamp_end(o, sWave, ws_lo, off=0, nw_shift=2):
    o(f"""
    s_waitcnt vmcnt(0)
    s_memtime s[66:67]
    s_memrealtime s[70:71]
    s_waitcnt lgkmcnt(0)
    s_sub_u32 s70, s70, s68
    s_sub_u32 s62, s62, s60
    s_sub_u32 s64, s64, s60
    s_sub_u32 s66, s66, s60
    s_add_u32 s76, s{ws_lo}, {WS_STAMP + off}
    s_addc_u32 s77, s{ws_lo+1}, 0
    s_lshl_b32 s78, s2, {nw_shift}
    s_add_u32 s78, s78, s{sWave}
    s_lshl_b32 s78, s78, 5
    s_sub_u32 s72, s72, s68
    s_sub_u32 s74, s74, s68
    v_mov_b32 v8, s72
    v_mov_b32 v9, s74
    v_mov_b32 v10, s70
    v_mov_b32 v11, s68
    v_mov_b32 v2, s62
    v_mov_b32 v3, s64
    v_mov_b32 v4, s66
    s_getreg_b32 s79, hwreg(HW_REG_XCC_ID)
    s_getreg_b32 s80, hwreg(HW_REG_HW_ID)
    s_and_b32 s79, s79, 15
    s_lshl_b32 s80, s80, 4
    s_or_b32 s79, s79, s80
    v_mov_b32 v5, s79
    v_mov_b32 v6, s78
    global_store_dwordx4 v6, v[2:5], s[76:77]
    global_store_dwordx4 v6, v[8:11], s[76:77] offset:16
    """)

def gemm1(o, name="gemm1_kernel", stamp=False, opt=None, F=None):
    opt = opt or {}
    kernel_begin(o, name)
    XB = 65536
    accA = opt.get("accA", False)
    def acc(mb, nb):
        i = nb * 8 + mb
        if accA: return ("a", 4 * i)
        if i < 56: return ("v", 32 + 4 * i)
        return ("a", 128 + 4 * (i - 56))
    def accs(mb, nb):
        k, b = acc(mb, nb); return rng(k, b, 4)
    fk = "v" if accA else "a"
    fo = 32 if accA else 0
    def fa(set_, mb): return fo + set_ * 64 + mb * 4
    def fb(set_, nb): return fo + set_ * 64 + 32 + nb * 4
    vW = [2, 3, 4, 5]
    vX = [6, 7]
    vWd = [8, 9, 10, 11]
    vXd = [12, 13, 14, 15]
    vS = 1
    sX, sWs, sH = 8, 12, 20
    sWave, sTT, sFT = 24, 25, 26
    sWoff, sXoff, sXoff2 = 27, 28, 29
    sWm0, sXm0 = 30, 31
    sCnt, sXd, sXs, sRs = 32, 33, 34, 35
    sXe, sNeg, sPos = 44, 45, 46
    sRot, sTx, sTw, sTmp = 47, 48, 49, 50
    rotm = opt.get('rot', 1); rl = opt.get('rotlate', 0)
    if opt.get("afirst", 1): o(f"s_cmp_ge_u32 s2, 256\ns_cbranch_scc1 {name}_end\ns_sub_u32 s2, s2, 32\ns_and_b32 s2, s2, 255")
    o(f"""
    s_cmp_ge_u32 s2, {opt.get("nwg", 224)}
    s_cbranch_scc1 {name}_aux
    s_load_dwordx2 s[4:5], s[0:1], {KA['u']}
    s_load_dwordx4 s[40:43], s[0:1], {KA['wg']}
    s_load_dwordx2 s[6:7], s[0:1], {KA['ws']}
    """)
    def ctouch(lbl, end, vd, va):
        o(f"""
        s_getpc_b64 s[80:81]
        {lbl}:
        v_lshlrev_b32 v{va}, 6, v0
        v_min_u32 v{va}, {end}-{lbl}, v{va}
        v_mov_b32 v{va+1}, s81
        v_add_co_u32 v{va}, vcc, s80, v{va}
        v_addc_co_u32 v{va+1}, vcc, 0, v{va+1}, vcc
        global_load_dword v{vd}, v[{va}:{va+1}], off
        """)
    if opt.get("ct1", 1): ctouch(f"{name}_pc1", f"{name}_lend", 16, 30)
    if stamp: stamp_begin(o)
    if F: F.stamp(0)
    o(f"""
    v_lshrrev_b32 v1, 6, v0
    v_and_b32 v0, 63, v0
    s_and_b32 s3, s2, 7
    v_readfirstlane_b32 s{sWave}, v1
    s_lshr_b32 s36, s2, 3
    s_and_b32 s37, s3, 1
    s_lshl_b32 s37, s37, 2
    s_and_b32 s38, s36, 3
    s_add_u32 s{sTT}, s37, s38
    s_lshr_b32 s37, s3, 1
    s_mul_i32 s37, s37, 7
    s_lshr_b32 s38, s36, 2
    s_add_u32 s{sFT}, s37, s38
    v_lshlrev_b32 v{vS}, 4, v0
    """)
    mix = opt.get("mix", 0)
    if mix == 1:
        mixv = "v_and_b32 v19, 128, v18\nv_add_u32 v18, v18, v19"
        mixs = f"s_and_b32 s39, s{sFT}, 1\ns_lshl_b32 s39, s39, 7\ns_lshl_b32 s38, s{sFT}, 8\ns_sub_u32 s38, s38, s39"
    elif mix == 7:
        mixv = f"v_and_b32 v19, 128, v18\nv_mul_u32_u24 v19, 13, v19\nv_add_u32 v18, v18, v19"
        mixs = f"s_cmp_ge_u32 s{sFT}, 14\ns_cselect_b32 s39, 14, 0\ns_add_u32 s38, s{sFT}, s39\ns_lshl_b32 s38, s38, 7"
    else:
        mixv = "s_nop 0"; mixs = f"s_lshl_b32 s38, s{sFT}, 8"
    o(f"""
    v_lshrrev_b32 v17, 4, v0
    v_and_b32 v18, 15, v0
    v_lshlrev_b32 v19, 2, v17
    v_xor_b32 v18, v18, v19
    v_lshlrev_b32 v18, 4, v18
    {mixv}
    v_mul_u32_u24 v19, 7168, v17
    v_add_u32 v18, v18, v19
    s_and_b32 s36, s{sWave}, 1
    s_mul_i32 s37, s36, {16*7168}
    {mixs}
    s_add_u32 s37, s37, s38
    v_add_u32 v{vWd[0]}, s37, v18
    v_xor_b32 v18, 32, v{vWd[0]}
    v_add_u32 v{vWd[1]}, {1*(28672-1024)}, v{vWd[0]}
    v_add_u32 v{vWd[2]}, {2*(28672-1024)}, v18
    v_add_u32 v{vWd[3]}, {3*(28672-1024)}, v18
    """)
    o(f"""
    v_lshrrev_b32 v18, 3, v0
    v_lshlrev_b32 v18, 11, v18
    v_and_b32 v19, 7, v0
    v_xor_b32 v19, v19, v17
    v_lshlrev_b32 v19, 4, v19
    v_add_u32 v18, v18, v19
    s_lshl_b32 s37, s{sTT}, 8
    s_lshl_b32 s38, s{sWave}, 6
    s_add_u32 s37, s37, s38
    s_lshl_b32 s37, s37, 11
    v_add_u32 v{vXd[0]}, s37, v18
    v_xor_b32 v18, 64, v{vXd[0]}
    v_add_u32 v{vXd[1]}, {8*2048-1024}, v18
    v_add_u32 v{vXd[2]}, {2*(8*2048-1024)}, v{vXd[0]}
    v_add_u32 v{vXd[3]}, {3*(8*2048-1024)}, v18
    """)
    o(f"""
    v_lshlrev_b32 v18, 11, v17
    v_bfe_u32 v19, v0, 2, 2
    v_lshlrev_b32 v20, 8, v19
    v_add_u32 v18, v18, v20
    v_lshlrev_b32 v19, 1, v19
    v_and_b32 v20, 1, v17
    v_xor_b32 v19, v19, v20
    s_lshl_b32 s37, s36, 2
    v_xor_b32 v19, s37, v19
    v_lshlrev_b32 v19, 5, v19
    v_add_u32 v18, v18, v19
    v_and_b32 v19, 3, v0
    v_lshlrev_b32 v19, 3, v19
    v_add_u32 v{vW[0]}, v18, v19
    """)
    for m in range(1, 4): o(f"v_xor_b32 v{vW[m]}, {32*m}, v{vW[0]}")
    o(f"""
    s_lshr_b32 s37, s{sWave}, 1
    s_lshl_b32 s37, s37, 14
    s_add_u32 s37, s37, {XB}
    v_and_b32 v18, 15, v0
    v_lshlrev_b32 v18, 7, v18
    v_add_u32 v18, s37, v18
    v_bfe_u32 v20, v0, 1, 3
    v_xor_b32 v19, v17, v20
    v_lshlrev_b32 v19, 4, v19
    v_add_u32 v{vX[0]}, v18, v19
    v_xor_b32 v{vX[1]}, 64, v{vX[0]}
    """)
    pst = F and opt.get("pst")
    if pst and opt.get("pmode", 1) < 4: F.stamp(1, True)
    o("s_waitcnt lgkmcnt(0)")
    if pst and opt.get("pmode", 1) < 4: F.stamp(2, True)
    srd(o, sX, 4, 2048 * 2048)
    o(f"""
    s_cmp_lt_u32 s{sWave}, 2
    s_cselect_b32 s40, s40, s42
    s_cselect_b32 s41, s41, s43
    """)
    srd(o, sWs, 40, 1024 * 7168)
    srd(o, sH, 6, WS_H_SIZE)
    o(f"""
    s_add_u32 s{sRot}, s{sTT}, s{sFT}
    s_and_b32 s{sRot}, s{sRot}, {rotm}
    s_mov_b32 s{sTx}, 0
    s_mov_b32 s{sTw}, 0
    s_lshl_b32 s{sXoff}, s{sRot if not rl else sTx}, 7
    s_mul_i32 s{sWoff}, s{sRot if not rl else sTx}, {64*7168}
    s_lshl_b32 s{sWm0}, s{sWave}, 12
    s_lshl_b32 s{sXm0}, s{sWave}, 13
    s_add_u32 s{sXm0}, s{sXm0}, {XB}
    """)
    advW0 = [f"s_add_u32 s{sWoff}, s{sWoff}, {32*7168}"]
    advW1 = [f"s_add_u32 s{sTw}, s{sTw}, 1", f"s_xor_b32 s{sTmp}, s{sTw}, s{sRot}", f"s_mul_i32 s{sWoff}, s{sTmp}, {64*7168}"]
    advX = [f"s_add_u32 s{sTx}, s{sTx}, 1", f"s_xor_b32 s{sTmp}, s{sTx}, s{sRot}", f"s_lshl_b32 s{sXoff}, s{sTmp}, 7"]
    def dmaW(j): return f"buffer_load_dwordx4 v{vWd[j]}, s[{sWs}:{sWs+3}], s{sWoff} offen offset:{1024*j} lds"
    def dmaX(j, half): return f"buffer_load_dwordx4 v{vXd[j]}, s[{sX}:{sX+3}], s{sXoff2 if half else sXoff} offen offset:{1024*j} lds"
    def grpW(slot):
        o(f"s_add_u32 m0, s{sWm0}, {slot*16384}")
        o("s_nop 0")
        for j in range(4): o(dmaW(j))
        for x in (advW1 if slot & 1 else advW0): o(x.replace(f", s{sRot}", ", 0") if rl and slot == 1 else x)
    def grpX(slot, half):
        o(f"s_add_u32 m0, s{sXm0}, {slot*32768 + half*4096}")
        o(f"s_add_u32 s{sXoff2}, s{sXoff}, 65536")
        for j in range(4): o(dmaX(j, half))
        if half:
            for x in advX: o(x.replace(f", s{sRot}", ", 0") if rl and slot == 0 else x)
    ZI = []
    for mb in range(8):
        for nb in range(8):
            k, b = acc(mb, nb)
            for r in range(4):
                ZI.append(f"v_mov_b32 v{b+r}, 0" if k == "v" else f"v_accvgpr_write_b32 a{b+r}, 0")
    pm = opt.get("pmode", 1)
    def zi(n):
        for _ in range(min(n, len(ZI))): o(ZI.pop(0))
    G = [lambda: grpX(0, 0), lambda: grpW(0), lambda: grpX(0, 1), lambda: grpW(1), lambda: grpX(1, 0), lambda: grpW(2), lambda: grpX(1, 1), lambda: grpW(3), lambda: grpX(2, 0)]
    for i, g in enumerate(G):
        g()
        if pm == 1 and i >= 2: zi(43)
        if pm == 2 and i == 2:
            if pst: F.stamp(3, True)
            zi(256)
            if pst: F.stamp(4, True); o("s_waitcnt vmcnt(8)"); F.stamp(5, True); o("s_waitcnt vmcnt(0)"); F.stamp(6, True)
        if pm == 3 and i == 2: zi(256)
        if pm == 4 and i >= 2: F.stamp(i - 1, True)
        if pm == 5 and i == 2:
            for q, w in enumerate((10, 8, 6, 4, 2, 0)): o(f"s_waitcnt vmcnt({w})"); F.stamp(q + 1, True)
    if pm == 4: o("s_waitcnt vmcnt(24)"); F.stamp(8, True)
    if pm in (4, 5): pst = 0
    npf1 = 0
    if pst and pm != 2: F.stamp(3, True)
    g1pf = F and opt.get("g1pf", 2)
    if g1pf == 1:
        o(f"""
        s_lshl_b32 s36, s2, 2
        s_add_u32 s36, s36, s{sWave}
        s_lshl_b32 s36, s36, 13
        v_lshrrev_b32 v18, 3, v0
        v_lshlrev_b32 v18, 7, v18
        s_add_u32 s84, s92, s36
        s_addc_u32 s85, s93, 0
        s_and_b32 s85, s85, 0xffff
        s_movk_i32 s86, 0x2000
        s_mov_b32 s87, 0x20000
        """)
    if g1pf == 1 and opt.get("wdelay"): o(f"v_subrev_u32 v18, {1024*opt['wdelay']}, v18")
    if g1pf == 3:
        lead = opt.get("lead", 8); wd0 = opt.get("wd0", 7)
        o(f"""
        s_lshr_b32 s36, s2, 5
        s_lshl_b32 s36, s36, 3
        s_add_u32 s36, s36, s{sTT}
        s_lshl_b32 s36, s36, 1
        s_and_b32 s37, s{sWave}, 1
        s_add_u32 s36, s36, s37
        s_lshl_b32 s36, s36, 3
        v_and_b32 v28, 7, v0
        v_add_u32 v29, s36, v28
        v_mul_u32_u24 v30, 4682, v29
        v_lshrrev_b32 v30, 16, v30
        v_lshlrev_b32 v29, 7, v29
        v_mul_u32_u24 v30, {7168 - 1792}, v30
        v_add_u32 v29, v29, v30
        s_bfe_u32 s37, s2, 0x20001
        s_mul_i32 s37, s37, 1792
        s_add_u32 s36, s37, {lead*64*7168}
        s_add_u32 s36, s40, s36
        s_addc_u32 s37, s41, 0
        v_mov_b32 v19, s37
        v_add_co_u32 v18, vcc, s36, v29
        v_addc_co_u32 v19, vcc, 0, v19, vcc
        s_and_b32 s36, s{sFT}, 15
        s_lshl_b32 s36, s36, 2
        s_add_u32 s36, s36, s{sWave}
        s_lshl_b32 s36, s36, 13
        s_lshl_b32 s37, s{sTT}, 19
        s_add_u32 s36, s36, s37
        s_add_u32 s36, s36, {lead*128}
        s_add_u32 s36, s4, s36
        s_addc_u32 s37, s5, 0
        v_and_b32 v29, 3, v0
        v_lshlrev_b32 v29, 11, v29
        v_mov_b32 v21, s37
        v_add_co_u32 v20, vcc, s36, v29
        v_addc_co_u32 v21, vcc, 0, v21, vcc
        s_lshl_b32 s36, s2, 2
        s_add_u32 s36, s36, s{sWave}
        s_lshl_b32 s36, s36, 13
        s_add_u32 s36, s92, s36
        s_addc_u32 s37, s93, 0
        v_lshlrev_b32 v29, 7, v28
        v_mov_b32 v23, s37
        v_add_co_u32 v22, vcc, s36, v29
        v_addc_co_u32 v23, vcc, 0, v23, vcc
        v_bfe_u32 v28, v0, 3, 2
        v_mov_b32 v24, {64*7168}
        v_mov_b32 v25, 0
        v_mov_b32 v26, 128
        v_mov_b32 v27, 1024
        v_cmp_eq_u32 vcc, 1, v28
        v_cndmask_b32 v18, v18, v20, vcc
        v_cndmask_b32 v19, v19, v21, vcc
        v_cndmask_b32 v24, v24, v26, vcc
        v_cmp_lt_u32 vcc, 1, v28
        v_cndmask_b32 v18, v18, v22, vcc
        v_cndmask_b32 v19, v19, v23, vcc
        v_cndmask_b32 v24, v24, v25, vcc
        v_cndmask_b32 v25, v25, v27, vcc
        v_mov_b32 v26, 0
        """)
        t0 = opt.get("l2t", None)
        if t0 is not None: o(f"""
        s_lshr_b32 s36, s2, 3
        s_lshl_b32 s36, s36, 2
        s_add_u32 s36, s36, s{sWave}
        s_lshl_b32 s36, s36, 2
        v_add_u32 v28, s36, v28
        v_sub_u32 v29, 1791, v28
        s_bitcmp1_b32 s2, 1
        s_cselect_b64 vcc, -1, 0
        s_cselect_b32 s38, {(-448*2048) & 0xffffffff}, {448*2048} if False else 0
        s_cselect_b32 s36, 1024, 0
        v_cndmask_b32 v28, v28, v29, vcc
        s_bfe_u32 s37, s2, 0x10002
        s_mul_i32 s37, s37, {1792*2048}
        s_add_u32 s36, s36, s37
        s_add_u32 s36, s92, s36
        s_addc_u32 s37, s93, 0
        v_and_b32 v29, 7, v0
        v_lshlrev_b32 v29, 7, v29
        v_lshl_add_u32 v29, v28, 11, v29
        v_mov_b32 v23, s37
        v_add_co_u32 v22, vcc, s36, v29
        v_addc_co_u32 v23, vcc, 0, v23, vcc
        v_mov_b32 v27, s38
        v_cmp_lt_u32 vcc, 31, v0
        v_cndmask_b32 v18, v18, v22, vcc
        v_cndmask_b32 v19, v19, v23, vcc
        v_cndmask_b32 v24, v24, v26, vcc
        v_cndmask_b32 v25, v25, v26, vcc
        v_cndmask_b32 v26, v26, v27, vcc
        """.replace(f"s_cselect_b32 s38, {(-448*2048) & 0xffffffff}, {448*2048} if False else 0", f"s_cselect_b32 s38, -1, 1\ns_mul_i32 s38, s38, {448*2048}"))
    TQ = dict(zip(opt.get("tord", "1x2d"), (18, 20, 22, 24)))
    ROT = [f"v_mov_b32 v{r}, v{r+2}" for r in range(18, 26)]
    TL = "global_load_dword v16, v[18:19], off"
    if g1pf == 2:
        r0 = opt.get("tr0", 128); nr = (1024 - r0) // 2
        o(f"""
        s_lshr_b32 s36, s2, 5
        s_lshl_b32 s36, s36, 3
        s_add_u32 s36, s36, s{sTT}
        s_lshl_b32 s36, s36, 1
        s_and_b32 s37, s{sWave}, 1
        s_add_u32 s36, s36, s37
        s_mul_i32 s36, s36, {4*7168}
        s_bfe_u32 s37, s2, 0x20001
        s_mul_i32 s37, s37, 1792
        s_add_u32 s36, s36, s37
        s_add_u32 s36, s36, {r0*7168}
        s_add_u32 s36, s40, s36
        s_addc_u32 s37, s41, 0
        v_and_b32 v28, 15, v0
        v_min_u32 v29, 13, v28
        v_lshlrev_b32 v29, 7, v29
        v_mul_u32_u24 v30, 7168, v17
        v_add_u32 v29, v29, v30
        v_mov_b32 v{TQ['1']+1}, s37
        v_add_co_u32 v{TQ['1']}, vcc, s36, v29
        v_addc_co_u32 v{TQ['1']+1}, vcc, 0, v{TQ['1']+1}, vcc
        v_add_co_u32 v{TQ['2']}, vcc, {nr*7168}, v{TQ['1']}
        v_addc_co_u32 v{TQ['2']+1}, vcc, 0, v{TQ['1']+1}, vcc
        s_and_b32 s36, s{sFT}, 15
        s_lshl_b32 s36, s36, 2
        s_add_u32 s36, s36, s{sWave}
        s_lshl_b32 s36, s36, 13
        s_lshl_b32 s37, s{sTT}, 19
        s_add_u32 s36, s36, s37
        s_add_u32 s36, s4, s36
        s_addc_u32 s37, s5, 0
        v_max_u32 v29, 3, v28
        v_lshlrev_b32 v29, 7, v29
        v_lshl_add_u32 v29, v17, 11, v29
        v_mov_b32 v{TQ['x']+1}, s37
        v_add_co_u32 v{TQ['x']}, vcc, s36, v29
        v_addc_co_u32 v{TQ['x']+1}, vcc, 0, v{TQ['x']+1}, vcc
        s_lshl_b32 s36, s2, 2
        s_add_u32 s36, s36, s{sWave}
        s_lshl_b32 s36, s36, 13
        s_add_u32 s36, s92, s36
        s_addc_u32 s37, s93, 0
        v_lshlrev_b32 v29, 7, v0
        v_mov_b32 v{TQ['d']+1}, s37
        v_add_co_u32 v{TQ['d']}, vcc, s36, v29
        v_addc_co_u32 v{TQ['d']+1}, vcc, 0, v{TQ['d']+1}, vcc
        v_mov_b32 v26, s36
        v_mov_b32 v27, s37
        """)
        if opt.get("tpro", 1):
            o(TL); npf1 = 1; opt.setdefault("vm", 17)
            for x in ROT: o(x)
    zi(256)
    def reads(set_, sl, ks2):
        Aa = []
        for mb in range(8):
            for r2 in range(2):
                Aa.append(f"ds_read_b64_tr_b16 {rng(fk, fa(set_, mb)+2*r2, 2)}, v{vW[mb&3]} offset:{sl*16384 + (mb>>2)*8192 + r2*1024}")
        Bb = [f"ds_read_b128 {rng(fk, fb(set_, nb), 4)}, v{vX[ks2]} offset:{nb*2048}" for nb in range(8)]
        L = []
        for i in range(8): L += Aa[2*i:2*i+2] + [Bb[i]]
        return L
    o(f"""
    s_mov_b32 s{sCnt}, 0
    s_add_u32 s{sXs}, s{sXm0}, {2*32768}
    s_add_u32 s{sXe}, s{sXm0}, {3*32768}
    s_mov_b32 s{sNeg}, {(-65536) & 0xffffffff}
    s_mov_b32 s{sPos}, 32768
    s_mov_b32 s{sRs}, 0
    """)
    if pst and pm != 2: F.stamp(4, True); o("s_waitcnt vmcnt(32)"); F.stamp(5, True)
    o(f"s_waitcnt vmcnt({24 + npf1})")
    if pst and pm != 2: F.stamp(6, True)
    o("s_barrier")
    if pst: F.stamp(7, True)
    if stamp: stamp_mid1(o)
    if F: F.stamp(1)
    for r in reads(0, 0, 0): o(r)
    o(".p2align 3")
    o.label(f"{name}_loop")
    order = []
    if opt.setdefault("order", "nb") == "snake":
        for mb in range(8):
            for nb in (range(8) if mb % 2 == 0 else range(7, -1, -1)): order.append((mb, nb))
    elif opt["order"] == "mb":
        order = [(mb, nb) for mb in range(8) for nb in range(8)]
    elif opt["order"] == "nb":
        order = [(mb, nb) for nb in range(8) for mb in range(8)]
    elif opt["order"] == "diag":
        order = [((i + j) % 8, j) for i in range(8) for j in range(8)]
    def substep(set_, fill, vm=None):
        o("s_waitcnt lgkmcnt(0)")
        for i, (mb, nb) in enumerate(order):
            o(f"v_mfma_f32_16x16x32_bf16 {accs(mb,nb)}, {rng(fk,fa(set_,mb),4)}, {rng(fk,fb(set_,nb),4)}, {accs(mb,nb)}")
            if i == 1:
                if vm != -1: o("s_waitcnt vmcnt(%d)" % (opt.get("vm", 16) if vm is None else vm))
                o("s_barrier")
            for ins in fill.get(i, []): o(ins)
    nodma = opt.get("nodma", False); nord = opt.get("noread", False)
    def mkfill(rd, dW, dX):
        f = {}
        def add(i, x): f.setdefault(i, []).append(x)
        for k, x in enumerate(rd):
            if not nord: add(4 + 2 * k, x)
        add(3, dW[0])
        for k, x in enumerate(dW[1:]):
            if not nodma and not opt.get("noW"): add(5 + 8 * k, x)
        add(33, dX[0])
        for k, x in enumerate(dX[1:]):
            if not nodma and not opt.get("noX"): add(35 + 8 * k, x)
        return f
    def dmW(slotoff): return [f"s_add_u32 m0, s{sWm0}, {slotoff}"] + [dmaW(j) for j in range(4)]
    def dmX(half): return [f"s_add_u32 m0, s{sXs}, {half*4096}"] + [dmaX(j, half) for j in range(4)]
    def ext(f, i, L): f.setdefault(i, []).extend(L)
    f = mkfill(reads(1, 1, 1), dmW(0), dmX(1))
    ext(f, 31, [f"s_add_u32 s{sXoff2}, s{sXoff}, 65536", f"s_add_u32 s{sWoff}, s{sWoff}, {32*7168}"])
    ext(f, 60, advX[0:2]);
    ext(f, 52, [f"s_add_u32 s{sXs}, s{sXs}, 32768"])
    ext(f, 61, advX[2:] + [f"s_cmp_eq_u32 s{sXs}, s{sXe}", f"s_cselect_b32 s{sXs}, s{sXm0}, s{sXs}"])
    ext(f, 53, [f"s_add_u32 s{sRs}, s{sRs}, 1", f"s_cmp_eq_u32 s{sRs}, 3"])
    ext(f, 54, [f"s_cselect_b32 s{sXd}, s{sNeg}, s{sPos}", f"s_cselect_b32 s{sRs}, 0, s{sRs}"])
    for m in range(4): ext(f, 55 + m, [f"v_xor_b32 v{vW[m]}, 0x8000, v{vW[m]}"])
    ext(f, 62, [f"v_add_u32 v{vX[0]}, s{sXd}, v{vX[0]}", f"s_cmp_ge_u32 s{sCnt}, 13"])
    ext(f, 63, [f"v_add_u32 v{vX[1]}, s{sXd}, v{vX[1]}", f"s_cselect_b32 s{sX+2}, 0, s{sX+2}"])
    substep(0, f)
    f = mkfill(reads(0, 0, 0), dmW(16384), dmX(0))
    ext(f, 31, advW1[0:2]); ext(f, 37, advW1[2:] + [f"s_xor_b32 s{sWm0}, s{sWm0}, 0x8000"])
    if g1pf == 2:
        ext(f, 55, [TL])
        for i, x in enumerate(ROT): ext(f, 40 + 2 * i if False else 56 + i // 2, [x])
    if g1pf == 3:
        ext(f, 55, [TL])
        ext(f, 39, [f"s_cmp_lt_u32 s{sCnt}, {15 - lead}", "s_cselect_b32 s84, -1, 0"])
        ext(f, 41, [f"s_sub_u32 s85, s{sCnt}, {wd0}", "s_cmp_lt_u32 s85, 7", "s_cselect_b32 s85, -1, 0"])
        ext(f, 45, ["v_and_b32 v20, s84, v24"]); ext(f, 47, ["v_and_or_b32 v20, s85, v25, v20"])
        ext(f, 49, [f"s_sub_u32 s86, s{sCnt}, {t0 or 0}", "s_cmp_lt_u32 s86, 3", "s_cselect_b32 s86, -1, 0"])
        ext(f, 53, ["v_and_or_b32 v20, s86, v26, v20"]); ext(f, 54, ["v_ashrrev_i32 v21, 31, v20"])
        ext(f, 57, ["v_add_co_u32 v18, vcc, v18, v20"]); ext(f, 58, ["v_addc_co_u32 v19, vcc, v21, v19, vcc"])
    if g1pf == 1: ext(f, 55, ["buffer_load_dword v16, v18, s[84:87], 0 offen"]); ext(f, 57, ["v_add_u32 v18, 1024, v18"])
    ext(f, 62, [f"s_add_u32 s{sCnt}, s{sCnt}, 1", f"s_cmp_lt_u32 s{sCnt}, {15 if F else 16}"])
    ext(f, 63, [f"s_cbranch_scc1 {name}_loop"])
    substep(1, f)
    o.label(f"{name}_lend")
    if F:
        f = F.peel(0)
        for k, x in enumerate(reads(1, 1, 1)): f.setdefault(4 + 2 * k, []).insert(0, x)
        substep(0, f, 0)
        substep(1, F.peel(1), -1)
    if stamp: stamp_mid2(o)
    if pst: F.stamp(8, True)
    if F: F.stamp(2); F.g1_exit(sTT, sFT)
    stm = opt.get("hst", "sc1") if F else ""
    o(f"""
    s_lshr_b32 s36, s{sWave}, 1
    s_lshl_b32 s36, s36, 3
    s_lshl_b32 s37, s{sTT}, 4
    s_add_u32 s36, s36, s37
    s_mul_i32 s36, s36, 112
    s_and_b32 s37, s{sWave}, 1
    s_mul_i32 s37, s37, {4 * mix if mix else 2}
    s_add_u32 s36, s36, s37
    {mixs}
    s_lshr_b32 s37, s38, 6
    s_add_u32 s36, s36, s37
    s_lshl_b32 s36, s36, 10
    s_mov_b32 s38, 0xbfb8aa3b
    s_mov_b32 s39, 0xbfb8aa3b
    s_nop 7
    """)
    T = 2
    n = 0
    for nb in range(8):
        for pr in range(2):
            st = 24 + 4 * (n & 1); n += 1
            gk, gb = acc(2 * pr, nb); uk, ub = acc(4 + 2 * pr, nb)
            E = []
            if gk == "a":
                gt = 32 if accA else 32
                for r in range(8): E.append(f"v_accvgpr_read_b32 v{gt+r}, a{gb+r}")
                gb = gt
            if uk == "a":
                for r in range(8): E.append(f"v_accvgpr_read_b32 v{10+r}, a{ub+r}")
                ub = 10
            for p in range(4): E.append(f"v_pk_mul_f32 {v(T+2*p,2)}, {v(gb+2*p,2)}, s[38:39]")
            for r in range(8): E.append(f"v_exp_f32 v{T+r}, v{T+r}")
            for p in range(4): E.append(f"v_pk_mul_f32 {v(gb+2*p,2)}, {v(gb+2*p,2)}, {v(ub+2*p,2)}")
            for p in range(4): E.append(f"v_pk_add_f32 {v(T+2*p,2)}, {v(T+2*p,2)}, 1.0 op_sel_hi:[1,0]")
            for r in range(8): E.append(f"v_rcp_f32 v{T+r}, v{T+r}")
            E.append("s_nop 0")
            for p in range(4): E.append(f"v_pk_mul_f32 {v(gb+2*p,2)}, {v(gb+2*p,2)}, {v(T+2*p,2)}")
            for p in range(4): E.append(f"v_cvt_pk_bf16_f32 v{st+p}, v{gb+2*p}, v{gb+2*p+1}")
            E.append(f"buffer_store_dwordx4 {v(st,4)}, v{vS}, s[{sH}:{sH+3}], s36 offen offset:{pr*1024} {stm}")
            if F: E = F.epi_merge(n - 1, E)
            for x in E: o(x)
        o(f"s_add_u32 s36, s36, {112*1024}")
    if F:
        F.phase2()
    if stamp: stamp_end(o, sWave, 6)
    o.label(f"{name}_end")
    o("s_endpgm")
    if F: F.late()
    o.label(f"{name}_aux")
    o(f"s_cmp_ge_u32 s2, 256\ns_cbranch_scc1 {name}_end2\ns_sub_u32 s3, s2, 224")
    from aux import aux_body
    if opt.get("ct2", 1): ctouch(f"{name}_pc2", f"{name}_end2", 57, 250)
    if stamp: stamp_begin(o)
    if F: F.stamp(0)
    aux_body(o, name, 3, opt, stmod='sc1' if F else '', F=F)
    if F: F.aux_exit()
    if stamp:
        stamp_end(o, 24, 6)
    o.label(f"{name}_end2")
    o("s_endpgm")
    if F: kernel_desc(o, name, 512, 256)
    elif accA: kernel_desc(o, name, 160 + 256, 160)
    else: kernel_desc(o, name, 256 + 160, 256)
    return f"; @launch kernel={name} grid=(256,1,1) block=(256,1,1) lds=163840"
```

```python
from asmlib import *
from gemm1b import gemm1
from conv import Conv, CWSTR, KSTR, UOFF, USTR
from aux import merge, gather_setup
COFF = 163840 - 4 * CWSTR
XOFF2 = 131072
REPL = 65536
GCNT = 49152
NREP = 64
HCNT = 32768 + 4096

class Fused:
    def __init__(self, o, name, opt):
        self.o = o; self.name = name; self.opt = opt; self.st = opt.get("fstamp", False)
        self.sWs, self.sK, self.sU, self.sH, self.sAT, self.sO, self.sG, self.sX = 8, 12, 16, 20, 84, 88, 40, 52
        (self.sTT, self.sDP, self.sKH, self.sD, self.sCB, self.sM0, self.sWoff, self.sHoff) = range(27, 35)
        self.sSW = [44, 45]; self.sSH = [46, 47]; self.sHC = 51
        self.vWd = [18, 19, 20, 21]; self.vH = [12, 13, 14, 15]; self.vA = 192
        self.STG = 192
        self.C = Conv(o, self.sD, self.sCB, self.sU, self.sK, self.sAT, 1, 2, 32, ldmod="sc1", stmod="sc1", tmp=(48, 49, 50))
        self.GA = 40; self.SL = 10; self.GB = 44; self.sC = [25, 26, 37, 58, 59]
        self.PW = 5; self.NF = 20
    def stamp(self, i, force=False):
        if self.opt.get("kst") and 0 < i < 9 and not force: return
        if i == 0:
            self.o(f"s_load_dwordx2 s[92:93], s[0:1], {KA['wd']}\ns_load_dwordx4 s[96:99], s[0:1], {KA['out']}")
        if self.st: self.o(f"{'s_memtime' if self.st == 2 else 's_memrealtime'} s[{60+2*i}:{61+2*i}]")
    def spin(self, lbl, vdst, vaddr, sbase, need, first_wait, two=False):
        n = f"{self.name}_{lbl}"
        rd = f"v_readfirstlane_b32 s48, v{vdst}" + (f"\nv_readlane_b32 s50, v{vdst}, 1\ns_lshr_b32 s50, s50, 3\ns_min_u32 s48, s48, s50" if two else "")
        return [first_wait, rd, f"s_mov_b32 s49, 0", f"s_cmp_ge_u32 s48, {need}", f"s_cbranch_scc1 {n}_go",
                f"{n}:", f"s_sleep {self.opt.get('sleepk', 4) if lbl in ('sb', 'sx') else self.opt.get('sleep', 4)}", f"!global_load_dword v{vdst}, v{vaddr}, s[{sbase}:{sbase+1}] sc1", "s_add_u32 s49, s49, 1",
                "s_waitcnt vmcnt(0)", rd, "s_cmp_ge_u32 s49, 0x40000", f"s_cbranch_scc1 {n}_go",
                f"s_cmp_lt_u32 s48, {need}", f"s_cbranch_scc1 {n}", f"{n}_go:"]
    def emit(self, L):
        for x in L:
            if isinstance(x, str) and x.startswith("!"): self.o.raw("    " + x[1:])
            else: self.o(x)
    def setup(self):
        S = self; t = A()
        rot = S.opt.get("rot2", 1); rev = S.opt.get("rev2", 1)
        t(f"""
        s_and_b32 s3, s2, 7
        s_lshr_b32 s48, s2, 3
        s_and_b32 s49, s3, 1
        s_lshl_b32 s49, s49, 3
        s_and_b32 s50, s48, 7
        s_add_u32 s{S.sTT}, s49, s50
        s_bfe_u32 s35, s3, 0x10001
        s_lshl_b32 s49, s35, 2
        s_lshr_b32 s50, s48, 3
        s_add_u32 s{S.sDP}, s49, s50
        s_lshr_b32 s{S.sKH}, s3, 2
        s_lshl_b32 s{S.sD}, s2, 2
        s_add_u32 s{S.sD}, s{S.sD}, s24
        s_mul_i32 s{S.sCB}, s24, {CWSTR}
        s_add_u32 s{S.sCB}, s{S.sCB}, {COFF}
        s_lshl_b32 s{S.sM0}, s24, 12
        s_add_u32 s48, s{S.sTT}, s{S.sDP}
        s_and_b32 s48, s48, {rot}
        s_and_b32 s35, s35, {rev}
        s_lshl_b32 s49, s48, 1
        s_sub_u32 s{S.sSH[0]}, 1, s49
        s_add_u32 s{S.sSH[1]}, 1, s49
        s_sub_u32 s49, 27, s48
        s_cmp_eq_u32 s35, 1
        s_cselect_b32 s{S.sHoff}, s49, s48
        s_cselect_b32 s49, -1, 1
        s_mul_i32 s{S.sSH[0]}, s{S.sSH[0]}, s49
        s_mul_i32 s{S.sSH[1]}, s{S.sSH[1]}, s49
        s_lshl_b32 s{S.sWoff}, s{S.sHoff}, 17
        s_lshl_b32 s{S.sHoff}, s{S.sHoff}, 11
        s_lshl_b32 s{S.sSW[0]}, s{S.sSH[0]}, 17
        s_lshl_b32 s{S.sSW[1]}, s{S.sSH[1]}, 17
        s_lshl_b32 s{S.sSH[0]}, s{S.sSH[0]}, 11
        s_lshl_b32 s{S.sSH[1]}, s{S.sSH[1]}, 11
        v_lshrrev_b32 v19, 4, v0
        v_lshlrev_b32 v18, 11, v19
        v_bfe_u32 v20, v0, 1, 3
        v_xor_b32 v20, v20, v19
        v_lshlrev_b32 v20, 5, v20
        v_and_b32 v21, 1, v0
        v_lshl_add_u32 v20, v21, 4, v20
        v_add_u32 v18, v18, v20
        s_lshl_b32 s48, s24, 15
        s_lshl_b32 s49, s{S.sDP}, 8
        s_add_u32 s48, s48, s49
        s_mul_i32 s49, s{S.sKH}, {1792*2048}
        s_add_u32 s48, s48, s49
        v_add_u32 v18, s48, v18
        v_xor_b32 v21, 128, v18
        v_add_u32 v19, {1*(8192-1024)}, v21
        v_add_u32 v20, {2*(8192-1024)}, v18
        v_add_u32 v21, {3*(8192-1024)}, v21
        s_add_u32 s56, s6, {WS_FLAG}
        s_addc_u32 s57, s7, 0
        """)
        if "h" in S.opt.get("hot", ""): t("s_mov_b32 s46, 0\ns_mov_b32 s47, 0")
        if "w" in S.opt.get("hot", ""): t("s_mov_b32 s44, 0\ns_mov_b32 s45, 0")
        srd(t, S.sWs, 92, 3584 * 2048)
        c = Conv(t, S.sD, S.sCB, S.sU, S.sK, S.sAT, 1, 2, 32)
        c.srds()
        return [x.strip() for x in t.l if x.strip()]
    def setup2(self):
        S = self
        return [f"s_lshl_b32 s50, s{S.sD}, 11", "s_add_u32 s50, s50, 16"] + gather_setup(50, range(S.GA, S.GA + 4), 56, 66, 67, S.sC)
    def dmaW(self, st):
        S = self
        L = [f"s_add_u32 m0, s{S.sM0}, {(st & 7) * 16384}"]
        L += [f"buffer_load_dwordx4 v{S.vWd[j]}, s[{S.sWs}:{S.sWs+3}], s{S.sWoff} offen offset:{1024*j} lds" for j in range(4)]
        return L, [("tv", f"W{st}"), f"s_add_u32 s{S.sWoff}, s{S.sWoff}, s{S.sSW[st & 1]}"]
    def fh(self, st, nb):
        kd, base = self.hb[st]; return rng(kd, base + 4 * nb, 4)
    def ldH(self, st, nb):
        S = self
        L = [f"buffer_load_dwordx4 {S.fh(st, nb)}, v{S.vH[nb]}, s[{S.sH}:{S.sH+3}], s{S.sHoff} offen sc1"]
        if nb == 3: L += [("tv", f"H{st}"), f"s_add_u32 s{S.sHoff}, s{S.sHoff}, s{S.sSH[st & 1]}"]
        return L
    def sched(self, cp):
        S = self; opt = S.opt; NF = S.NF; P = {}
        def add(p, *x): P.setdefault(p, []).extend(x)
        use = lambda st: st if st < NF else NF + (st - NF) // 2
        pool = [[("v", 208), -9, 20], [("v", 224), -9, 20], [("v", 240), -9, 20]] + [[("a", b), -9, 99] for b in range(240, 63, -16)] + [[("v", 160), 0, 23], [("v", 176), 0, 23]]
        def alloc(k, rel):
            c = [b for b in pool if b[1] <= k and rel <= b[2]]
            if not c: return None
            c.sort(key=lambda b: b[2]); c[0][1] = 999; return c[0]
        S.hb = {}; S.wpath = {st: "d" for st in range(S.PW)}
        wb = {}; wiss = {}; st_ = dict(h=0, w=S.PW * 4)
        def issueW(p, k, prev):
            st, j = divmod(st_["w"], 4)
            if j == 0:
                if k >= max(0, st - 8) and p[2] >= 2: S.wpath[st] = "d"; add(prev, S.dmaW(st)[0][0])
                else:
                    b = alloc(k, use(st) - 1)
                    if b is None: return False
                    S.wpath[st] = "r"; wb[st] = b
            if S.wpath[st] == "d": add(p, S.dmaW(st)[0][1 + j])
            else: add(p, f"buffer_load_dwordx4 {rng(wb[st][0][0], wb[st][0][1] + 4 * j, 4)}, v{S.vWd[j]}, s[{S.sWs}:{S.sWs+3}], s{S.sWoff} offen offset:{1024*j}")
            if j == 3: add(p, *S.dmaW(st)[1]); wiss[st] = k
            st_["w"] += 1; return True
        def issueH(p, k):
            st, nb = divmod(st_["h"], 4)
            if nb == 0:
                b = alloc(k, st + 1 if st < NF else 99)
                if b is None: return False
                S.hb[st] = b[0]
                if st < NF: b[1] = st + 1
            add(p, *S.ldH(st, nb)); st_["h"] += 1; return True
        n = opt.get("NPW", 8) * 4; c0 = opt.get("csig", 0) * 36 + 2; c1 = opt.get("wend", (cp - 1) * 36 + 10)
        for i in range(n):
            g = c0 + (i * (c1 - c0)) // n
            assert issueW(("c", g // 36, g % 36), -5, None)
        slots = [("c", g // 36, g % 36) for g in range(cp * 36, 8 * 36) if g - cp * 36 < opt.get("hburst", 6) or g % opt.get("cpace", 4) == 0]
        lp = opt.get("lpos", [4, 7, 13, 16, 22, 27, 30])
        fp = opt.get("fpos", [1, 10, 19, 25, 26, 28, 29, 31])
        flushed = {}
        for k in range(-1, 24):
            if k >= 0:
                i = 0
                for st in sorted(wb):
                    if st in flushed or k < st - 8 or (wiss.get(st, 99) > k - opt.get("flag", 3) and k < use(st) - 2) or i + 4 > opt.get("frate", 4): continue
                    (kd, base) = wb[st][0]
                    add(("g", k, fp[i]), ("wv", f"W{st}"))
                    for j in range(4): add(("g", k, fp[i + j]), f"ds_write_b128 v{26 + ((st & 7) >> 2)}, {rng(kd, base + 4 * j, 4)} offset:{(st & 3) * 16384 + 1024 * j}")
                    i += 4; flushed[st] = k; wb[st][1] = k + 1
                    assert k <= use(st) - 2, (st, k)
            for p in (slots if k < 0 else [("g", k, g) for g in lp]):
                hd = use(st_["h"] // 4) if st_["h"] < 112 else 999
                wd = use(st_["w"] // 4) - opt.get("wlead", 1) if st_["w"] < 112 else 999
                if hd == wd == 999: break
                prev = (p[0], p[1], p[2] - 1)
                wst, wj = divmod(st_["w"], 4)
                dm = wj > 0 or (k >= max(0, wst - 8) and p[2] >= 2)
                if hd <= wd or not dm: ok = (hd < 999 and issueH(p, k)) or (wd < 999 and (dm or opt.get("regw", 1)) and issueW(p, k, prev))
                else: ok = issueW(p, k, prev) or (hd < 999 and issueH(p, k))
            if opt.get("verbose"): print(k, st_, "flushed", [s_ for s_ in flushed if flushed[s_] == k])
        assert st_["h"] == st_["w"] == 112 and set(flushed) == set(wb)
        return P
    def pf(self):
        S = self; G = []
        G.append([f"s_lshl_b32 s50, s{S.sD}, 12"])
        K = f"s[{S.sK}:{S.sK+3}], 0 offen"; GA, GB = S.GA, S.GB
        G += [[f"buffer_load_dwordx2 {v(GB,2)}, v{GA}, {K} offset:128 sc1"], [f"buffer_load_dwordx2 {v(GB+2,2)}, v{GA}, {K} sc1"],
              [f"buffer_load_dwordx2 {v(GB+4,2)}, v{GA+1}, {K} sc1"], [f"buffer_load_dwordx2 {v(GB+6,2)}, v{GA+2}, {K} sc1"],
              [f"buffer_load_dwordx4 {v(GB+8,4)}, v{GA+3}, {K} sc1"]]
        for c in range(2):
            for j in range(4): G.append([f"buffer_load_dwordx4 {a(S.STG+32+16*c+4*j,4)}, v1, s[{S.sU}:{S.sU+3}], s50 offen offset:{1024*j+16-4*c} sc1"])
        G[-1].append(("tv", "KU"))
        return G
    def peel(self, h):
        S = self; f = {}
        if h == 0:
            for i, x in enumerate(S.setup()): f.setdefault(2 + i // 3, []).append(x)
            assert max(f) < 29
            f[2].insert(0, "v_mov_b32 v23, 128"); f[3] += ["global_load_dword v22, v23, s[98:99] sc1", ("tv", "zd")]
        p = 29 if h == 0 else 4
        for st in ((0, 1, 2) if h == 0 else (3, 4)):
            L, post = S.dmaW(st)
            f.setdefault(p - 1, []).append(L[0])
            for x in L[1:]:
                f.setdefault(p, []).append(x); p += 3 if h == 0 else 6
            f[p - (3 if h == 0 else 6)] += post
        return f
    def repl(self):
        return [f"s_and_b32 s48, s{self.sD}, {NREP-1}", "s_lshl_b32 s48, s48, 7", f"s_add_u32 s48, s48, {REPL}", "v_mov_b32 v23, s48"]
    def g1_exit(self, sTT1, sFT1):
        o = self.o
        o(f"""
        s_lshl_b32 s{self.sHC}, s{sTT1}, 2
        s_and_b32 s48, s24, 2
        s_add_u32 s{self.sHC}, s{self.sHC}, s48
        s_cmp_ge_u32 s{sFT1}, 14
        s_addc_u32 s{self.sHC}, s{self.sHC}, 0
        s_lshl_b32 s{self.sHC}, s{self.sHC}, 8
        s_add_u32 s{self.sHC}, s{self.sHC}, {HCNT}
        """)
        self.emit(self.spin("sz", 22, 23, 98, 128, ("wv", "zd")) + self.repl())
    def late(self):
        o = self.o; S = self
        o(f"""
        {S.name}_late:
        s_waitcnt vmcnt(0)
        v_mov_b32 v24, s{S.sHC}
        v_mov_b32 v25, 1
        s_mov_b64 exec, 1
        global_atomic_add v24, v25, s[56:57] sc1
        s_mov_b64 exec, -1
        s_mov_b32 s{S.sHC}, 0
        s_mov_b32 s{S.sK+2}, {1024 * 8192}
        s_mov_b32 s{S.sU+2}, {1024 * 4096 + 16}
        {S.name}_late2:
        """)
        S.emit(["global_load_dword v22, v23, s[56:57] sc1"] + S.spin("sb", 22, 23, 56, 32, "s_waitcnt vmcnt(0)"))
        for g in S.pf():
            for x in g: o(x)
        o(f"s_waitcnt vmcnt(0)\ns_branch {S.name}_p2")
    def epi_merge(self, n, E):
        pb = self.opt.get("pollblk", 4)
        if n == 3: E = merge(E, self.setup2(), 8)
        if n == pb - 2: E = ["global_load_dword v22, v23, s[56:57] sc1", ("tv", "auxp")] + E
        if n < pb: return E
        pre = []
        if n == pb:
            pre = [("wv", "auxp"), "\n".join(["v_readfirstlane_b32 s48, v22", "s_nop 0", "s_cmp_ge_u32 s48, 32",
                   f"s_cselect_b32 s{self.sK+2}, s{self.sK+2}, 0", f"s_cselect_b32 s{self.sU+2}, s{self.sU+2}, 0"])]
        k = self.opt.get("pfrate", 3)
        take, self.G = self.G[:k], self.G[k:]
        out = pre; step = len(E) // (k + 1)
        for i, x in enumerate(E):
            out.append(x)
            if i % step == step - 1 and take and not E[i + 1].startswith("s_nop") and not x.startswith("s_nop"): out += take.pop(0)
        for g in take: out += g
        return [x for x in out if not any(isinstance(x, str) and p in x for p in self.opt.get('edrop', []))]
    def aux_zero(self):
        self.o("v_mov_b32 v58, 128\nv_mov_b32 v57, 1\ns_mov_b64 exec, 1\nglobal_atomic_add v58, v57, s[98:99] sc1\ns_mov_b64 exec, -1")
    def aux_sig(self):
        L = [f"s_add_u32 s56, s6, {WS_FLAG}", "s_addc_u32 s57, s7, 0"] + self.spin("sy", 57, 58, 98, 128, "s_waitcnt vmcnt(0)")
        L += ["v_lshlrev_b32 v58, 7, v0", f"v_add_u32 v58, {REPL}, v58", "v_mov_b32 v57, 1", "s_barrier", "s_cmp_lg_u32 s24, 0", f"s_cbranch_scc1 {self.name}_ns2",
              "global_atomic_add v58, v57, s[56:57] sc1", f"{self.name}_ns2:"]
        if self.st: L.append("s_memrealtime s[64:65]")
        return "\n".join(x.lstrip("!") for x in L).replace("s48", "s36").replace("s49", "s37")
    def aux_exit(self):
        o = self.o; S = self
        o(f"""
        v_lshlrev_b32 v1, 4, v0
        s_mov_b32 s{S.sHC}, {GCNT}
        s_waitcnt vmcnt(0)
        s_barrier
        """)
        S.emit(S.spin("sx", 57, 58, 56, 32, "s_nop 0"))
        for x in S.setup() + S.setup2(): o(x)
        for g in S.pf():
            for x in g: o(x)
        srd(o, S.sH, 6, WS_H_SIZE)
        for st in range(S.PW):
            L, post = S.dmaW(st)
            S.emit(L[:1] + ["s_nop 0"] + L[1:] + post)
        o(f"s_waitcnt vmcnt({4 * S.PW})\ns_branch {S.name}_p2")
    def aux_pre(self):
        self.o(f"""
        s_lshl_b32 s36, s2, 2
        s_add_u32 s36, s36, s24
        s_and_b32 s36, s36, {NREP-1}
        s_lshl_b32 s36, s36, 7
        s_add_u32 s36, s36, {REPL}
        v_mov_b32 v58, s36
        s_add_u32 s56, s6, {WS_FLAG}
        s_addc_u32 s57, s7, 0
        global_load_dword v57, v58, s[56:57] sc1
        """)
    def phase2(self):
        o = self.o; S = self; C = S.C; opt = S.opt; name = S.name
        assert not S.G
        o(f"s_cmp_eq_u32 s{S.sK+2}, 0\ns_cbranch_scc1 {name}_late")
        o(("wv", "KU"))
        o.label(f"{name}_p2")
        S.stamp(3)
        o(f"v_add_u32 v{C.vOR}, s{S.sCB}, v1")
        UW = [f"ds_write_b128 v{C.vOR}, {a(S.STG+32+16*q+4*j,4)} offset:{off+1024*j}" for q, off in enumerate([UOFF + 64, UOFF + USTR + 64]) for j in range(4)]
        GB, SL, OB, sC = S.GB, 56, 68, S.sC
        D = [GB + 8, GB + 9, GB + 10, GB + 6, GB + 7]
        def pm(d, hi, lo, sel): return f"v_perm_b32 v{d}, v{hi}, v{lo}, {sel}"
        L = []
        for c in range(2):
            for kb in range(4):
                ob = OB + 16 * c + 4 * kb
                if kb < 2: L += [pm(ob + j, GB + 2 * kb + 1, GB + 2 * kb, f"v{SL+q}") for j, q in enumerate((0, 2 + c, 1, 1))]
                elif kb == 2: L += [pm(ob + j, GB + 5, GB + 4, f"s{sC[q]}") for j, q in enumerate((3, 1, 4, 2) if c else (0, 1, 2, 2))]
                else: L += [pm(ob + j, D[4 - j], D[3 - j], f"v{SL+4+3*c+q}") for j, q in enumerate((0, 1, 0, 2))]
                L.append(f"ds_write_b128 v{C.vOR}, {v(ob,4)} offset:{KSTR*c+1024*kb}")
        for x in merge(L, UW, 0): o(x)
        C.addrs(); C.zeroK(); C.zeroU()
        o(f"v_mov_b32 v24, s{S.sHC}\nv_mov_b32 v25, 1")
        t = A()
        t(f"""
        s_and_b32 s36, s24, 1
        s_lshr_b32 s37, s24, 1
        s_lshl_b32 s38, s{S.sTT}, 3
        s_lshl_b32 s39, s36, 2
        s_add_u32 s38, s38, s39
        s_lshl_b32 s39, s37, 1
        s_add_u32 s35, s38, s39
        s_xor_b32 s38, s35, 2
        s_mul_i32 s39, s{S.sKH}, 56
        s_add_u32 s39, s39, s37
        s_mul_i32 s100, s35, 112
        s_mul_i32 s38, s38, 112
        s_add_u32 s100, s100, s39
        s_add_u32 s38, s38, s39
        s_lshl_b32 s100, s100, 10
        s_lshl_b32 s38, s38, 10
        v_add_u32 v{S.vH[0]}, s100, v1
        v_add_u32 v{S.vH[2]}, s38, v1
        v_add_u32 v{S.vH[1]}, {112*1024}, v{S.vH[0]}
        v_add_u32 v{S.vH[3]}, {112*1024}, v{S.vH[2]}
        v_lshrrev_b32 v16, 2, v0
        v_lshlrev_b32 v17, 8, v16
        v_and_b32 v16, 7, v16
        s_lshl_b32 s38, s{S.sKH}, 2
        v_xor_b32 v16, s38, v16
        v_lshl_add_u32 v17, v16, 5, v17
        v_and_b32 v16, 3, v0
        v_lshl_add_u32 v17, v16, 3, v17
        s_lshl_b32 s38, s37, 13
        v_add_u32 v{S.vA}, s38, v17
        s_lshl_b32 s38, s{S.sTT}, 1
        s_add_u32 s38, s38, s{S.sKH}
        s_lshl_b32 s38, s38, 8
        s_add_u32 s38, s38, {HCNT}
        v_mov_b32 v23, s38
        v_add_u32 v26, s{S.sM0}, v1
        v_add_u32 v27, 65536, v26
        """)
        for m in range(1, 8): t(f"v_xor_b32 v{S.vA+m}, {32*m}, v{S.vA}")
        for m in range(8): t(f"v_xor_b32 v{S.vA+8+m}, {32*m + 65536}, v{S.vA}")
        srd(t, S.sO, 96, 2048 * 2048)
        t(f"s_add_u32 s4, s6, {WS_G}\ns_addc_u32 s5, s7, 0"); srd(t, S.sG, 4, 2048 * 4)
        t(f"s_add_u32 s4, s6, {WS_X}\ns_addc_u32 s5, s7, 0"); srd(t, S.sX, 4, 256 * 32768)
        T = []
        for x in [x.strip() for x in t.l if x.strip()]:
            if x.startswith("s_addc"): T[-1] += "\n" + x
            else: T.append(x)
        fills = {}
        for i, x in enumerate(T): fills.setdefault((2 + i // 36, i % 36), []).append(x)
        def sig_h():
            o(f"""
            s_waitcnt vmcnt(0)
            s_cmp_eq_u32 s{S.sHC}, 0
            s_cbranch_scc1 {name}_nh
            s_mov_b64 exec, 1
            """)
            o.raw("    global_atomic_add v24, v25, s[56:57] sc1")
            o(f"s_mov_b64 exec, -1\n{name}_nh:")
            S.stamp(1)
        cs = opt.get("csig", 0); cp = opt.get("cpoll", 6)
        fills.setdefault((cp - 1, 20), []).extend(["s_cmp_lg_u32 s24, 0", f"s_cbranch_scc1 {name}_nq", "!global_load_dword v22, v23, s[56:57] sc1", f"{name}_nq:"])
        S.P = S.sched(cp)
        for (kd, c, g), L in S.P.items():
            if kd == "c": fills.setdefault((c, g), []).extend(L)
        def poll_h():
            S.emit(["s_cmp_lg_u32 s24, 0", f"s_cbranch_scc1 {name}_sh_go"] + S.spin("sh", 22, 23, 56, 28, "s_waitcnt vmcnt(0)") + ["s_barrier"]); S.stamp(4)
        C.main(hooks={cs: sig_h, cp: poll_h}, fills=fills)
        S.gemm2()
    def gemm2(self):
        o = self.o; S = self; C = S.C; opt = S.opt; name = S.name
        ACC = 32
        def acc(mb, nb): return ACC + (((mb >> 2) * 2 + (nb >> 1)) * 8 + (nb & 1) * 4 + (mb & 3)) * 4
        def fa(st, i): return st * 32 + i * 4
        NF = 20
        steps = []
        for s_ in range(NF): steps.append(([(s_, mb) for mb in range(8)], [(mb, s_, mb, nb) for nb in range(4) for mb in range(8)]))
        for half in (1, 0):
            for p in range(4):
                fr = [(NF + 2 * p + e, 4 * half + m) for e in range(2) for m in range(4)]
                if p < 3: mf = [(4 * e + m, NF + 2 * p + e, 4 * half + m, nb) for e in range(2) for nb in range(4) for m in range(4)]
                else: mf = [(4 * e + m, NF + 2 * p + e, 4 * half + m, nb) for hn in (1, 0) for e in range(2) for nb in (2 * hn, 2 * hn + 1) for m in range(4)]
                steps.append((fr, mf))
        def reads(k):
            return [f"ds_read_b64_tr_b16 {a(fa(k & 1, i) + 2 * r2, 2)}, v{S.vA + 8 * ((st & 7) >> 2) + mb} offset:{(st & 3) * 16384 + r2 * 4096}"
                    for i, (st, mb) in enumerate(steps[k][0]) for r2 in range(2)]
        for x in reads(0): o(x)
        C.out()
        o(("tv", "AT"))
        S.stamp(5)
        XR = 160; PR = 208; ATF = 240; SEL = 24; OMG = [2, 3]; vG = [4, 5]
        vXW, vXR_, vFo, vFp, vAT, vOut, vCn = 6, 7, 8, 9, 10, 11, 16
        sDT = 35
        t = A()
        t(f"""
        s_lshr_b32 s36, s2, 4
        s_lshl_b32 s36, s36, 8
        s_add_u32 s36, s36, 32768
        v_mov_b32 v{vCn}, s36
        s_lshl_b32 s36, s2, 2
        s_add_u32 s36, s36, s24
        s_lshl_b32 s37, s36, 5
        v_mov_b32 v{vFo}, s37
        s_xor_b32 s37, s37, {4 << 7}
        v_mov_b32 v{vFp}, s37
        s_lshl_b32 s100, s36, 13
        s_xor_b32 s101, s100, {4 << 15}
        s_lshl_b32 s36, s24, 13
        s_add_u32 s36, s36, {XOFF2}
        v_add_u32 v{vXW}, s36, v1
        v_xor_b32 v{vXR_}, {2 << 13}, v{vXW}
        s_lshl_b32 s{sDT}, s{S.sDP}, 1
        s_add_u32 s{sDT}, s{sDT}, s{S.sKH}
        s_lshl_b32 s36, s{sDT}, 8
        s_add_u32 s36, s36, 32768
        v_mov_b32 v23, s36
        s_mov_b32 s36, {GCNT}
        v_writelane_b32 v23, s36, 1
        s_and_b32 s36, s24, 1
        s_lshl_b32 s36, s36, 7
        s_lshr_b32 s37, s24, 1
        s_lshl_b32 s37, s37, 6
        s_add_u32 s36, s36, s37
        s_lshl_b32 s37, s{S.sTT}, 8
        s_add_u32 s37, s37, s36
        s_lshl_b32 s38, s{sDT}, 18
        s_add_u32 s38, s38, s37
        s_lshl_b32 s39, s37, 1
        s_lshl_b32 s25, s37, 10
        s_lshl_b32 s36, s{sDT}, 7
        s_add_u32 s25, s25, s36
        s_add_u32 s26, s25, {16*2048}
        v_and_b32 v30, 15, v0
        v_lshrrev_b32 v31, 4, v0
        v_lshlrev_b32 v{vAT}, 12, v30
        v_lshl_add_u32 v{vAT}, v31, 4, v{vAT}
        v_lshlrev_b32 v29, 2, v30
        v_lshlrev_b32 v{vOut}, 11, v30
        v_and_b32 v28, 1, v31
        v_lshl_add_u32 v{vOut}, v28, 5, v{vOut}
        v_lshrrev_b32 v28, 1, v31
        v_lshl_add_u32 v{vOut}, v28, 4, v{vOut}
        v_lshlrev_b32 v31, 3, v31
        v_sub_u32 v17, v30, v31
        """)
        SET = [x.strip() for x in t.l if x.strip()]
        NSET = len(SET)
        SELL = [("wv", "G")]
        for nb in range(2):
            g = vG[nb]
            SELL += [x.strip() for x in f"""v_sub_f32 v{OMG[nb]}, 1.0, v{g}
            v_add_u32 v30, {16*nb}, v17
            v_cvt_pk_bf16_f32 v{OMG[nb]}, v{OMG[nb]}, v{OMG[nb]}
            v_and_b32 v31, 1, v30
            v_lshlrev_b32 v{OMG[nb]}, 16, v{OMG[nb]}
            v_cmp_eq_u32 vcc, 1, v31
            v_lshrrev_b32 v31, 16, v{g}
            v_and_b32 v{g}, 0xffff0000, v{g}
            v_ashrrev_i32 v30, 1, v30
            v_cndmask_b32 v{g}, v31, v{g}, vcc""".split("\n")]
            for q in range(4): SELL += [f"v_cmp_eq_u32 vcc, {q}, v30", f"v_cndmask_b32 v{XR+32+16+4*nb+q if False else 248+4*nb+q}, 0, v{g}, vcc"]
        SELR = 248
        ATR = 224
        seen = set()
        for k, (fr, mf) in enumerate(steps):
            if k in opt.get("kst", []): S.stamp(1 + opt["kst"].index(k), True)
            fill = {}
            def add(i, *x): fill.setdefault(i, []).extend(x)
            stages = sorted(set(x[1] for x in mf))
            if k < 24: o(("wv",) + tuple(f"H{s_}" for s_ in stages))
            o("s_waitcnt lgkmcnt(0)")
            ka = opt.get("ka", 5)
            if k < 23:
                tg = tuple(f"W{s_}" for s_, _ in steps[k + 1][0] if S.wpath[s_] == "d" and s_ >= S.PW) + (("AT",) if k == ka else ())
                if tg: add(0, ("wv",) + tg)
                add(0, "s_barrier")
            rpos = [2 + (i * 3) // 2 for i in range(16)]
            if k == 23: rpos = list(range(16))
            if k == 24: rpos = [9 + i for i in range(16)]
            if k in (24, 25): add(0, "s_barrier")
            if k + 1 < 28:
                for i, x in enumerate(reads(k + 1)): add(rpos[i], x)
            for (kd, kk, g), L in S.P.items():
                if kd == "g" and kk == k: add(g, *L)
            if k == ka:
                add(1, "s_cmp_lg_u32 s24, 0", f"s_cbranch_scc1 {name}_na", "s_mov_b64 exec, 1", f"!global_atomic_add v{vCn}, v25, s[56:57] sc1", "s_mov_b64 exec, -1", f"{name}_na:")
            kp = opt.get("kp", 21)
            if k == kp: add(10, "global_load_dword v22, v23, s[56:57] sc1", ("tv", "ap"))
            if k == kp + 1:
                assert len(SET) < 12
                add(19, *S.spin("st", 22, 23, 56, 16, ("wv", "ap"), two=True))
                for q in range(2): add(20 + q, f"buffer_load_dword v{vG[q]}, v29, s[{S.sG}:{S.sG+3}], s39 offen offset:{64*q} sc1", ("tv", "G"))
                for mb in range(4):
                    add(22 + 3 * mb, f"buffer_load_dwordx4 {v(ATR+4*mb,4)}, v{vAT}, s[{S.sAT}:{S.sAT+3}], s38 offen sc1", "s_add_u32 s38, s38, 65536")
            if k in (23, 27):
                q = 3 if k == 23 else 1
                for i in range(8): add(17 + 2 * i, f"ds_write_b128 v{vXW}, {v(ACC+32*q+4*i,4)} offset:{1024*i}")
            if k == 24:
                for i in range(8): add(1 + i, f"ds_read_b128 {v(XR+4*i,4)}, v{vXR_} offset:{1024*i}", ("tl", f"x{i}"))
            if k in (24, 25):
                sp = opt.get("xsp", 2)
                for i in range(8):
                    b = ACC + 64 + 4 * i; p = 12 + sp * i
                    L = [[("wl", f"x{i}")] * (p < 32) + [f"v_add_f32 v{b+r}, v{b+r}, v{XR+4*i+r}" for r in range(2)], [f"v_add_f32 v{b+r}, v{b+r}, v{XR+4*i+r}" for r in range(2, 4)],
                         [f"buffer_store_dwordx4 {v(b,4)}, v1, s[{S.sX}:{S.sX+3}], s100 offen offset:{1024*(i&3)} sc1"] + ["s_add_u32 s100, s100, 4096"] * (i == 3) + [("tv", "XS")]]
                    for j, x in enumerate(L):
                        if (p + j) // 32 == k - 24: add((p + j) % 32, *x)
            fk, fp = opt.get("flagpos", (27, 8))
            if k == fk:
                add(fp, ("wv", "XS"), "s_mov_b64 exec, 1", f"global_store_dword v{vFo}, v25, s[56:57] sc1", "s_mov_b64 exec, -1")
            if k == 27: add(opt.get("ppos", 30), f"global_load_dword v22, v{vFp}, s[56:57] sc1")
            BG = SET if SET else SELL
            if k == 23: assert not SET
            for i in range(1, 32):
                if i not in fill and BG and (k >= opt.get("kbg", 16) or len(SET) > NSET - 4) and not (BG is SELL and k < 25):
                    add(i, BG.pop(0))
                    while BG and isinstance(fill[i][-1], tuple) or (BG and isinstance(BG[0], tuple) and BG[0][0] == "tv"): add(i, BG.pop(0))
            for i, (fi, st, mb, nb) in enumerate(mf):
                c = v(acc(mb, nb), 4) if (mb, nb) in seen else "0"
                seen.add((mb, nb))
                o(f"v_mfma_f32_16x16x32_bf16 {v(acc(mb,nb),4)}, {a(fa(k&1,fi),4)}, {S.fh(st,nb)}, {c}")
                S.emit([x for x in fill.get(i, []) if not any(isinstance(x, str) and x.startswith(p) for p in opt.get("g2drop", []))])
            if k == 23: S.stamp(6)
        S.stamp(7)
        o("s_waitcnt lgkmcnt(0)\ns_barrier")
        for i in range(8): o(f"ds_read_b128 {v(XR+4*i,4)}, v{vXR_} offset:{1024*i}"); o(("tl", f"y{i}"))
        assert not SELL
        S.emit(S.spin("sp", 22, vFp, 56, 1, "s_waitcnt vmcnt(0)"))
        P2 = 96
        for i in range(8):
            o(f"buffer_load_dwordx4 {v(P2+4*i,4)}, v1, s[{S.sX}:{S.sX+3}], s101 offen offset:{1024*(i&3)} sc1"); o(("tv", f"p{i}"))
            if i == 3: o("s_add_u32 s101, s101, 4096")
        S.stamp(8)
        o("s_waitcnt lgkmcnt(0)")
        for i in range(8):
            b = ACC + 4 * i
            for r in range(4): o(f"v_add_f32 v{b+r}, v{b+r}, v{XR+4*i+r}")
            for r in range(4): o(f"v_mul_f32 v{b+r}, v{OMG[i>>2]}, v{b+r}")
        o("s_nop 1")
        for nb in range(2):
            for mb in range(4):
                o(f"v_mfma_f32_16x16x32_bf16 {v(acc(mb,nb),4)}, {v(ATR+4*mb,4)}, {v(SELR+4*nb,4)}, {v(acc(mb,nb),4)}")
        o("s_nop 7")
        for nb in range(2):
            for pr in range(2):
                b = acc(2 * pr, nb); d = XR + 4 * (2 * nb + pr); i = 4 * nb + 2 * pr
                o(("wv", f"p{i+1}"))
                for r in range(8): o(f"v_fma_f32 v{b+r}, v{P2+4*i+r}, v{OMG[nb]}, v{b+r}")
                for q in range(4): o(f"v_cvt_pk_bf16_f32 v{d+q}, v{b+2*q}, v{b+2*q+1}")
                o(f"s_nop 1\nv_permlane16_swap_b32 v{d}, v{d+2}\nv_permlane16_swap_b32 v{d+1}, v{d+3}")
                o(f"buffer_store_dwordx4 {v(d,4)}, v{vOut}, s[{S.sO}:{S.sO+3}], s{25+nb} offen offset:{64*pr}")
        if S.st:
            o("s_waitcnt vmcnt(0)"); S.stamp(9)
            o(f"""
            s_add_u32 s4, s6, {WS_STAMP}
            s_addc_u32 s5, s7, 0
            s_lshl_b32 s36, s2, 2
            s_add_u32 s36, s36, s24
            s_lshl_b32 s36, s36, 6
            v_mov_b32 v1, s36
            s_waitcnt lgkmcnt(0)
            """)
            for i in range(12): o(f"v_mov_b32 v{4+i}, s{60+2*min(i,9)}")
            for i in range(3): o(f"global_store_dwordx4 v1, {v(4+4*i,4)}, s[4:5] offset:{16*i}")
            if "dstamp" in opt:
                o(f"s_cmp_lg_u32 s36, {opt['dstamp'] * 256}\ns_cbranch_scc1 {name}_nd\nv_mov_b32 v1, 16")
                for i in range(1, 12): o(f"v_subrev_u32 v{4+i}, s60, v{4+i}")
                for i in range(3): o(f"global_store_dwordx4 v1, {v(4+4*i,4)}, s[98:99] offset:{16*i}")
                o(f"{name}_nd:")

def fused(o, name="fused_kernel", stamp=False, opt=None):
    opt = dict(opt or {}); opt["stamp"] = False; opt["ct"] = 1; opt.setdefault("pf", 3); opt.setdefault("pollblk", 8); opt.setdefault("NPW", 10); opt.setdefault("frate", 8); opt.setdefault("g1pf", 3); opt.setdefault("lead", 4); opt.setdefault("wd0", 3)
    return gemm1(o, name, False, opt, F=Fused(o, name, opt))
```

```python
from asmlib import *

def stamp_begin(o):
    o("s_memtime s[60:61]\ns_memrealtime s[68:69]")
def stamp_mid1(o): o("s_memtime s[62:63]\ns_memrealtime s[72:73]")
def stamp_mid2(o): o("s_memtime s[64:65]\ns_memrealtime s[74:75]")
def stamp_end(o, sWave, ws_lo, off=0, nw_shift=2):
    o(f"""
    s_waitcnt vmcnt(0)
    s_memtime s[66:67]
    s_memrealtime s[70:71]
    s_waitcnt lgkmcnt(0)
    s_sub_u32 s70, s70, s68
    s_sub_u32 s62, s62, s60
    s_sub_u32 s64, s64, s60
    s_sub_u32 s66, s66, s60
    s_add_u32 s76, s{ws_lo}, {WS_STAMP + off}
    s_addc_u32 s77, s{ws_lo+1}, 0
    s_lshl_b32 s78, s2, {nw_shift}
    s_add_u32 s78, s78, s{sWave}
    s_lshl_b32 s78, s78, 5
    s_sub_u32 s72, s72, s68
    s_sub_u32 s74, s74, s68
    v_mov_b32 v8, s72
    v_mov_b32 v9, s74
    v_mov_b32 v10, s70
    v_mov_b32 v11, s68
    v_mov_b32 v2, s62
    v_mov_b32 v3, s64
    v_mov_b32 v4, s66
    s_getreg_b32 s79, hwreg(HW_REG_XCC_ID)
    s_getreg_b32 s80, hwreg(HW_REG_HW_ID)
    s_and_b32 s79, s79, 15
    s_lshl_b32 s80, s80, 4
    s_or_b32 s79, s79, s80
    v_mov_b32 v5, s79
    v_mov_b32 v6, s78
    global_store_dwordx4 v6, v[2:5], s[76:77]
    global_store_dwordx4 v6, v[8:11], s[76:77] offset:16
    """)

def gemm1(o, name="gemm1_kernel", stamp=False, opt=None, F=None):
    opt = opt or {}
    kernel_begin(o, name)
    XB = 65536
    accA = opt.get("accA", False)
    def acc(mb, nb):
        i = nb * 8 + mb
        if accA: return ("a", 4 * i)
        if i < 56: return ("v", 32 + 4 * i)
        return ("a", 128 + 4 * (i - 56))
    def accs(mb, nb):
        k, b = acc(mb, nb); return rng(k, b, 4)
    fk = "v" if accA else "a"
    fo = 32 if accA else 0
    def fa(set_, mb): return fo + set_ * 64 + mb * 4
    def fb(set_, nb): return fo + set_ * 64 + 32 + nb * 4
    vW = [2, 3, 4, 5]
    vX = [6, 7]
    vWd = [8, 9, 10, 11]
    vXd = [12, 13, 14, 15]
    vS = 1
    sX, sWs, sH = 8, 12, 20
    sWave, sTT, sFT = 24, 25, 26
    sWoff, sXoff, sXoff2 = 27, 28, 29
    sWm0, sXm0 = 30, 31
    sCnt, sXd, sXs, sRs = 32, 33, 34, 35
    sXe, sNeg, sPos = 44, 45, 46
    sRot, sTx, sTw, sTmp = 47, 48, 49, 50
    rotm = opt.get('rot', 1); rl = opt.get('rotlate', 0)
    if opt.get("afirst", 1): o(f"s_cmp_ge_u32 s2, 256\ns_cbranch_scc1 {name}_end\ns_sub_u32 s2, s2, 32\ns_and_b32 s2, s2, 255")
    o(f"""
    s_cmp_ge_u32 s2, {opt.get("nwg", 224)}
    s_cbranch_scc1 {name}_aux
    s_load_dwordx2 s[4:5], s[0:1], {KA['u']}
    s_load_dwordx4 s[40:43], s[0:1], {KA['wg']}
    s_load_dwordx2 s[6:7], s[0:1], {KA['ws']}
    """)
    def ctouch(lbl, end, vd, va):
        o(f"""
        s_getpc_b64 s[80:81]
        {lbl}:
        v_lshlrev_b32 v{va}, 6, v0
        v_min_u32 v{va}, {end}-{lbl}, v{va}
        v_mov_b32 v{va+1}, s81
        v_add_co_u32 v{va}, vcc, s80, v{va}
        v_addc_co_u32 v{va+1}, vcc, 0, v{va+1}, vcc
        global_load_dword v{vd}, v[{va}:{va+1}], off
        """)
    if opt.get("ct1", 1): ctouch(f"{name}_pc1", f"{name}_lend", 16, 30)
    if stamp: stamp_begin(o)
    if F: F.stamp(0)
    o(f"""
    v_lshrrev_b32 v1, 6, v0
    v_and_b32 v0, 63, v0
    s_and_b32 s3, s2, 7
    v_readfirstlane_b32 s{sWave}, v1
    s_lshr_b32 s36, s2, 3
    s_and_b32 s37, s3, 1
    s_lshl_b32 s37, s37, 2
    s_and_b32 s38, s36, 3
    s_add_u32 s{sTT}, s37, s38
    s_lshr_b32 s37, s3, 1
    s_mul_i32 s37, s37, 7
    s_lshr_b32 s38, s36, 2
    s_add_u32 s{sFT}, s37, s38
    v_lshlrev_b32 v{vS}, 4, v0
    """)
    mix = opt.get("mix", 0)
    if mix == 1:
        mixv = "v_and_b32 v19, 128, v18\nv_add_u32 v18, v18, v19"
        mixs = f"s_and_b32 s39, s{sFT}, 1\ns_lshl_b32 s39, s39, 7\ns_lshl_b32 s38, s{sFT}, 8\ns_sub_u32 s38, s38, s39"
    elif mix == 7:
        mixv = f"v_and_b32 v19, 128, v18\nv_mul_u32_u24 v19, 13, v19\nv_add_u32 v18, v18, v19"
        mixs = f"s_cmp_ge_u32 s{sFT}, 14\ns_cselect_b32 s39, 14, 0\ns_add_u32 s38, s{sFT}, s39\ns_lshl_b32 s38, s38, 7"
    else:
        mixv = "s_nop 0"; mixs = f"s_lshl_b32 s38, s{sFT}, 8"
    o(f"""
    v_lshrrev_b32 v17, 4, v0
    v_and_b32 v18, 15, v0
    v_lshlrev_b32 v19, 2, v17
    v_xor_b32 v18, v18, v19
    v_lshlrev_b32 v18, 4, v18
    {mixv}
    v_mul_u32_u24 v19, 7168, v17
    v_add_u32 v18, v18, v19
    s_and_b32 s36, s{sWave}, 1
    s_mul_i32 s37, s36, {16*7168}
    {mixs}
    s_add_u32 s37, s37, s38
    v_add_u32 v{vWd[0]}, s37, v18
    v_xor_b32 v18, 32, v{vWd[0]}
    v_add_u32 v{vWd[1]}, {1*(28672-1024)}, v{vWd[0]}
    v_add_u32 v{vWd[2]}, {2*(28672-1024)}, v18
    v_add_u32 v{vWd[3]}, {3*(28672-1024)}, v18
    """)
    o(f"""
    v_lshrrev_b32 v18, 3, v0
    v_lshlrev_b32 v18, 11, v18
    v_and_b32 v19, 7, v0
    v_xor_b32 v19, v19, v17
    v_lshlrev_b32 v19, 4, v19
    v_add_u32 v18, v18, v19
    s_lshl_b32 s37, s{sTT}, 8
    s_lshl_b32 s38, s{sWave}, 6
    s_add_u32 s37, s37, s38
    s_lshl_b32 s37, s37, 11
    v_add_u32 v{vXd[0]}, s37, v18
    v_xor_b32 v18, 64, v{vXd[0]}
    v_add_u32 v{vXd[1]}, {8*2048-1024}, v18
    v_add_u32 v{vXd[2]}, {2*(8*2048-1024)}, v{vXd[0]}
    v_add_u32 v{vXd[3]}, {3*(8*2048-1024)}, v18
    """)
    o(f"""
    v_lshlrev_b32 v18, 11, v17
    v_bfe_u32 v19, v0, 2, 2
    v_lshlrev_b32 v20, 8, v19
    v_add_u32 v18, v18, v20
    v_lshlrev_b32 v19, 1, v19
    v_and_b32 v20, 1, v17
    v_xor_b32 v19, v19, v20
    s_lshl_b32 s37, s36, 2
    v_xor_b32 v19, s37, v19
    v_lshlrev_b32 v19, 5, v19
    v_add_u32 v18, v18, v19
    v_and_b32 v19, 3, v0
    v_lshlrev_b32 v19, 3, v19
    v_add_u32 v{vW[0]}, v18, v19
    """)
    for m in range(1, 4): o(f"v_xor_b32 v{vW[m]}, {32*m}, v{vW[0]}")
    o(f"""
    s_lshr_b32 s37, s{sWave}, 1
    s_lshl_b32 s37, s37, 14
    s_add_u32 s37, s37, {XB}
    v_and_b32 v18, 15, v0
    v_lshlrev_b32 v18, 7, v18
    v_add_u32 v18, s37, v18
    v_bfe_u32 v20, v0, 1, 3
    v_xor_b32 v19, v17, v20
    v_lshlrev_b32 v19, 4, v19
    v_add_u32 v{vX[0]}, v18, v19
    v_xor_b32 v{vX[1]}, 64, v{vX[0]}
    """)
    pst = F and opt.get("pst")
    if pst and opt.get("pmode", 1) < 4: F.stamp(1, True)
    o("s_waitcnt lgkmcnt(0)")
    if pst and opt.get("pmode", 1) < 4: F.stamp(2, True)
    srd(o, sX, 4, 2048 * 2048)
    o(f"""
    s_cmp_lt_u32 s{sWave}, 2
    s_cselect_b32 s40, s40, s42
    s_cselect_b32 s41, s41, s43
    """)
    srd(o, sWs, 40, 1024 * 7168)
    srd(o, sH, 6, WS_H_SIZE)
    o(f"""
    s_add_u32 s{sRot}, s{sTT}, s{sFT}
    s_and_b32 s{sRot}, s{sRot}, {rotm}
    s_mov_b32 s{sTx}, 0
    s_mov_b32 s{sTw}, 0
    s_lshl_b32 s{sXoff}, s{sRot if not rl else sTx}, 7
    s_mul_i32 s{sWoff}, s{sRot if not rl else sTx}, {64*7168}
    s_lshl_b32 s{sWm0}, s{sWave}, 12
    s_lshl_b32 s{sXm0}, s{sWave}, 13
    s_add_u32 s{sXm0}, s{sXm0}, {XB}
    """)
    advW0 = [f"s_add_u32 s{sWoff}, s{sWoff}, {32*7168}"]
    advW1 = [f"s_add_u32 s{sTw}, s{sTw}, 1", f"s_xor_b32 s{sTmp}, s{sTw}, s{sRot}", f"s_mul_i32 s{sWoff}, s{sTmp}, {64*7168}"]
    advX = [f"s_add_u32 s{sTx}, s{sTx}, 1", f"s_xor_b32 s{sTmp}, s{sTx}, s{sRot}", f"s_lshl_b32 s{sXoff}, s{sTmp}, 7"]
    def dmaW(j): return f"buffer_load_dwordx4 v{vWd[j]}, s[{sWs}:{sWs+3}], s{sWoff} offen offset:{1024*j} lds"
    def dmaX(j, half): return f"buffer_load_dwordx4 v{vXd[j]}, s[{sX}:{sX+3}], s{sXoff2 if half else sXoff} offen offset:{1024*j} lds"
    def grpW(slot):
        o(f"s_add_u32 m0, s{sWm0}, {slot*16384}")
        o("s_nop 0")
        for j in range(4): o(dmaW(j))
        for x in (advW1 if slot & 1 else advW0): o(x.replace(f", s{sRot}", ", 0") if rl and slot == 1 else x)
    def grpX(slot, half):
        o(f"s_add_u32 m0, s{sXm0}, {slot*32768 + half*4096}")
        o(f"s_add_u32 s{sXoff2}, s{sXoff}, 65536")
        for j in range(4): o(dmaX(j, half))
        if half:
            for x in advX: o(x.replace(f", s{sRot}", ", 0") if rl and slot == 0 else x)
    ZI = []
    for mb in range(8):
        for nb in range(8):
            k, b = acc(mb, nb)
            for r in range(4):
                ZI.append(f"v_mov_b32 v{b+r}, 0" if k == "v" else f"v_accvgpr_write_b32 a{b+r}, 0")
    pm = opt.get("pmode", 1)
    def zi(n):
        for _ in range(min(n, len(ZI))): o(ZI.pop(0))
    G = [lambda: grpX(0, 0), lambda: grpW(0), lambda: grpX(0, 1), lambda: grpW(1), lambda: grpX(1, 0), lambda: grpW(2), lambda: grpX(1, 1), lambda: grpW(3), lambda: grpX(2, 0)]
    for i, g in enumerate(G):
        g()
        if pm == 1 and i >= 2: zi(43)
        if pm == 2 and i == 2:
            if pst: F.stamp(3, True)
            zi(256)
            if pst: F.stamp(4, True); o("s_waitcnt vmcnt(8)"); F.stamp(5, True); o("s_waitcnt vmcnt(0)"); F.stamp(6, True)
        if pm == 3 and i == 2: zi(256)
        if pm == 4 and i >= 2: F.stamp(i - 1, True)
        if pm == 5 and i == 2:
            for q, w in enumerate((10, 8, 6, 4, 2, 0)): o(f"s_waitcnt vmcnt({w})"); F.stamp(q + 1, True)
    if pm == 4: o("s_waitcnt vmcnt(24)"); F.stamp(8, True)
    if pm in (4, 5): pst = 0
    npf1 = 0
    if pst and pm != 2: F.stamp(3, True)
    g1pf = F and opt.get("g1pf", 2)
    if g1pf == 1:
        o(f"""
        s_lshl_b32 s36, s2, 2
        s_add_u32 s36, s36, s{sWave}
        s_lshl_b32 s36, s36, 13
        v_lshrrev_b32 v18, 3, v0
        v_lshlrev_b32 v18, 7, v18
        s_add_u32 s84, s92, s36
        s_addc_u32 s85, s93, 0
        s_and_b32 s85, s85, 0xffff
        s_movk_i32 s86, 0x2000
        s_mov_b32 s87, 0x20000
        """)
    if g1pf == 1 and opt.get("wdelay"): o(f"v_subrev_u32 v18, {1024*opt['wdelay']}, v18")
    if g1pf == 3:
        lead = opt.get("lead", 8); wd0 = opt.get("wd0", 7)
        o(f"""
        s_lshr_b32 s36, s2, 5
        s_lshl_b32 s36, s36, 3
        s_add_u32 s36, s36, s{sTT}
        s_lshl_b32 s36, s36, 1
        s_and_b32 s37, s{sWave}, 1
        s_add_u32 s36, s36, s37
        s_lshl_b32 s36, s36, 3
        v_and_b32 v28, 7, v0
        v_add_u32 v29, s36, v28
        v_mul_u32_u24 v30, 4682, v29
        v_lshrrev_b32 v30, 16, v30
        v_lshlrev_b32 v29, 7, v29
        v_mul_u32_u24 v30, {7168 - 1792}, v30
        v_add_u32 v29, v29, v30
        s_bfe_u32 s37, s2, 0x20001
        s_mul_i32 s37, s37, 1792
        s_add_u32 s36, s37, {lead*64*7168}
        s_add_u32 s36, s40, s36
        s_addc_u32 s37, s41, 0
        v_mov_b32 v19, s37
        v_add_co_u32 v18, vcc, s36, v29
        v_addc_co_u32 v19, vcc, 0, v19, vcc
        s_and_b32 s36, s{sFT}, 15
        s_lshl_b32 s36, s36, 2
        s_add_u32 s36, s36, s{sWave}
        s_lshl_b32 s36, s36, 13
        s_lshl_b32 s37, s{sTT}, 19
        s_add_u32 s36, s36, s37
        s_add_u32 s36, s36, {lead*128}
        s_add_u32 s36, s4, s36
        s_addc_u32 s37, s5, 0
        v_and_b32 v29, 3, v0
        v_lshlrev_b32 v29, 11, v29
        v_mov_b32 v21, s37
        v_add_co_u32 v20, vcc, s36, v29
        v_addc_co_u32 v21, vcc, 0, v21, vcc
        s_lshl_b32 s36, s2, 2
        s_add_u32 s36, s36, s{sWave}
        s_lshl_b32 s36, s36, 13
        s_add_u32 s36, s92, s36
        s_addc_u32 s37, s93, 0
        v_lshlrev_b32 v29, 7, v28
        v_mov_b32 v23, s37
        v_add_co_u32 v22, vcc, s36, v29
        v_addc_co_u32 v23, vcc, 0, v23, vcc
        v_bfe_u32 v28, v0, 3, 2
        v_mov_b32 v24, {64*7168}
        v_mov_b32 v25, 0
        v_mov_b32 v26, 128
        v_mov_b32 v27, 1024
        v_cmp_eq_u32 vcc, 1, v28
        v_cndmask_b32 v18, v18, v20, vcc
        v_cndmask_b32 v19, v19, v21, vcc
        v_cndmask_b32 v24, v24, v26, vcc
        v_cmp_lt_u32 vcc, 1, v28
        v_cndmask_b32 v18, v18, v22, vcc
        v_cndmask_b32 v19, v19, v23, vcc
        v_cndmask_b32 v24, v24, v25, vcc
        v_cndmask_b32 v25, v25, v27, vcc
        v_mov_b32 v26, 0
        """)
        t0 = opt.get("l2t", None)
        if t0 is not None: o(f"""
        s_lshr_b32 s36, s2, 3
        s_lshl_b32 s36, s36, 2
        s_add_u32 s36, s36, s{sWave}
        s_lshl_b32 s36, s36, 2
        v_add_u32 v28, s36, v28
        v_sub_u32 v29, 1791, v28
        s_bitcmp1_b32 s2, 1
        s_cselect_b64 vcc, -1, 0
        s_cselect_b32 s38, {(-448*2048) & 0xffffffff}, {448*2048} if False else 0
        s_cselect_b32 s36, 1024, 0
        v_cndmask_b32 v28, v28, v29, vcc
        s_bfe_u32 s37, s2, 0x10002
        s_mul_i32 s37, s37, {1792*2048}
        s_add_u32 s36, s36, s37
        s_add_u32 s36, s92, s36
        s_addc_u32 s37, s93, 0
        v_and_b32 v29, 7, v0
        v_lshlrev_b32 v29, 7, v29
        v_lshl_add_u32 v29, v28, 11, v29
        v_mov_b32 v23, s37
        v_add_co_u32 v22, vcc, s36, v29
        v_addc_co_u32 v23, vcc, 0, v23, vcc
        v_mov_b32 v27, s38
        v_cmp_lt_u32 vcc, 31, v0
        v_cndmask_b32 v18, v18, v22, vcc
        v_cndmask_b32 v19, v19, v23, vcc
        v_cndmask_b32 v24, v24, v26, vcc
        v_cndmask_b32 v25, v25, v26, vcc
        v_cndmask_b32 v26, v26, v27, vcc
        """.replace(f"s_cselect_b32 s38, {(-448*2048) & 0xffffffff}, {448*2048} if False else 0", f"s_cselect_b32 s38, -1, 1\ns_mul_i32 s38, s38, {448*2048}"))
    TQ = dict(zip(opt.get("tord", "1x2d"), (18, 20, 22, 24)))
    ROT = [f"v_mov_b32 v{r}, v{r+2}" for r in range(18, 26)]
    TL = "global_load_dword v16, v[18:19], off"
    if g1pf == 2:
        r0 = opt.get("tr0", 128); nr = (1024 - r0) // 2
        o(f"""
        s_lshr_b32 s36, s2, 5
        s_lshl_b32 s36, s36, 3
        s_add_u32 s36, s36, s{sTT}
        s_lshl_b32 s36, s36, 1
        s_and_b32 s37, s{sWave}, 1
        s_add_u32 s36, s36, s37
        s_mul_i32 s36, s36, {4*7168}
        s_bfe_u32 s37, s2, 0x20001
        s_mul_i32 s37, s37, 1792
        s_add_u32 s36, s36, s37
        s_add_u32 s36, s36, {r0*7168}
        s_add_u32 s36, s40, s36
        s_addc_u32 s37, s41, 0
        v_and_b32 v28, 15, v0
        v_min_u32 v29, 13, v28
        v_lshlrev_b32 v29, 7, v29
        v_mul_u32_u24 v30, 7168, v17
        v_add_u32 v29, v29, v30
        v_mov_b32 v{TQ['1']+1}, s37
        v_add_co_u32 v{TQ['1']}, vcc, s36, v29
        v_addc_co_u32 v{TQ['1']+1}, vcc, 0, v{TQ['1']+1}, vcc
        v_add_co_u32 v{TQ['2']}, vcc, {nr*7168}, v{TQ['1']}
        v_addc_co_u32 v{TQ['2']+1}, vcc, 0, v{TQ['1']+1}, vcc
        s_and_b32 s36, s{sFT}, 15
        s_lshl_b32 s36, s36, 2
        s_add_u32 s36, s36, s{sWave}
        s_lshl_b32 s36, s36, 13
        s_lshl_b32 s37, s{sTT}, 19
        s_add_u32 s36, s36, s37
        s_add_u32 s36, s4, s36
        s_addc_u32 s37, s5, 0
        v_max_u32 v29, 3, v28
        v_lshlrev_b32 v29, 7, v29
        v_lshl_add_u32 v29, v17, 11, v29
        v_mov_b32 v{TQ['x']+1}, s37
        v_add_co_u32 v{TQ['x']}, vcc, s36, v29
        v_addc_co_u32 v{TQ['x']+1}, vcc, 0, v{TQ['x']+1}, vcc
        s_lshl_b32 s36, s2, 2
        s_add_u32 s36, s36, s{sWave}
        s_lshl_b32 s36, s36, 13
        s_add_u32 s36, s92, s36
        s_addc_u32 s37, s93, 0
        v_lshlrev_b32 v29, 7, v0
        v_mov_b32 v{TQ['d']+1}, s37
        v_add_co_u32 v{TQ['d']}, vcc, s36, v29
        v_addc_co_u32 v{TQ['d']+1}, vcc, 0, v{TQ['d']+1}, vcc
        v_mov_b32 v26, s36
        v_mov_b32 v27, s37
        """)
        if opt.get("tpro", 1):
            o(TL); npf1 = 1; opt.setdefault("vm", 17)
            for x in ROT: o(x)
    zi(256)
    def reads(set_, sl, ks2):
        Aa = []
        for mb in range(8):
            for r2 in range(2):
                Aa.append(f"ds_read_b64_tr_b16 {rng(fk, fa(set_, mb)+2*r2, 2)}, v{vW[mb&3]} offset:{sl*16384 + (mb>>2)*8192 + r2*1024}")
        Bb = [f"ds_read_b128 {rng(fk, fb(set_, nb), 4)}, v{vX[ks2]} offset:{nb*2048}" for nb in range(8)]
        L = []
        for i in range(8): L += Aa[2*i:2*i+2] + [Bb[i]]
        return L
    o(f"""
    s_mov_b32 s{sCnt}, 0
    s_add_u32 s{sXs}, s{sXm0}, {2*32768}
    s_add_u32 s{sXe}, s{sXm0}, {3*32768}
    s_mov_b32 s{sNeg}, {(-65536) & 0xffffffff}
    s_mov_b32 s{sPos}, 32768
    s_mov_b32 s{sRs}, 0
    """)
    if pst and pm != 2: F.stamp(4, True); o("s_waitcnt vmcnt(32)"); F.stamp(5, True)
    o(f"s_waitcnt vmcnt({24 + npf1})")
    if pst and pm != 2: F.stamp(6, True)
    o("s_barrier")
    if pst: F.stamp(7, True)
    if stamp: stamp_mid1(o)
    if F: F.stamp(1)
    for r in reads(0, 0, 0): o(r)
    o(".p2align 3")
    o.label(f"{name}_loop")
    order = []
    if opt.setdefault("order", "nb") == "snake":
        for mb in range(8):
            for nb in (range(8) if mb % 2 == 0 else range(7, -1, -1)): order.append((mb, nb))
    elif opt["order"] == "mb":
        order = [(mb, nb) for mb in range(8) for nb in range(8)]
    elif opt["order"] == "nb":
        order = [(mb, nb) for nb in range(8) for mb in range(8)]
    elif opt["order"] == "diag":
        order = [((i + j) % 8, j) for i in range(8) for j in range(8)]
    def substep(set_, fill, vm=None):
        o("s_waitcnt lgkmcnt(0)")
        for i, (mb, nb) in enumerate(order):
            o(f"v_mfma_f32_16x16x32_bf16 {accs(mb,nb)}, {rng(fk,fa(set_,mb),4)}, {rng(fk,fb(set_,nb),4)}, {accs(mb,nb)}")
            if i == 1:
                if vm != -1: o("s_waitcnt vmcnt(%d)" % (opt.get("vm", 16) if vm is None else vm))
                o("s_barrier")
            for ins in fill.get(i, []): o(ins)
    nodma = opt.get("nodma", False); nord = opt.get("noread", False)
    def mkfill(rd, dW, dX):
        f = {}
        def add(i, x): f.setdefault(i, []).append(x)
        for k, x in enumerate(rd):
            if not nord: add(4 + 2 * k, x)
        add(3, dW[0])
        for k, x in enumerate(dW[1:]):
            if not nodma and not opt.get("noW"): add(5 + 8 * k, x)
        add(33, dX[0])
        for k, x in enumerate(dX[1:]):
            if not nodma and not opt.get("noX"): add(35 + 8 * k, x)
        return f
    def dmW(slotoff): return [f"s_add_u32 m0, s{sWm0}, {slotoff}"] + [dmaW(j) for j in range(4)]
    def dmX(half): return [f"s_add_u32 m0, s{sXs}, {half*4096}"] + [dmaX(j, half) for j in range(4)]
    def ext(f, i, L): f.setdefault(i, []).extend(L)
    f = mkfill(reads(1, 1, 1), dmW(0), dmX(1))
    ext(f, 31, [f"s_add_u32 s{sXoff2}, s{sXoff}, 65536", f"s_add_u32 s{sWoff}, s{sWoff}, {32*7168}"])
    ext(f, 60, advX[0:2]);
    ext(f, 52, [f"s_add_u32 s{sXs}, s{sXs}, 32768"])
    ext(f, 61, advX[2:] + [f"s_cmp_eq_u32 s{sXs}, s{sXe}", f"s_cselect_b32 s{sXs}, s{sXm0}, s{sXs}"])
    ext(f, 53, [f"s_add_u32 s{sRs}, s{sRs}, 1", f"s_cmp_eq_u32 s{sRs}, 3"])
    ext(f, 54, [f"s_cselect_b32 s{sXd}, s{sNeg}, s{sPos}", f"s_cselect_b32 s{sRs}, 0, s{sRs}"])
    for m in range(4): ext(f, 55 + m, [f"v_xor_b32 v{vW[m]}, 0x8000, v{vW[m]}"])
    ext(f, 62, [f"v_add_u32 v{vX[0]}, s{sXd}, v{vX[0]}", f"s_cmp_ge_u32 s{sCnt}, 13"])
    ext(f, 63, [f"v_add_u32 v{vX[1]}, s{sXd}, v{vX[1]}", f"s_cselect_b32 s{sX+2}, 0, s{sX+2}"])
    substep(0, f)
    f = mkfill(reads(0, 0, 0), dmW(16384), dmX(0))
    ext(f, 31, advW1[0:2]); ext(f, 37, advW1[2:] + [f"s_xor_b32 s{sWm0}, s{sWm0}, 0x8000"])
    if g1pf == 2:
        ext(f, 55, [TL])
        for i, x in enumerate(ROT): ext(f, 40 + 2 * i if False else 56 + i // 2, [x])
    if g1pf == 3:
        ext(f, 55, [TL])
        ext(f, 39, [f"s_cmp_lt_u32 s{sCnt}, {15 - lead}", "s_cselect_b32 s84, -1, 0"])
        ext(f, 41, [f"s_sub_u32 s85, s{sCnt}, {wd0}", "s_cmp_lt_u32 s85, 7", "s_cselect_b32 s85, -1, 0"])
        ext(f, 45, ["v_and_b32 v20, s84, v24"]); ext(f, 47, ["v_and_or_b32 v20, s85, v25, v20"])
        ext(f, 49, [f"s_sub_u32 s86, s{sCnt}, {t0 or 0}", "s_cmp_lt_u32 s86, 3", "s_cselect_b32 s86, -1, 0"])
        ext(f, 53, ["v_and_or_b32 v20, s86, v26, v20"]); ext(f, 54, ["v_ashrrev_i32 v21, 31, v20"])
        ext(f, 57, ["v_add_co_u32 v18, vcc, v18, v20"]); ext(f, 58, ["v_addc_co_u32 v19, vcc, v21, v19, vcc"])
    if g1pf == 1: ext(f, 55, ["buffer_load_dword v16, v18, s[84:87], 0 offen"]); ext(f, 57, ["v_add_u32 v18, 1024, v18"])
    ext(f, 62, [f"s_add_u32 s{sCnt}, s{sCnt}, 1", f"s_cmp_lt_u32 s{sCnt}, {15 if F else 16}"])
    ext(f, 63, [f"s_cbranch_scc1 {name}_loop"])
    substep(1, f)
    o.label(f"{name}_lend")
    stm = opt.get("hst", "sc1") if F else ""
    F.G = F.pf()
    EP = []
    T = 2
    n = 0
    for nb in range(8):
        for pr in range(2):
            st = 24 + 4 * (n & 1); n += 1
            gk, gb = acc(2 * pr, nb); uk, ub = acc(4 + 2 * pr, nb)
            E = []
            if gk == "a":
                gt = 32 if accA else 32
                for r in range(8): E.append(f"v_accvgpr_read_b32 v{gt+r}, a{gb+r}")
                gb = gt
            if uk == "a":
                for r in range(8): E.append(f"v_accvgpr_read_b32 v{10+r}, a{ub+r}")
                ub = 10
            for p in range(4): E.append(f"v_pk_mul_f32 {v(T+2*p,2)}, {v(gb+2*p,2)}, s[38:39]")
            for r in range(8): E.append(f"v_exp_f32 v{T+r}, v{T+r}")
            for p in range(4): E.append(f"v_pk_mul_f32 {v(gb+2*p,2)}, {v(gb+2*p,2)}, {v(ub+2*p,2)}")
            for p in range(4): E.append(f"v_pk_add_f32 {v(T+2*p,2)}, {v(T+2*p,2)}, 1.0 op_sel_hi:[1,0]")
            for r in range(8): E.append(f"v_rcp_f32 v{T+r}, v{T+r}")
            E.append("s_nop 0")
            for p in range(4): E.append(f"v_pk_mul_f32 {v(gb+2*p,2)}, {v(gb+2*p,2)}, {v(T+2*p,2)}")
            for p in range(4): E.append(f"v_cvt_pk_bf16_f32 v{st+p}, v{gb+2*p}, v{gb+2*p+1}")
            E.append(f"buffer_store_dwordx4 {v(st,4)}, v{vS}, s[{sH}:{sH+3}], s36 offen offset:{pr*1024} {stm}")
            if F: E = F.epi_merge(n - 1, E)
            EP += E
        EP.append(f"s_add_u32 s36, s36, {112*1024}")
    def mid():
        if stamp: stamp_mid2(o)
        if pst: F.stamp(8, True)
        if F: F.stamp(2); F.g1_exit(sTT, sFT)
        o(f"""
    s_lshr_b32 s36, s{sWave}, 1
    s_lshl_b32 s36, s36, 3
    s_lshl_b32 s37, s{sTT}, 4
    s_add_u32 s36, s36, s37
    s_mul_i32 s36, s36, 112
    s_and_b32 s37, s{sWave}, 1
    s_mul_i32 s37, s37, {4 * mix if mix else 2}
    s_add_u32 s36, s36, s37
    {mixs}
    s_lshr_b32 s37, s38, 6
    s_add_u32 s36, s36, s37
    s_lshl_b32 s36, s36, 10
    s_mov_b32 s38, 0xbfb8aa3b
    s_mov_b32 s39, 0xbfb8aa3b
    s_nop 7
        """)
    ov = opt.get("ov", 3)
    if not ov:
        f = F.peel(0)
        for k, x in enumerate(reads(1, 1, 1)): f.setdefault(4 + 2 * k, []).insert(0, x)
        substep(0, f, 0)
        substep(1, F.peel(1), -1)
        mid()
    else:
        f = F.peel(0)
        for k, x in enumerate(reads(1, 1, 1)): f.setdefault(3 + k, []).insert(0, x)
        for p, L in F.peel(1).items(): f.setdefault(64 + p, []).extend(L)
        seq = [(0, 0), (0, 1), (0, 2), (0, 3), (1, 0), (1, 1), (0, 4), (1, 2), (0, 5), (1, 3), (0, 6), (0, 7), (1, 4), (1, 5), (1, 6), (1, 7)]
        o("s_waitcnt lgkmcnt(0)")
        e0 = opt.get("e0", 44); cr = 0.0
        for i in range(128):
            set_, nb = seq[i >> 3]; mb = i & 7
            if i == 32: o("s_waitcnt lgkmcnt(0)")
            o(f"v_mfma_f32_16x16x32_bf16 {accs(mb,nb)}, {rng(fk,fa(set_,mb),4)}, {rng(fk,fb(set_,nb),4)}, {accs(mb,nb)}")
            if i == 1: o("s_waitcnt vmcnt(0)")
            if i in (1, 33): o("s_barrier")
            for ins in f.get(i, []): o(ins)
            if i == 36: mid()
            if i >= e0:
                cr += ov
                while cr >= 1:
                    x = EP.pop(0)
                    if not any(isinstance(x, str) and x.startswith(p) for p in opt.get('ovdrop', [])): o(x)
                    if not isinstance(x, tuple): cr -= 1
        F.stamp(2)
    for x in EP: o(x)
    if F:
        F.phase2()
    if stamp: stamp_end(o, sWave, 6)
    o.label(f"{name}_end")
    o("s_endpgm")
    if F: F.late()
    o.label(f"{name}_aux")
    o(f"s_cmp_ge_u32 s2, 256\ns_cbranch_scc1 {name}_end2\ns_sub_u32 s3, s2, 224")
    from aux import aux_body
    if opt.get("ct2", 1): ctouch(f"{name}_pc2", f"{name}_end2", 57, 250)
    if stamp: stamp_begin(o)
    if F: F.stamp(0)
    aux_body(o, name, 3, opt, stmod='sc1' if F else '', F=F)
    if F: F.aux_exit()
    if stamp:
        stamp_end(o, 24, 6)
    o.label(f"{name}_end2")
    o("s_endpgm")
    if F: kernel_desc(o, name, 512, 256)
    elif accA: kernel_desc(o, name, 160 + 256, 160)
    else: kernel_desc(o, name, 256 + 160, 256)
    return f"; @launch kernel={name} grid=(256,1,1) block=(256,1,1) lds=163840"
```

```python
from asmlib import *
from ssm import WS_UT
LOG2E = 0x3fb8aa3b
INV2PI = 0x3e22f983
RS = 512
BLK = 16 * RS
TOFF = 60 * RS + 16
XOFF = 4 * BLK
AWSTR = XOFF + 4096
GOFF = 4 * AWSTR

class Em:
    def __init__(self, o): self.o = o; self.n = 0; self.tags = {}
    def __call__(self, ins):
        if isinstance(ins, tuple):
            k = ins[0]
            if k == "tag": self.tags[ins[1]] = self.n
            elif k == "wait":
                c = self.n - self.tags[ins[1]]
                self.o(f"s_waitcnt lgkmcnt({min(c, 14)})")
            return
        self.o(ins)
        if ins.startswith("ds_"): self.n += 1

def merge(A_, B_, start=0, step=None):
    if not A_: return list(B_)
    out = []; nb = len(B_); na = len(A_) - start
    done = 0
    for i, x in enumerate(A_):
        out.append(x)
        if i >= start:
            want = min(nb, ((i - start + 1) * nb + na - 1) // na if step is None else int((i - start + 1) * step))
            while done < want: out.append(B_[done]); done += 1
    out += B_[done:]
    return out

def gather_setup(sB, GAd, SL, t1, t2, sC):
    vG01, vG2, vG3h, vG3l = GAd
    L = f"""v_sub_u32 v{t1}, 575, v0
    v_lshrrev_b32 v{t1}, 1, v{t1}
    v_lshl_add_u32 v{vG01}, v{t1}, 2, s{sB}
    v_lshlrev_b32 v{t1}, 2, v0
    v_sub_u32 v{t1}, 1020, v{t1}
    v_add_u32 v{vG2}, s{sB}, v{t1}
    v_cmp_gt_u32 vcc, 32, v0
    v_lshlrev_b32 v{t1}, 3, v0
    v_lshlrev_b32 v{t2}, 4, v0
    v_sub_u32 v{t1}, 764, v{t1}
    v_sub_u32 v{t2}, 1016, v{t2}
    v_cndmask_b32 v{t1}, v{t2}, v{t1}, vcc
    v_add_u32 v{vG3h}, s{sB}, v{t1}
    v_cndmask_b32 v{t2}, 12, 8, vcc
    v_sub_u32 v{vG3l}, v{vG3h}, v{t2}
    v_cndmask_b32 v{t1}, 0, -1, vcc
    v_cmp_gt_u32 vcc, 31, v0
    v_bfe_i32 v{t2}, v0, 0, 1""".split("\n")
    L = [x.strip() for x in L]
    def csel(d, m, tv, fv): return [f"v_and_b32 v{d}, {tv ^ fv}, v{m}", f"v_xor_b32 v{d}, {fv}, v{d}"]
    for k, tv in enumerate([0x01000302, 0x01000100]): L += csel(SL + 4 + k, t1, tv, 0x03020504)
    for k, tv in enumerate([0x03020504, 0x01000100, 0x05040504]): L += csel(SL + 7 + k, t1, tv, 0x05040706)
    L += [f"v_cndmask_b32 v{t1}, 0, -1, vcc"]
    L += csel(SL + 0, t2, 0x03020302, 0x05040504) + csel(SL + 1, t2, 0x01000100, 0x03020302)
    L += csel(SL + 2, t2, 0x01000100, 0x03020504) + csel(SL + 3, t2, 0x01000302, 0x05040504)
    L += csel(SL + 6, t1, 0x05040504, 0x03020504)
    for r, c in zip(sC, [0x03020504, 0x03020302, 0x01000100, 0x05040504, 0x01000302]): L.append(f"s_mov_b32 s{r}, {c}")
    return L

def aux_body(o, name, sJ, opt=None, stmod="", F=None):
    opt = opt or {}
    ct = opt.get("ct", 0); nks = 2 if ct else 8
    sWave, sBase, sCh, sKo, sKo2, sXo, sUo, sGWo = 24, 26, 27, 28, 29, 30, 31, 32
    sX, sK, sU, sGW, sG = 8, 12, 16, 20, 84
    o(f"""
    s_load_dwordx8 s[40:47], s[0:1], {KA['A_re']}
    s_load_dwordx8 s[48:55], s[0:1], {KA['C_re']}
    s_load_dwordx2 s[4:5], s[0:1], {KA['u']}
    s_load_dwordx4 s[88:91], s[0:1], {KA['wd']}
    s_load_dwordx2 s[6:7], s[0:1], {KA['ws']}
    v_lshrrev_b32 v1, 6, v0
    v_and_b32 v0, 63, v0
    s_lshl_b32 s25, s{sJ}, 2
    v_readfirstlane_b32 s{sWave}, v1
    v_lshlrev_b32 v10, 2, v0
    v_lshlrev_b32 v12, 4, v0
    s_add_u32 s25, s25, s{sWave}
    s_mul_i32 s{sKo2}, s25, -6
    s_add_u32 s{sKo2}, s{sKo2}, 890
    s_add_u32 s38, s25, 896
    s_lshl_b32 s38, s38, 1
    s_mul_i32 s25, s25, 7
    s_mul_i32 s{sBase}, s{sWave}, {AWSTR}
    s_lshl_b32 s36, s25, 8
    s_lshl_b32 s37, s25, 1
    s_lshl_b32 s{sKo}, s25, 11
    s_lshl_b32 s{sKo2}, s{sKo2}, 8
    v_add_u32 v10, s36, v10
    v_and_b32 v11, 7, v0
    v_lshl_add_u32 v11, v11, 1, s37
    v_writelane_b32 v11, s38, 7
    s_mov_b32 s{sCh}, 0
    s_mov_b32 s56, {LOG2E}
    s_mov_b32 s57, {INV2PI}
    """)
    vStW, vStR, vT0, vT1a, vT1b, vT2, vL0, vDs = 13, 14, 15, 16, 17, 18, 19, 1
    vXd, vXtr, vXg, vUst, vGWa, vPf = 20, 21, 22, 23, 24, 25
    g, j_, t1, t2 = 26, 27, 28, 29
    SW = 30
    vStR2, vG01, vG2, vG3h, vG3l = 38, 39, 40, 41, 42
    RD = [vStR, vStR2, 43, 59]
    SL = 44
    vDt, vDtL, vDtP = 54, 55, 56
    GWR = 60; XR = 72; XU = 88
    KA_ = 92
    GB = 104
    OB = 116
    PK = [136, 140, 144, 148]
    PFD = 57
    POOL = list(range(152, 256, 4))
    aFR = 0; aG = 128; aTR = 144
    sDt, sDtL, sDtP, sDs = 58, 59, 82, 83
    sSel = [33 + 0]
    ldp = [f"global_load_dword v{2+k}, v10, s[{40+2*k}:{41+2*k}]" for k in range(6)]
    o(f"""
    v_lshrrev_b32 v{t1}, 2, v0
    v_lshlrev_b32 v{vXd}, 11, v{t1}
    v_and_b32 v{t2}, 3, v0
    v_lshl_add_u32 v{vXd}, v{t2}, 4, v{vXd}
    s_lshl_b32 s{sXo}, s{sJ}, 17
    s_lshl_b32 s36, s{sWave}, 9
    s_add_u32 s{sXo}, s{sXo}, s36
    s_mov_b32 s{sGWo}, s36
    v_lshrrev_b32 v{g}, 4, v0
    v_and_b32 v{j_}, 15, v0
    v_lshlrev_b32 v{vGWa}, 4, v{g}
    s_waitcnt lgkmcnt(0)
    """)
    o("global_load_ushort v8, v11, s[52:53]\nglobal_load_ushort v9, v11, s[54:55]")
    for x in ldp: o(x)
    srd(o, sX, 4, 2048 * 2048)
    srd(o, sGW, 90, 2048)
    def slice_ld():
        L = [f"s_add_u32 m0, s{sBase}, {XOFF}", f"s_add_u32 s33, s{sXo}, {16*2048 - 1024}"]
        L.append(f"buffer_load_dwordx4 v{vXd}, s[{sX}:{sX+3}], s{sXo} offen lds")
        L.append(f"s_add_u32 s34, s{sXo}, {32*2048 - 2048}")
        L.append(f"buffer_load_dwordx4 v{vXd}, s[{sX}:{sX+3}], s33 offen offset:1024 lds")
        L.append(f"s_add_u32 s33, s{sXo}, {48*2048 - 3072}")
        L.append(f"buffer_load_dwordx4 v{vXd}, s[{sX}:{sX+3}], s34 offen offset:2048 lds")
        L.append(f"s_add_u32 s{sXo}, s{sXo}, 64")
        L.append(f"buffer_load_dwordx4 v{vXd}, s[{sX}:{sX+3}], s33 offen offset:3072 lds")
        L.append(f"buffer_load_dwordx4 {v(GWR,4)}, v{vGWa}, s[{sGW}:{sGW+3}], s{sGWo} offen")
        L.append(f"s_add_u32 s{sGWo}, s{sGWo}, 64")
        return L
    for x in slice_ld(): o(x)
    o(f"s_add_u32 s4, s6, {WS_K}\ns_addc_u32 s5, s7, 0"); srd(o, sK, 4, 1024 * 8192)
    o(f"s_add_u32 s4, s6, {WS_UT}\ns_addc_u32 s5, s7, 0"); srd(o, sU, 4, 1024 * 4096)
    o(f"s_add_u32 s4, s6, {WS_G}\ns_addc_u32 s5, s7, 0"); srd(o, sG, 4, 2048 * 4)
    o(f"""
    s_add_u32 s4, s6, {WS_FLAG}
    s_addc_u32 s5, s7, 0
    s_lshl_b32 s36, s{sJ}, 2
    s_add_u32 s36, s36, s{sWave}
    s_lshl_b32 s37, s36, 10
    v_add_u32 v{t1}, s37, v12
    v_mov_b32 v{XU}, 0
    v_mov_b32 v{XU+1}, 0
    v_mov_b32 v{XU+2}, 0
    v_mov_b32 v{XU+3}, 0
    global_store_dwordx4 v{t1}, {v(XU,4)}, s[4:5] {stmod}
    s_mul_i32 s37, s36, {56*1024}
    v_lshlrev_b32 v{vPf}, 7, v0
    s_add_u32 s88, s88, s37
    s_addc_u32 s89, s89, 0
    s_and_b32 s89, s89, 0xffff
    s_mov_b32 s90, {56*1024}
    s_mov_b32 s91, 0x20000
    s_movk_i32 s95, 0x2000
    """)
    o(f"""
    v_lshlrev_b32 v{t1}, 3, v0
    v_add_u32 v{vStW}, s{sBase}, v{t1}
    v_and_b32 v{t2}, 7, v{j_}
    v_lshlrev_b32 v{t2}, 1, v{t2}
    v_xor_b32 v{t2}, v{t2}, v{g}
    v_lshlrev_b32 v{t1}, 9, v{j_}
    v_lshl_add_u32 v{t1}, v{t2}, 4, v{t1}
    v_add_u32 v{vStR}, s{sBase}, v{t1}
    v_xor_b32 v{RD[1]}, 64, v{vStR}
    v_xor_b32 v{RD[2]}, 128, v{vStR}
    v_xor_b32 v{RD[3]}, 192, v{vStR}
    s_add_u32 s39, s{sBase}, {TOFF}
    v_lshrrev_b32 v{t1}, 1, v{g}
    v_lshlrev_b32 v{t1}, 8, v{t1}
    v_and_b32 v{t2}, 1, v{g}
    v_lshl_add_u32 v{t1}, v{t2}, 3, v{t1}
    v_lshl_add_u32 v{t1}, v{j_}, 4, v{t1}
    v_add_u32 v{vT0}, s39, v{t1}
    v_lshlrev_b32 v{t1}, 7, v{g}
    v_add_u32 v{t1}, s39, v{t1}
    v_cmp_gt_u32 vcc, 2, v{g}
    v_lshlrev_b32 v{t2}, 2, v{j_}
    v_lshlrev_b32 v{vT1b}, 3, v{j_}
    v_cndmask_b32 v{t2}, v{t2}, v{vT1b}, vcc
    v_add_u32 v{vT1a}, v{t1}, v{t2}
    v_add_u32 v{vT1a}, 512, v{vT1a}
    v_cndmask_b32 v{t2}, 64, 4, vcc
    v_add_u32 v{vT1b}, v{vT1a}, v{t2}
    v_and_b32 v{t2}, 1, v{g}
    v_lshlrev_b32 v{t2}, 8, v{t2}
    v_lshl_add_u32 v{vT2}, v{j_}, 1, v{t2}
    v_lshrrev_b32 v{t2}, 1, v{g}
    v_lshl_add_u32 v{vT2}, v{t2}, 5, v{vT2}
    v_add_u32 v{vT2}, s39, v{vT2}
    v_add_u32 v{vT2}, 1024, v{vT2}
    v_cmp_eq_u32 vcc, 0, v0
    v_mov_b32 v{t1}, s{sBase}
    v_mov_b32 v{t2}, 0
    v_cndmask_b32 v{vL0}, 0, -1, vcc
    ds_write_b32 v{t1}, v{t2} offset:{TOFF-4}
    v_mov_b32 v{PK[0]}, 0x3f80
    v_mov_b32 v{PK[0]+1}, 0x3f80
    ds_write_b64 v{vStW}, {v(PK[0],2)} offset:{BLK}
    """)
    o(f"""
    s_add_u32 s36, s{sBase}, {XOFF}
    v_bfe_u32 v{t1}, v0, 2, 2
    v_lshl_add_u32 v{t1}, v{g}, 3, v{t1}
    v_lshlrev_b32 v{t1}, 6, v{t1}
    v_and_b32 v{t2}, 1, v0
    v_lshl_add_u32 v{t1}, v{t2}, 3, v{t1}
    v_bfe_u32 v{t2}, v0, 1, 1
    v_lshl_add_u32 v{t1}, v{t2}, 11, v{t1}
    v_add_u32 v{vXtr}, s36, v{t1}
    v_lshl_add_u32 v{t1}, v{j_}, 6, v{vGWa}
    v_add_u32 v{vXg}, s36, v{t1}
    v_and_b32 v{t1}, 7, v0
    v_lshl_add_u32 v{vUst}, v{t1}, 12, v{vGWa}
    v_bfe_u32 v{t1}, v0, 3, 1
    v_lshl_add_u32 v{vUst}, v{t1}, 6, v{vUst}
    s_lshl_b32 s{sUo}, s{sWave}, 20
    s_lshl_b32 s36, s{sJ}, 7
    s_add_u32 s{sUo}, s{sUo}, s36
    """)
    if opt.get("pf", 0) == 3:
        o(f"""
        s_getpc_b64 s[88:89]
        {name}_pc:
        s_sub_u32 s88, s88, {name}_pc-{name}_loop
        s_subb_u32 s89, s89, 0
        s_lshr_b32 s36, s{sJ}, 3
        s_lshl_b32 s36, s36, 2
        s_add_u32 s36, s36, s{sWave}
        s_lshl_b32 s36, s36, 12
        v_lshl_add_u32 v{t1}, v0, 6, s36
        v_min_u32 v{t1}, {name}_aux-{name}_loop, v{t1}
        v_mov_b32 v{GB+1}, s89
        v_add_co_u32 v{GB}, vcc, s88, v{t1}
        v_addc_co_u32 v{GB+1}, vcc, 0, v{GB+1}, vcc
        """)
    for k in range(8): o(f"v_xor_b32 v{SW+k}, {32*k}, v{vStW}")
    for r in range(16): o(f"v_accvgpr_write_b32 a{aG+r}, 0")
    sC = [35, 38, 80, 81, 94]
    if ct: o(f"v_add_u32 v{vG01}, s{sBase}, v12")
    else:
        for x in gather_setup(39, [vG01, vG2, vG3h, vG3l], SL, t1, t2, sC): o(x)
    o(f"""
    s_waitcnt vmcnt({6 + 5 + 1})
    v_lshlrev_b32 v{vDt}, 16, v8
    v_mul_f32 v{vDt}, s56, v{vDt}
    v_exp_f32 v{vDt}, v{vDt}
    v_lshlrev_b32 v9, 16, v9
    v_cvt_pk_bf16_f32 v{vDt}, v{vDt}, v{vDt}
    v_lshlrev_b32 v{vDt}, 16, v{vDt}
    v_mul_f32 v{vDtL}, s56, v{vDt}
    v_mul_f32 v{vDtP}, s57, v{vDt}
    """)

    def gen_head():
        L = []; free = list(POOL); R = {}
        def al(n): R[n] = free.pop(0); return R[n]
        Z = al("Z"); Bv = al("B"); Cv = al("C")
        L += f"""v_readlane_b32 s{sDtL}, v{vDtL}, s{sCh}
        v_readlane_b32 s{sDtP}, v{vDtP}, s{sCh}
        v_readlane_b32 s{sDt}, v{vDt}, s{sCh}
        v_readlane_b32 s{sDs}, v9, s{sCh}
        v_lshlrev_b32 v{Z}, 16, v2
        v_and_b32 v{Z+2}, 0xffff0000, v2
        v_lshlrev_b32 v{Z+1}, 16, v3
        v_and_b32 v{Z+3}, 0xffff0000, v3
        v_lshlrev_b32 v{Bv}, 16, v4
        v_and_b32 v{Bv+2}, 0xffff0000, v4
        v_mul_f32 v{Z}, s{sDtL}, v{Z}
        v_mul_f32 v{Z+1}, s{sDtP}, v{Z+1}
        v_mul_f32 v{Z+2}, s{sDtL}, v{Z+2}
        v_mul_f32 v{Z+3}, s{sDtP}, v{Z+3}
        v_lshlrev_b32 v{Bv+1}, 16, v5
        v_and_b32 v{Bv+3}, 0xffff0000, v5
        v_lshlrev_b32 v{Cv}, 16, v6
        v_and_b32 v{Cv+2}, 0xffff0000, v6
        v_lshlrev_b32 v{Cv+1}, 16, v7
        v_and_b32 v{Cv+3}, 0xffff0000, v7
        s_cmp_eq_u32 s{sCh}, 6
        s_cselect_b32 s36, s{sKo2}, 256
        s_cmp_lt_u32 s{sCh}, 7
        s_cselect_b32 s36, s36, 0
        v_add_u32 v10, s36, v10
        v_mul_f32 v{Bv}, s{sDt}, v{Bv}
        v_mul_f32 v{Bv+1}, s{sDt}, v{Bv+1}
        v_mul_f32 v{Bv+2}, s{sDt}, v{Bv+2}
        v_mul_f32 v{Bv+3}, s{sDt}, v{Bv+3}
        v_and_b32 v{vDs}, s{sDs}, v{vL0}""".split("\n")
        L = [x.strip() for x in L]
        D = []
        ds = [("G8", 3), ("E1", 0), ("H1", 7), ("E1024", 10)]
        for n, e in ds: al(n); al(n + "t")
        for n, e in ds:
            if e:
                for h in range(4): D.append(f"v_ldexp_f32 v{R[n+'t']+h}, v{Z+h}, {e}")
        for n, e in ds:
            for h in (0, 2): D.append(f"v_fract_f32 v{R[n+'t']+h+1}, v{(R[n+'t'] if e else Z)+h+1}")
        for n, e in ds:
            for h in (0, 2): D.append(f"v_exp_f32 v{R[n+'t']+h}, v{(R[n+'t'] if e else Z)+h}")
        for n, e in ds:
            for h in (0, 2): D += [f"v_cos_f32 v{R[n]+h}, v{R[n+'t']+h+1}", f"v_sin_f32 v{R[n]+h+1}, v{R[n+'t']+h+1}"]
        L += merge(D, ldp, 0, 0.5)
        W = al("Y0")
        for h in (0, 2): L.append(f"v_pk_mul_f32 {v(W+h,2)}, {v(Bv+h,2)}, {v(Cv+h,2)} op_sel:[0,0] op_sel_hi:[1,0] neg_hi:[1,0]")
        for n, e in ds[:2]:
            for h in (0, 2): L.append(f"v_pk_mul_f32 {v(R[n]+h,2)}, {v(R[n]+h,2)}, {v(R[n+'t']+h,2)} op_sel_hi:[1,0]" + (" neg_hi:[1,0]" if n == "G8" else ""))
        for h in (0, 2): L.append(f"v_pk_fma_f32 {v(W+h,2)}, {v(Bv+h,2)}, {v(Cv+h,2)}, {v(W+h,2)} op_sel:[1,1,0] op_sel_hi:[0,1,1] neg_lo:[1,0,0] neg_hi:[1,0,0]")
        for n, e in ds[2:]:
            for h in (0, 2): L.append(f"v_pk_mul_f32 {v(R[n]+h,2)}, {v(R[n]+h,2)}, {v(R[n+'t']+h,2)} op_sel_hi:[1,0]")
        for n in ["Z", "B", "C"] + [n + "t" for n, e in ds]: free.append(R.pop(n))
        return L, R, free
    row = {f"Y{k}": k for k in range(16)}
    row.update({f"E{e}": 16 + e for e in range(1, 8)}); row.update({f"u{e}": 24 + e for e in range(1, 8)}); row["H1"] = 24
    row.update({"H2": 32, "H3": 36, "H4": 40, "H5": 42, "H6": 44, "H7": 46, "E1024": 48, "w8": 52})
    row.update({f"b{h}{e}": 32 + 4 * (h - 2) + e for h in (2, 3) for e in (1, 2, 3)}); row.update({f"c{h}": 41 + 2 * (h - 4) for h in (4, 5, 6, 7)})
    row.update({f"w{h}": 48 + (h >> 1) + 8 * (h & 1) for h in range(1, 8)})
    N_ = None
    ops = [("G16", "G8", "G8", N_), ("E2", "E1", "E1", N_), ("G32", "G16", "G16", N_), ("H2", "H1", "H1", N_), ("G64", "G32", "G32", N_),
           ("u1", "E1", "H1", "E1"), ("Y1", "Y0", "G8", N_), ("Y8", "Y0", "G64", "Y0"), ("E4", "E2", "E2", N_), ("u2", "E2", "H1", "E2"),
           ("Y2", "Y0", "G16", N_), ("Y9", "Y1", "G64", "Y1"), ("Y4", "Y0", "G32", N_), ("Y10", "Y2", "G64", "Y2"), ("Y3", "Y1", "G16", N_),
           ("Y12", "Y4", "G64", "Y4"), ("Y5", "Y1", "G32", N_), ("Y11", "Y3", "G64", "Y3"), ("Y6", "Y2", "G32", N_), ("Y13", "Y5", "G64", "Y5"),
           ("Y7", "Y3", "G32", N_), ("Y14", "Y6", "G64", "Y6"), ("E3", "E2", "E1", N_), ("Y15", "Y7", "G64", "Y7"), ("E5", "E4", "E1", N_),
           ("u4", "E4", "H1", "E4"), ("E6", "E4", "E2", N_), ("u3", "E3", "H1", "E3"), ("E7", "E4", "E3", N_), ("u5", "E5", "H1", "E5"),
           ("H3", "H2", "H1", N_), ("u6", "E6", "H1", "E6"), ("=H1", N_, N_, ""), ("u7", "E7", "H1", "E7"), ("b21", "H2", "E2", N_), ("H4", "H2", "H2", "H2"),
           ("w8", "E1024", "E1024", ""), ("c4", "H4", "E4", "b21"), ("H5", "H4", "H1", N_), ("H6", "H4", "H2", "H3"), ("b22", "H2", "E4", "H5"),
           ("c5", "H5", "E4", N_), ("b23", "H2", "E6", "c5"), ("b31", "H3", "E2", N_), ("c6", "H6", "E4", "b31"), ("H7", "H4", "H3", N_),
           ("b32", "H3", "E4", "H7"), ("c7", "H7", "E4", N_), ("b33", "H3", "E6", "c7"), ("w2", "E1024", "H2", N_), ("w1", "E1024", "H1", "E1024"),
           ("w3", "E1024", "H3", "w2"), ("w4", "E1024", "H4", N_), ("w5", "E1024", "H5", "w4"), ("w6", "E1024", "H6", N_), ("w7", "E1024", "H7", "w6")]
    wr = [x[0].lstrip("=") for x in ops if x[3] is not None] + [x[3] for x in ops if x[3]]
    assert sorted(wr) == sorted(row), set(row) ^ set(wr)
    pos = {x[0]: i for i, x in enumerate(ops)}
    for i, x in enumerate(ops):
        for s_ in x[1:3]:
            if s_ in pos: assert pos[s_] <= i - 2, x
        if x[3]: assert pos.get(x[3], -1) < i and (row[x[3]] - row[x[0]]) % 8 == 0, x
    last = {}
    for i, x in enumerate(ops):
        nm = x[0].lstrip("=")
        last[nm] = max(last.get(nm, -1), i + 2 if x[3] is not None else i + 1)
        if x[3]: last[x[3]] = max(last.get(x[3], -1), i + 1)
        for s_ in x[1:3]:
            if s_: last[s_] = max(last.get(s_, -1), i + 1)
    def gen_body(R, free):
        L = []; N = len(ops); pkc = 0; pkof = {}; pend = []; rdat = {"Y15": 0, "u7": 1, "b33": 2}
        for k in range(N + 3):
            if k < N and ops[k][1]:
                n, a_, b_, _ = ops[k]; R[n] = free.pop(0); d = R[n]
                for h in (0, 2): L.append(f"v_pk_mul_f32 {v(d+h,2)}, {v(R[a_]+h,2)}, {v(R[b_]+h,2)} op_sel:[0,0] op_sel_hi:[1,0]")
            if 0 <= k - 3 < N and ops[k-3][3] is not None:
                r0 = row[ops[k-3][0].lstrip("=")]; p = pkof[k-3]
                if ops[k-3][3]: L.append(f"ds_write2st64_b64 v{SW+(r0&7)}, {v(p,2)}, {v(p+2,2)} offset0:{r0} offset1:{row[ops[k-3][3]]}")
                else: L.append(f"ds_write_b64 v{SW+(r0&7)}, {v(p,2)} offset:{r0*RS}")
            if 0 <= k - 1 < N and ops[k-1][1]:
                n, a_, b_, _ = ops[k-1]; d = R[n]
                for h in (0, 2): L.append(f"v_pk_fma_f32 {v(d+h,2)}, {v(R[a_]+h,2)}, {v(R[b_]+h,2)}, {v(d+h,2)} op_sel:[1,1,0] op_sel_hi:[0,1,1] neg_lo:[1,0,0]")
            if 0 <= k - 1 < N and ops[k-1][3] is not None:
                p = PK[pkc & 3]; pkc += 1; pkof[k-1] = p
                if ops[k-1][3]:
                    x = R[ops[k-1][3]]
                    L += [f"v_cvt_pk_bf16_f32 v{p+2}, v{x}, v{x+1}", f"v_cvt_pk_bf16_f32 v{p+3}, v{x+2}, v{x+3}"]
            if 0 <= k - 2 < N and ops[k-2][3] is not None:
                x = R[ops[k-2][0].lstrip("=")]; p = pkof[k-2]
                L += [f"v_cvt_pk_bf16_f32 v{p}, v{x}, v{x+1}", f"v_cvt_pk_bf16_f32 v{p+1}, v{x+2}, v{x+3}"]
            for n in [n for n in R if last[n] == k]: free.append(R.pop(n))
            if 0 <= k - 3 < N and ops[k-3][0] in rdat: pend += rd_blk(rdat[ops[k-3][0]])
            for _ in range(2 if k > N - 8 else 1):
                if pend: L.append(pend.pop(0))
        L += pend + [("tag", "fr2")]
        return L
    def rd_blk(blk): return [f"ds_read_b128 {a(aFR+32*blk+4*ks,4)}, v{RD[ks&3]} offset:{blk*BLK + 256*(ks>>2)}" for ks in range(8)]
    def frag_reads():
        L = rd_blk(3) + [("tag", "fr")]
        L += [f"v_mov_b32 v{KA_}, v{vDs}", f"v_mov_b32 v{KA_+1}, 0", f"v_mov_b32 v{KA_+2}, 0", f"v_mov_b32 v{KA_+3}, 0"]
        return L
    def tail_mfma():
        L = []
        def mf(blk, ks):
            c = v(KA_+4*blk, 4) if (ks or blk == 0) else "0"
            return f"v_mfma_f32_16x16x32_bf16 {v(KA_+4*blk,4)}, {a(aFR+32*(blk+1)+4*ks,4)}, {a(aFR+4*ks,4)}, {c}"
        L.append(("wait", "fr2"))
        for ks in range(4): L += [mf(0, ks), mf(1, ks)]
        L.append(("wait", "fr"))
        for ks in range(4): L += [mf(2, 2 * ks), mf(0, 4 + ks), mf(2, 2 * ks + 1), mf(1, 4 + ks)]
        return L
    def tail_rest():
        L = [f"v_cvt_pk_bf16_f32 v{KA_+2*q}, v{KA_+2*q}, v{KA_+2*q+1}" for q in (2, 3, 4, 5)]
        L += [f"v_cvt_pk_bf16_f32 v{KA_}, v{KA_}, v{KA_+1}", f"v_cvt_pk_bf16_f32 v{KA_+1}, v{KA_+2}, v{KA_+3}"]
        L += [f"ds_write_b32 v{vT1a}, v{KA_+4}", f"ds_write_b32 v{vT1b}, v{KA_+6}",
              f"ds_write_b16 v{vT2}, v{KA_+8}", f"ds_write_b16_d16_hi v{vT2}, v{KA_+8} offset:64",
              f"ds_write_b16 v{vT2}, v{KA_+10} offset:128", f"ds_write_b16_d16_hi v{vT2}, v{KA_+10} offset:192",
              f"ds_write_b64 v{vT0}, {v(KA_,2)}"]
        if ct:
            L += [f"ds_read_b128 {v(OB,4)}, v{vG01} offset:{TOFF-16}", f"ds_read_b128 {v(OB+4,4)}, v{vG01} offset:{TOFF-16+1024}", ("tag", "g"), ("tag", "pad"), ("tag", "pad"), ("wait", "g")]
            L += [f"buffer_store_dwordx4 {v(OB+4*k,4)}, v12, s[{sK}:{sK+3}], s{sKo} offen offset:{1024*k} {stmod}" for k in range(2)]
            return L + [f"s_add_u32 s{sKo}, s{sKo}, 2048"]
        L += [f"ds_read2_b32 {v(GB,2)}, v{vG01} offset0:32 offset1:33", f"ds_read2_b32 {v(GB+2,2)}, v{vG01} offset0:0 offset1:1",
              f"ds_read2_b32 {v(GB+4,2)}, v{vG2} offset0:0 offset1:1", f"ds_read2_b32 {v(GB+10,2)}, v{vG3h} offset0:0 offset1:1",
              f"ds_read2_b32 {v(GB+8,2)}, v{vG3l} offset0:1 offset1:2", f"ds_read_b32 v{GB+7}, v{vG3l}", ("tag", "g"), ("tag", "pad"), ("tag", "pad"), ("wait", "g")]
        def st(ob, c, kb): return f"buffer_store_dwordx4 {v(ob,4)}, v12, s[{sK}:{sK+3}], s{sKo2 if c else sKo} offen offset:{1024*kb} {stmod}"
        def pm(d, e, sel): return f"v_perm_b32 v{d}, v{e+1}, v{e}, {sel}"
        for kb in (0, 1):
            L += [pm(OB+4*kb+j, GB+2*kb, f"v{SL+q}") for j, q in enumerate((0, 2, 1, 1))] + [st(OB+4*kb, 0, kb)]
        L += [pm(OB+8+j, GB+4, f"s{sC[q]}") for j, q in enumerate((0, 1, 2, 2))] + [st(OB+8, 0, 2)]
        L += [pm(OB+12+j, GB+10-j, f"v{SL+4+q}") for j, q in enumerate((0, 1, 0, 2))] + [st(OB+12, 0, 3)]
        L += [pm(OB+16+j, GB+10-j, f"v{SL+7+q}") for j, q in enumerate((0, 1, 0, 2))] + [st(OB+16, 1, 3)]
        for kb in (0, 1): L += [pm(OB+4*kb+1, GB+2*kb, f"v{SL+3}"), st(OB+4*kb, 1, kb)]
        L += [pm(OB+8, GB+4, f"s{sC[3]}"), pm(OB+10, GB+4, f"s{sC[4]}"), st(OB+8, 1, 2)]
        L += [f"s_add_u32 s{sKo}, s{sKo}, 8192", f"s_add_u32 s{sKo2}, s{sKo2}, 8192"]
        return L
    def slice_work(more):
        L = []
        for blk in range(2):
            for th in range(2):
                for r2 in range(2):
                    L.append(f"ds_read_b64_tr_b16 {a(aTR+(blk*2+th)*4+2*r2,2)}, v{vXtr} offset:{blk*32 + th*16 + r2*256}")
        L.append(("tag", "tr"))
        for q in range(4): L.append(f"ds_read_b128 {v(XR+4*q,4)}, v{vXg} offset:{1024*q}")
        L.append(("tag", "xr"))
        L += [("tag", "pad"), ("tag", "pad"), ("wait", "xr")]
        for q in range(4): L.append(f"v_mfma_f32_16x16x32_bf16 {a(aG+4*q,4)}, {v(XR+4*q,4)}, {v(GWR,4)}, {a(aG+4*q,4)}")
        for blk in range(2):
            for th in range(2):
                L.append(f"buffer_store_dwordx4 {a(aTR+(blk*2+th)*4,4)}, v{vUst}, s[{sU}:{sU+3}], s{sUo} offen {stmod}")
                L.append(f"s_add_u32 s{sUo}, s{sUo}, {8*4096}")
        if more: L += slice_ld()
        return L
    def pf():
        if not opt.get("pf", 0): return []
        if opt["pf"] == 3: return [f"global_load_dword v{vPf}, {v(GB,2)}, off", "global_load_dword v57, v58, s[98:99] sc1"]
        if opt["pf"] == 2:
            return [f"buffer_load_dword v{PFD}, v{vPf}, s[88:91], 0 offen", f"buffer_load_dword v{PFD+1}, v{vPf}, s[88:91], 0 offen offset:64", f"v_add_u32 v{vPf}, 8192, v{vPf}"]
        return [f"buffer_load_dword v{PFD}, v{vPf}, s[88:91], 0 offen", f"buffer_load_dword v{PFD+1}, v{vPf}, s[88:91], s95 offen", f"v_add_u32 v{vPf}, 16384, v{vPf}"]
    em = Em(o)
    o("s_waitcnt vmcnt(6)")
    Hd, R, free = gen_head()
    B0 = gen_body(R, free); z0 = opt.get("z0", 2); pf0 = [pf()[0]]
    if z0 == 2: B0 = merge(B0, ["s_waitcnt vmcnt(7)"] + slice_work(True) + pf0, int(len(B0) * opt.get("s0", 0.4)))
    for x in Hd + B0 + frag_reads(): em(x)
    o(f"s_mov_b32 s{sCh}, 1\ns_waitcnt vmcnt({10 if z0 == 2 else 0})")
    if opt.get("ast"): F.stamp(1, True)
    if z0 == 1:
        for x in slice_work(True) + pf0: em(x)
    F.aux_zero()
    if opt.get("stamp"):
        from gemm1b import stamp_mid1, stamp_mid2
        stamp_mid1(o)
    if opt.get("ast"): F.stamp(3, True)
    o.label(f"{name}_aloop")
    if opt.get("ast"): o("s_mov_b32 s74, s72\ns_mov_b32 s72, s70\ns_memrealtime s[70:71]\ns_waitcnt lgkmcnt(0)")
    npf = [0, 2, 2, 0][opt.get("pf", 0)]
    o(f"s_waitcnt vmcnt({nks + 4 + 5 + npf})")
    Hd, R, free = gen_head()
    S = merge(Hd[:-14], tail_mfma(), 4) + Hd[-14:]
    B = gen_body(R, free)
    T = tail_rest() + [f"s_waitcnt vmcnt({6 + nks + npf})"] + slice_work(True) + ["\n".join([f"s_cmp_lg_u32 s{sCh}, {opt.get('pfit', 6)}", f"s_cbranch_scc1 {name}_npf"] + pf() + [f"{name}_npf:"])]
    M = merge(B, T, 0, len(T) / (opt.get("tcomp", 0.6) * len(B)))
    sp = int(len(M) * opt.get("sigpos", 0.9))
    while isinstance(M[sp], tuple) or M[sp].startswith("s_"): sp += 1
    S += M[:sp] + [f"s_cmp_lg_u32 s{sCh}, 7\ns_cbranch_scc1 {name}_nsig", F.aux_sig(), f"{name}_nsig:"] + M[sp:]
    S += frag_reads() + [f"s_add_u32 s{sCh}, s{sCh}, 1", f"s_cmp_lt_u32 s{sCh}, 8", f"s_cbranch_scc1 {name}_aloop"]
    def keep(x):
        if isinstance(x, tuple): return not (x[0] == 'wait' and 'wait' in opt.get('ax_drop', []))
        for pat in opt.get("ax_drop", []):
            if x.startswith(pat): return False
        return True
    for x in S:
        if keep(x): em(x)
    if opt.get("stamp"): stamp_mid2(o)
    if opt.get("ast"): F.stamp(4, True)
    o(f"s_lshl_b32 s36, s{sKo2}, 3\ns_add_u32 s{sKo}, s{sKo}, s36\ns_sub_u32 s{sKo}, s{sKo}, 2048")
    for x in tail_mfma() + ["s_nop 7"] + tail_rest(): em(x)
    F.aux_pre()
    o(f"""
    s_nop 7
    s_lshl_b32 s36, s{sWave}, 8
    s_add_u32 s36, s36, {GOFF}
    v_add_u32 v{t1}, s36, v{vGWa}
    """)
    for q in range(4): o(f"ds_write_b128 v{t1}, {a(aG+4*q,4)} offset:{64*q}")
    o(f"""
    v_lshlrev_b32 v{t2}, 2, v0
    v_add_u32 v{t1}, {GOFF}, v{t2}
    s_waitcnt lgkmcnt(0)
    s_barrier
    ds_read_b32 v{XU}, v{t1}
    ds_read_b32 v{XU+1}, v{t1} offset:256
    ds_read_b32 v{XU+2}, v{t1} offset:512
    ds_read_b32 v{XU+3}, v{t1} offset:768
    s_mov_b32 s38, 0xbfb8aa3b
    s_lshl_b32 s36, s{sJ}, 8
    s_waitcnt lgkmcnt(0)
    v_add_f32 v{XU}, v{XU}, v{XU+1}
    v_add_f32 v{XU+2}, v{XU+2}, v{XU+3}
    v_add_f32 v{XU}, v{XU}, v{XU+2}
    v_cvt_pk_bf16_f32 v{XU}, v{XU}, v{XU}
    v_lshlrev_b32 v{XU}, 16, v{XU}
    v_mul_f32 v{XU}, s38, v{XU}
    v_exp_f32 v{XU}, v{XU}
    s_nop 0
    v_add_f32 v{XU}, 1.0, v{XU}
    v_rcp_f32 v{XU}, v{XU}
    s_nop 0
    v_cvt_pk_bf16_f32 v{XU}, v{XU}, v{XU}
    v_lshlrev_b32 v{XU}, 16, v{XU}
    buffer_store_dword v{XU}, v{t2}, s[{sG}:{sG+3}], s36 offen {stmod}
    """)
```

```python
from asmlib import *
from gemm1b import gemm1
from conv import Conv, CWSTR, KSTR, UOFF, USTR
from aux import merge, gather_setup
COFF = 163840 - 4 * CWSTR
XOFF2 = 131072
REPL = 65536
GCNT = 49152
NREP = 64
HCNT = 32768 + 4096

class Fused:
    def __init__(self, o, name, opt):
        self.o = o; self.name = name; self.opt = opt; self.st = opt.get("fstamp", False)
        self.sWs, self.sK, self.sU, self.sH, self.sAT, self.sO, self.sG, self.sX = 8, 12, 16, 20, 84, 88, 40, 52
        (self.sTT, self.sDP, self.sKH, self.sD, self.sCB, self.sM0, self.sWoff, self.sHoff) = range(27, 35)
        self.sSW = [44, 45]; self.sSH = [46, 47]; self.sHC = 51
        self.vWd = [18, 19, 20, 21]; self.vH = [12, 13, 14, 15]; self.vA = 192
        self.STG = 192
        self.C = Conv(o, self.sD, self.sCB, self.sU, self.sK, self.sAT, 1, 2, 32, ldmod="sc1", stmod="sc1", tmp=(48, 49, 50))
        self.GA = 40; self.SL = 10; self.GB = 44; self.sC = [25, 26, 37, 58, 59]
        self.PW = 5; self.NF = 20
    def stamp(self, i, force=False):
        if self.opt.get("kst") and 0 < i < 9 and not force: return
        if i == 0:
            self.o(f"s_load_dwordx2 s[92:93], s[0:1], {KA['wd']}\ns_load_dwordx4 s[96:99], s[0:1], {KA['out']}")
        if self.st: self.o(f"{'s_memtime' if self.st == 2 else 's_memrealtime'} s[{60+2*i}:{61+2*i}]")
    def spin(self, lbl, vdst, vaddr, sbase, need, first_wait, two=False):
        n = f"{self.name}_{lbl}"
        rd = f"v_readfirstlane_b32 s48, v{vdst}" + (f"\nv_readlane_b32 s50, v{vdst}, 1\ns_lshr_b32 s50, s50, 3\ns_min_u32 s48, s48, s50" if two else "")
        return [first_wait, rd, f"s_mov_b32 s49, 0", f"s_cmp_ge_u32 s48, {need}", f"s_cbranch_scc1 {n}_go",
                f"{n}:", f"s_sleep {self.opt.get('sleepk', 4) if lbl in ('sb', 'sx') else self.opt.get('sleep', 4)}", f"!global_load_dword v{vdst}, v{vaddr}, s[{sbase}:{sbase+1}] sc1", "s_add_u32 s49, s49, 1",
                "s_waitcnt vmcnt(0)", rd, "s_cmp_ge_u32 s49, 0x40000", f"s_cbranch_scc1 {n}_go",
                f"s_cmp_lt_u32 s48, {need}", f"s_cbranch_scc1 {n}", f"{n}_go:"]
    def emit(self, L):
        for x in L:
            if isinstance(x, str) and x.startswith("!"): self.o.raw("    " + x[1:])
            else: self.o(x)
    def setup(self):
        S = self; t = A()
        rot = S.opt.get("rot2", 1); rev = S.opt.get("rev2", 1)
        t(f"""
        s_and_b32 s3, s2, 7
        s_lshr_b32 s48, s2, 3
        s_and_b32 s49, s3, 1
        s_lshl_b32 s49, s49, 3
        s_and_b32 s50, s48, 7
        s_add_u32 s{S.sTT}, s49, s50
        s_bfe_u32 s35, s3, 0x10001
        s_lshl_b32 s49, s35, 2
        s_lshr_b32 s50, s48, 3
        s_add_u32 s{S.sDP}, s49, s50
        s_lshr_b32 s{S.sKH}, s3, 2
        s_lshl_b32 s{S.sD}, s2, 2
        s_add_u32 s{S.sD}, s{S.sD}, s24
        s_mul_i32 s{S.sCB}, s24, {CWSTR}
        s_add_u32 s{S.sCB}, s{S.sCB}, {COFF}
        s_lshl_b32 s{S.sM0}, s24, 12
        s_add_u32 s48, s{S.sTT}, s{S.sDP}
        s_and_b32 s48, s48, {rot}
        s_and_b32 s35, s35, {rev}
        s_lshl_b32 s49, s48, 1
        s_sub_u32 s{S.sSH[0]}, 1, s49
        s_add_u32 s{S.sSH[1]}, 1, s49
        s_sub_u32 s49, 27, s48
        s_cmp_eq_u32 s35, 1
        s_cselect_b32 s{S.sHoff}, s49, s48
        s_cselect_b32 s49, -1, 1
        s_mul_i32 s{S.sSH[0]}, s{S.sSH[0]}, s49
        s_mul_i32 s{S.sSH[1]}, s{S.sSH[1]}, s49
        s_lshl_b32 s{S.sWoff}, s{S.sHoff}, 17
        s_lshl_b32 s{S.sHoff}, s{S.sHoff}, 11
        s_lshl_b32 s{S.sSW[0]}, s{S.sSH[0]}, 17
        s_lshl_b32 s{S.sSW[1]}, s{S.sSH[1]}, 17
        s_lshl_b32 s{S.sSH[0]}, s{S.sSH[0]}, 11
        s_lshl_b32 s{S.sSH[1]}, s{S.sSH[1]}, 11
        v_lshrrev_b32 v19, 4, v0
        v_lshlrev_b32 v18, 11, v19
        v_bfe_u32 v20, v0, 1, 3
        v_xor_b32 v20, v20, v19
        v_lshlrev_b32 v20, 5, v20
        v_and_b32 v21, 1, v0
        v_lshl_add_u32 v20, v21, 4, v20
        v_add_u32 v18, v18, v20
        s_lshl_b32 s48, s24, 15
        s_lshl_b32 s49, s{S.sDP}, 8
        s_add_u32 s48, s48, s49
        s_mul_i32 s49, s{S.sKH}, {1792*2048}
        s_add_u32 s48, s48, s49
        v_add_u32 v18, s48, v18
        v_xor_b32 v21, 128, v18
        v_add_u32 v19, {1*(8192-1024)}, v21
        v_add_u32 v20, {2*(8192-1024)}, v18
        v_add_u32 v21, {3*(8192-1024)}, v21
        s_add_u32 s56, s6, {WS_FLAG}
        s_addc_u32 s57, s7, 0
        """)
        if "h" in S.opt.get("hot", ""): t("s_mov_b32 s46, 0\ns_mov_b32 s47, 0")
        if "w" in S.opt.get("hot", ""): t("s_mov_b32 s44, 0\ns_mov_b32 s45, 0")
        srd(t, S.sWs, 92, 3584 * 2048)
        c = Conv(t, S.sD, S.sCB, S.sU, S.sK, S.sAT, 1, 2, 32)
        c.srds()
        return [x.strip() for x in t.l if x.strip()]
    def setup2(self):
        S = self
        return [f"s_lshl_b32 s50, s{S.sD}, 11", "s_add_u32 s50, s50, 16"] + gather_setup(50, range(S.GA, S.GA + 4), 56, 66, 67, S.sC)
    def dmaW(self, st):
        S = self
        L = [f"s_add_u32 m0, s{S.sM0}, {(st & 7) * 16384}"]
        L += [f"buffer_load_dwordx4 v{S.vWd[j]}, s[{S.sWs}:{S.sWs+3}], s{S.sWoff} offen offset:{1024*j} lds" for j in range(4)]
        return L, [("tv", f"W{st}"), f"s_add_u32 s{S.sWoff}, s{S.sWoff}, s{S.sSW[st & 1]}"]
    def fh(self, st, nb):
        kd, base = self.hb[st]; return rng(kd, base + 4 * nb, 4)
    def ldH(self, st, nb):
        S = self
        L = [f"buffer_load_dwordx4 {S.fh(st, nb)}, v{S.vH[nb]}, s[{S.sH}:{S.sH+3}], s{S.sHoff} offen sc1"]
        if nb == 3: L += [("tv", f"H{st}"), f"s_add_u32 s{S.sHoff}, s{S.sHoff}, s{S.sSH[st & 1]}"]
        return L
    def sched(self, cp):
        S = self; opt = S.opt; NF = S.NF; P = {}
        def add(p, *x): P.setdefault(p, []).extend(x)
        use = lambda st: st if st < NF else NF + (st - NF) // 2
        pool = [[("v", 208), -9, 20], [("v", 224), -9, 20], [("v", 240), -9, 20]] + [[("a", b), -9, 99] for b in range(240, 63, -16)] + [[("v", 160), 0, 23], [("v", 176), 0, 23]]
        def alloc(k, rel):
            c = [b for b in pool if b[1] <= k and rel <= b[2]]
            if not c: return None
            c.sort(key=lambda b: b[2]); c[0][1] = 999; return c[0]
        S.hb = {}; S.wpath = {st: "d" for st in range(S.PW)}
        wb = {}; wiss = {}; st_ = dict(h=0, w=S.PW * 4)
        def issueW(p, k, prev):
            st, j = divmod(st_["w"], 4)
            if j == 0:
                if k >= max(0, st - 8) and p[2] >= 2: S.wpath[st] = "d"; add(prev, S.dmaW(st)[0][0])
                else:
                    b = alloc(k, use(st) - 1)
                    if b is None: return False
                    S.wpath[st] = "r"; wb[st] = b
            if S.wpath[st] == "d": add(p, S.dmaW(st)[0][1 + j])
            else: add(p, f"buffer_load_dwordx4 {rng(wb[st][0][0], wb[st][0][1] + 4 * j, 4)}, v{S.vWd[j]}, s[{S.sWs}:{S.sWs+3}], s{S.sWoff} offen offset:{1024*j}")
            if j == 3: add(p, *S.dmaW(st)[1]); wiss[st] = k
            st_["w"] += 1; return True
        def issueH(p, k):
            st, nb = divmod(st_["h"], 4)
            if nb == 0:
                b = alloc(k, st + 1 if st < NF else 99)
                if b is None: return False
                S.hb[st] = b[0]
                if st < NF: b[1] = st + 1
            add(p, *S.ldH(st, nb)); st_["h"] += 1; return True
        n = opt.get("NPW", 8) * 4; c0 = opt.get("csig", 0) * 36 + 2; c1 = opt.get("wend", (cp - 1) * 36 + 10)
        for i in range(n):
            g = c0 + (i * (c1 - c0)) // n
            assert issueW(("c", g // 36, g % 36), -5, None)
        slots = [("c", g // 36, g % 36) for g in range(cp * 36, 8 * 36) if g - cp * 36 < opt.get("hburst", 6) or g % opt.get("cpace", 4) == 0]
        lp = opt.get("lpos", [4, 7, 13, 16, 22, 27, 30])
        fp = opt.get("fpos", [1, 10, 19, 25, 26, 28, 29, 31])
        flushed = {}
        for k in range(-1, 24):
            if k >= 0:
                i = 0
                for st in sorted(wb):
                    if st in flushed or k < st - 8 or (wiss.get(st, 99) > k - opt.get("flag", 3) and k < use(st) - 2) or i + 4 > opt.get("frate", 4): continue
                    (kd, base) = wb[st][0]
                    add(("g", k, fp[i]), ("wv", f"W{st}"))
                    for j in range(4): add(("g", k, fp[i + j]), f"ds_write_b128 v{26 + ((st & 7) >> 2)}, {rng(kd, base + 4 * j, 4)} offset:{(st & 3) * 16384 + 1024 * j}")
                    i += 4; flushed[st] = k; wb[st][1] = k + 1
                    assert k <= use(st) - 2, (st, k)
            for p in (slots if k < 0 else [("g", k, g) for g in lp]):
                hd = use(st_["h"] // 4) if st_["h"] < 112 else 999
                wd = use(st_["w"] // 4) - opt.get("wlead", 1) if st_["w"] < 112 else 999
                if hd == wd == 999: break
                prev = (p[0], p[1], p[2] - 1)
                wst, wj = divmod(st_["w"], 4)
                dm = wj > 0 or (k >= max(0, wst - 8) and p[2] >= 2)
                if hd <= wd or not dm: ok = (hd < 999 and issueH(p, k)) or (wd < 999 and (dm or opt.get("regw", 1)) and issueW(p, k, prev))
                else: ok = issueW(p, k, prev) or (hd < 999 and issueH(p, k))
            if opt.get("verbose"): print(k, st_, "flushed", [s_ for s_ in flushed if flushed[s_] == k])
        assert st_["h"] == st_["w"] == 112 and set(flushed) == set(wb)
        return P
    def pf(self):
        S = self; G = []
        G.append([f"s_lshl_b32 s50, s{S.sD}, 12"])
        K = f"s[{S.sK}:{S.sK+3}], 0 offen"; GA, GB = S.GA, S.GB
        G += [[f"buffer_load_dwordx2 {v(GB,2)}, v{GA}, {K} offset:128 sc1"], [f"buffer_load_dwordx2 {v(GB+2,2)}, v{GA}, {K} sc1"],
              [f"buffer_load_dwordx2 {v(GB+4,2)}, v{GA+1}, {K} sc1"], [f"buffer_load_dwordx2 {v(GB+6,2)}, v{GA+2}, {K} sc1"],
              [f"buffer_load_dwordx4 {v(GB+8,4)}, v{GA+3}, {K} sc1"]]
        for c in range(2):
            for j in range(4): G.append([f"buffer_load_dwordx4 {a(S.STG+32+16*c+4*j,4)}, v1, s[{S.sU}:{S.sU+3}], s50 offen offset:{1024*j+16-4*c} sc1"])
        G[-1].append(("tv", "KU"))
        return G
    def peel(self, h):
        S = self; f = {}
        if h == 0:
            for i, x in enumerate(S.setup()): f.setdefault(2 + i // 3, []).append(x)
            assert max(f) < 29
            f[2].insert(0, "v_mov_b32 v23, 128"); f[3] += ["global_load_dword v22, v23, s[98:99] sc1", ("tv", "zd")]
        p = 29 if h == 0 else 4
        for st in ((0, 1, 2) if h == 0 else (3, 4)):
            L, post = S.dmaW(st)
            f.setdefault(p - 1, []).append(L[0])
            for x in L[1:]:
                f.setdefault(p, []).append(x); p += 3 if h == 0 else 6
            f[p - (3 if h == 0 else 6)] += post
        return f
    def repl(self):
        return [f"s_and_b32 s48, s{self.sD}, {NREP-1}", "s_lshl_b32 s48, s48, 7", f"s_add_u32 s48, s48, {REPL}", "v_mov_b32 v23, s48"]
    def g1_exit(self, sTT1, sFT1):
        o = self.o
        o(f"""
        s_lshl_b32 s{self.sHC}, s{sTT1}, 2
        s_and_b32 s48, s24, 2
        s_add_u32 s{self.sHC}, s{self.sHC}, s48
        s_cmp_ge_u32 s{sFT1}, 14
        s_addc_u32 s{self.sHC}, s{self.sHC}, 0
        s_lshl_b32 s{self.sHC}, s{self.sHC}, 8
        s_add_u32 s{self.sHC}, s{self.sHC}, {HCNT}
        """)
        self.emit(self.spin("sz", 22, 23, 98, 128, ("wv", "zd")) + self.repl())
    def late(self):
        o = self.o; S = self
        o(f"""
        {S.name}_late:
        s_waitcnt vmcnt(0)
        v_mov_b32 v24, s{S.sHC}
        v_mov_b32 v25, 1
        s_mov_b64 exec, 1
        global_atomic_add v24, v25, s[56:57] sc1
        s_mov_b64 exec, -1
        s_mov_b32 s{S.sHC}, 0
        s_mov_b32 s{S.sK+2}, {1024 * 8192}
        s_mov_b32 s{S.sU+2}, {1024 * 4096 + 16}
        {S.name}_late2:
        """)
        S.emit(["global_load_dword v22, v23, s[56:57] sc1"] + S.spin("sb", 22, 23, 56, 32, "s_waitcnt vmcnt(0)"))
        for g in S.pf():
            for x in g: o(x)
        o(f"s_waitcnt vmcnt(0)\ns_branch {S.name}_p2")
    def epi_merge(self, n, E):
        pb = self.opt.get("pollblk", 4)
        if n == 3: E = merge(E, self.setup2(), 8)
        if n == pb - 2: E = ["global_load_dword v22, v23, s[56:57] sc1", ("tv", "auxp")] + E
        if n < pb: return E
        pre = []
        if n == pb:
            pre = [("wv", "auxp"), "\n".join(["v_readfirstlane_b32 s48, v22", "s_nop 0", "s_cmp_ge_u32 s48, 32",
                   f"s_cselect_b32 s{self.sK+2}, s{self.sK+2}, 0", f"s_cselect_b32 s{self.sU+2}, s{self.sU+2}, 0"])]
        k = self.opt.get("pfrate", 3)
        take, self.G = self.G[:k], self.G[k:]
        out = pre; step = len(E) // (k + 1)
        for i, x in enumerate(E):
            out.append(x)
            if i % step == step - 1 and take and not E[i + 1].startswith("s_nop") and not x.startswith("s_nop"): out += take.pop(0)
        for g in take: out += g
        return [x for x in out if not any(isinstance(x, str) and p in x for p in self.opt.get('edrop', []))]
    def aux_zero(self):
        self.o("v_mov_b32 v58, 128\nv_mov_b32 v57, 1\ns_mov_b64 exec, 1\nglobal_atomic_add v58, v57, s[98:99] sc1\ns_mov_b64 exec, -1")
    def aux_sig(self):
        L = [f"s_add_u32 s56, s6, {WS_FLAG}", "s_addc_u32 s57, s7, 0"] + self.spin("sy", 57, 58, 98, 128, "s_waitcnt vmcnt(0)")
        L += ["v_lshlrev_b32 v58, 7, v0", f"v_add_u32 v58, {REPL}, v58", "v_mov_b32 v57, 1", "s_barrier", "s_cmp_lg_u32 s24, 0", f"s_cbranch_scc1 {self.name}_ns2",
              "global_atomic_add v58, v57, s[56:57] sc1", f"{self.name}_ns2:"]
        if self.st: L.append("s_memrealtime s[64:65]")
        return "\n".join(x.lstrip("!") for x in L).replace("s48", "s36").replace("s49", "s37")
    def aux_exit(self):
        o = self.o; S = self
        o(f"""
        v_lshlrev_b32 v1, 4, v0
        s_mov_b32 s{S.sHC}, {GCNT}
        """)
        for x in S.setup() + S.setup2(): o(x)
        o("s_waitcnt vmcnt(0)\ns_barrier")
        S.emit(S.spin("sx", 22, 23, 56, 32, "s_nop 0"))
        for g in S.pf():
            for x in g: o(x)
        srd(o, S.sH, 6, WS_H_SIZE)
        for st in range(S.PW):
            L, post = S.dmaW(st)
            S.emit(L[:1] + ["s_nop 0"] + L[1:] + post)
        o(f"s_waitcnt vmcnt({4 * S.PW})\ns_branch {S.name}_p2")
    def aux_pre(self):
        self.o(f"""
        s_lshl_b32 s36, s2, 2
        s_add_u32 s36, s36, s24
        s_and_b32 s36, s36, {NREP-1}
        s_lshl_b32 s36, s36, 7
        s_add_u32 s36, s36, {REPL}
        v_mov_b32 v23, s36
        s_add_u32 s56, s6, {WS_FLAG}
        s_addc_u32 s57, s7, 0
        global_load_dword v22, v23, s[56:57] sc1
        """)
    def phase2(self):
        o = self.o; S = self; C = S.C; opt = S.opt; name = S.name
        assert not S.G
        o(f"s_cmp_eq_u32 s{S.sK+2}, 0\ns_cbranch_scc1 {name}_late")
        o(("wv", "KU"))
        o.label(f"{name}_p2")
        S.stamp(3)
        o(f"v_add_u32 v{C.vOR}, s{S.sCB}, v1")
        UW = [f"ds_write_b128 v{C.vOR}, {a(S.STG+32+16*q+4*j,4)} offset:{off+1024*j}" for q, off in enumerate([UOFF + 64, UOFF + USTR + 64]) for j in range(4)]
        GB, SL, OB, sC = S.GB, 56, 68, S.sC
        D = [GB + 8, GB + 9, GB + 10, GB + 6, GB + 7]
        def pm(d, hi, lo, sel): return f"v_perm_b32 v{d}, v{hi}, v{lo}, {sel}"
        L = []
        for c in range(2):
            for kb in range(4):
                ob = OB + 16 * c + 4 * kb
                if kb < 2: L += [pm(ob + j, GB + 2 * kb + 1, GB + 2 * kb, f"v{SL+q}") for j, q in enumerate((0, 2 + c, 1, 1))]
                elif kb == 2: L += [pm(ob + j, GB + 5, GB + 4, f"s{sC[q]}") for j, q in enumerate((3, 1, 4, 2) if c else (0, 1, 2, 2))]
                else: L += [pm(ob + j, D[4 - j], D[3 - j], f"v{SL+4+3*c+q}") for j, q in enumerate((0, 1, 0, 2))]
                L.append(f"ds_write_b128 v{C.vOR}, {v(ob,4)} offset:{KSTR*c+1024*kb}")
        for x in merge(L, UW, 0): o(x)
        C.addrs(); C.zeroK(); C.zeroU()
        o(f"v_mov_b32 v24, s{S.sHC}\nv_mov_b32 v25, 1")
        t = A()
        t(f"""
        s_and_b32 s36, s24, 1
        s_lshr_b32 s37, s24, 1
        s_lshl_b32 s38, s{S.sTT}, 3
        s_lshl_b32 s39, s36, 2
        s_add_u32 s38, s38, s39
        s_lshl_b32 s39, s37, 1
        s_add_u32 s35, s38, s39
        s_xor_b32 s38, s35, 2
        s_mul_i32 s39, s{S.sKH}, 56
        s_add_u32 s39, s39, s37
        s_mul_i32 s100, s35, 112
        s_mul_i32 s38, s38, 112
        s_add_u32 s100, s100, s39
        s_add_u32 s38, s38, s39
        s_lshl_b32 s100, s100, 10
        s_lshl_b32 s38, s38, 10
        v_add_u32 v{S.vH[0]}, s100, v1
        v_add_u32 v{S.vH[2]}, s38, v1
        v_add_u32 v{S.vH[1]}, {112*1024}, v{S.vH[0]}
        v_add_u32 v{S.vH[3]}, {112*1024}, v{S.vH[2]}
        v_lshrrev_b32 v16, 2, v0
        v_lshlrev_b32 v17, 8, v16
        v_and_b32 v16, 7, v16
        s_lshl_b32 s38, s{S.sKH}, 2
        v_xor_b32 v16, s38, v16
        v_lshl_add_u32 v17, v16, 5, v17
        v_and_b32 v16, 3, v0
        v_lshl_add_u32 v17, v16, 3, v17
        s_lshl_b32 s38, s37, 13
        v_add_u32 v{S.vA}, s38, v17
        s_lshl_b32 s38, s{S.sTT}, 1
        s_add_u32 s38, s38, s{S.sKH}
        s_lshl_b32 s38, s38, 8
        s_add_u32 s38, s38, {HCNT}
        v_mov_b32 v23, s38
        v_add_u32 v26, s{S.sM0}, v1
        v_add_u32 v27, 65536, v26
        """)
        for m in range(1, 8): t(f"v_xor_b32 v{S.vA+m}, {32*m}, v{S.vA}")
        for m in range(8): t(f"v_xor_b32 v{S.vA+8+m}, {32*m + 65536}, v{S.vA}")
        srd(t, S.sO, 96, 2048 * 2048)
        t(f"s_add_u32 s4, s6, {WS_G}\ns_addc_u32 s5, s7, 0"); srd(t, S.sG, 4, 2048 * 4)
        t(f"s_add_u32 s4, s6, {WS_X}\ns_addc_u32 s5, s7, 0"); srd(t, S.sX, 4, 256 * 32768)
        T = []
        for x in [x.strip() for x in t.l if x.strip()]:
            if x.startswith("s_addc"): T[-1] += "\n" + x
            else: T.append(x)
        fills = {}
        for i, x in enumerate(T): fills.setdefault((2 + i // 36, i % 36), []).append(x)
        def sig_h():
            o(f"""
            s_waitcnt vmcnt(0)
            s_cmp_eq_u32 s{S.sHC}, 0
            s_cbranch_scc1 {name}_nh
            s_mov_b64 exec, 1
            """)
            o.raw("    global_atomic_add v24, v25, s[56:57] sc1")
            o(f"s_mov_b64 exec, -1\n{name}_nh:")
            S.stamp(1)
        cs = opt.get("csig", 0); cp = opt.get("cpoll", 6)
        fills.setdefault((cp - 1, 20), []).extend(["s_cmp_lg_u32 s24, 0", f"s_cbranch_scc1 {name}_nq", "!global_load_dword v22, v23, s[56:57] sc1", f"{name}_nq:"])
        S.P = S.sched(cp)
        for (kd, c, g), L in S.P.items():
            if kd == "c": fills.setdefault((c, g), []).extend(L)
        def poll_h():
            S.emit(["s_cmp_lg_u32 s24, 0", f"s_cbranch_scc1 {name}_sh_go"] + S.spin("sh", 22, 23, 56, 28, "s_waitcnt vmcnt(0)") + ["s_barrier"]); S.stamp(4)
        C.main(hooks={cs: sig_h, cp: poll_h}, fills=fills)
        S.gemm2()
    def gemm2(self):
        o = self.o; S = self; C = S.C; opt = S.opt; name = S.name
        ACC = 32
        def acc(mb, nb): return ACC + (((mb >> 2) * 2 + (nb >> 1)) * 8 + (nb & 1) * 4 + (mb & 3)) * 4
        def fa(st, i): return st * 32 + i * 4
        NF = 20
        steps = []
        for s_ in range(NF): steps.append(([(s_, mb) for mb in range(8)], [(mb, s_, mb, nb) for nb in range(4) for mb in range(8)]))
        for half in (1, 0):
            for p in range(4):
                fr = [(NF + 2 * p + e, 4 * half + m) for e in range(2) for m in range(4)]
                if p < 3: mf = [(4 * e + m, NF + 2 * p + e, 4 * half + m, nb) for e in range(2) for nb in range(4) for m in range(4)]
                else: mf = [(4 * e + m, NF + 2 * p + e, 4 * half + m, nb) for hn in (1, 0) for e in range(2) for nb in (2 * hn, 2 * hn + 1) for m in range(4)]
                steps.append((fr, mf))
        def reads(k):
            return [f"ds_read_b64_tr_b16 {a(fa(k & 1, i) + 2 * r2, 2)}, v{S.vA + 8 * ((st & 7) >> 2) + mb} offset:{(st & 3) * 16384 + r2 * 4096}"
                    for i, (st, mb) in enumerate(steps[k][0]) for r2 in range(2)]
        for x in reads(0): o(x)
        C.out()
        o(("tv", "AT"))
        S.stamp(5)
        XR = 160; PR = 208; ATF = 240; SEL = 24; OMG = [2, 3]; vG = [4, 5]
        vXW, vXR_, vFo, vFp, vAT, vOut, vCn = 6, 7, 8, 9, 10, 11, 16
        sDT = 35
        t = A()
        t(f"""
        s_lshr_b32 s36, s2, 4
        s_lshl_b32 s36, s36, 8
        s_add_u32 s36, s36, 32768
        v_mov_b32 v{vCn}, s36
        s_lshl_b32 s36, s2, 2
        s_add_u32 s36, s36, s24
        s_lshl_b32 s37, s36, 5
        v_mov_b32 v{vFo}, s37
        s_xor_b32 s37, s37, {4 << 7}
        v_mov_b32 v{vFp}, s37
        s_lshl_b32 s100, s36, 13
        s_xor_b32 s101, s100, {4 << 15}
        s_lshl_b32 s36, s24, 13
        s_add_u32 s36, s36, {XOFF2}
        v_add_u32 v{vXW}, s36, v1
        v_xor_b32 v{vXR_}, {2 << 13}, v{vXW}
        s_lshl_b32 s{sDT}, s{S.sDP}, 1
        s_add_u32 s{sDT}, s{sDT}, s{S.sKH}
        s_lshl_b32 s36, s{sDT}, 8
        s_add_u32 s36, s36, 32768
        v_mov_b32 v23, s36
        s_mov_b32 s36, {GCNT}
        v_writelane_b32 v23, s36, 1
        s_and_b32 s36, s24, 1
        s_lshl_b32 s36, s36, 7
        s_lshr_b32 s37, s24, 1
        s_lshl_b32 s37, s37, 6
        s_add_u32 s36, s36, s37
        s_lshl_b32 s37, s{S.sTT}, 8
        s_add_u32 s37, s37, s36
        s_lshl_b32 s38, s{sDT}, 18
        s_add_u32 s38, s38, s37
        s_lshl_b32 s39, s37, 1
        s_lshl_b32 s25, s37, 10
        s_lshl_b32 s36, s{sDT}, 7
        s_add_u32 s25, s25, s36
        s_add_u32 s26, s25, {16*2048}
        v_and_b32 v30, 15, v0
        v_lshrrev_b32 v31, 4, v0
        v_lshlrev_b32 v{vAT}, 12, v30
        v_lshl_add_u32 v{vAT}, v31, 4, v{vAT}
        v_lshlrev_b32 v29, 2, v30
        v_lshlrev_b32 v{vOut}, 11, v30
        v_and_b32 v28, 1, v31
        v_lshl_add_u32 v{vOut}, v28, 5, v{vOut}
        v_lshrrev_b32 v28, 1, v31
        v_lshl_add_u32 v{vOut}, v28, 4, v{vOut}
        v_lshlrev_b32 v31, 3, v31
        v_sub_u32 v17, v30, v31
        """)
        SET = [x.strip() for x in t.l if x.strip()]
        NSET = len(SET)
        SELL = [("wv", "G")]
        for nb in range(2):
            g = vG[nb]
            SELL += [x.strip() for x in f"""v_sub_f32 v{OMG[nb]}, 1.0, v{g}
            v_add_u32 v30, {16*nb}, v17
            v_cvt_pk_bf16_f32 v{OMG[nb]}, v{OMG[nb]}, v{OMG[nb]}
            v_and_b32 v31, 1, v30
            v_lshlrev_b32 v{OMG[nb]}, 16, v{OMG[nb]}
            v_cmp_eq_u32 vcc, 1, v31
            v_lshrrev_b32 v31, 16, v{g}
            v_and_b32 v{g}, 0xffff0000, v{g}
            v_ashrrev_i32 v30, 1, v30
            v_cndmask_b32 v{g}, v31, v{g}, vcc""".split("\n")]
            for q in range(4): SELL += [f"v_cmp_eq_u32 vcc, {q}, v30", f"v_cndmask_b32 v{XR+32+16+4*nb+q if False else 248+4*nb+q}, 0, v{g}, vcc"]
        SELR = 248
        ATR = 224
        seen = set()
        for k, (fr, mf) in enumerate(steps):
            if k in opt.get("kst", []): S.stamp(1 + opt["kst"].index(k), True)
            fill = {}
            def add(i, *x): fill.setdefault(i, []).extend(x)
            stages = sorted(set(x[1] for x in mf))
            if k < 24: o(("wv",) + tuple(f"H{s_}" for s_ in stages))
            o("s_waitcnt lgkmcnt(0)")
            ka = opt.get("ka", 5)
            if k < 23:
                tg = tuple(f"W{s_}" for s_, _ in steps[k + 1][0] if S.wpath[s_] == "d" and s_ >= S.PW) + (("AT",) if k == ka else ())
                if tg: add(0, ("wv",) + tg)
                add(0, "s_barrier")
            rpos = [2 + (i * 3) // 2 for i in range(16)]
            if k == 23: rpos = list(range(16))
            if k == 24: rpos = [9 + i for i in range(16)]
            if k in (24, 25): add(0, "s_barrier")
            if k + 1 < 28:
                for i, x in enumerate(reads(k + 1)): add(rpos[i], x)
            for (kd, kk, g), L in S.P.items():
                if kd == "g" and kk == k: add(g, *L)
            if k == ka:
                add(1, "s_cmp_lg_u32 s24, 0", f"s_cbranch_scc1 {name}_na", "s_mov_b64 exec, 1", f"!global_atomic_add v{vCn}, v25, s[56:57] sc1", "s_mov_b64 exec, -1", f"{name}_na:")
            kp = opt.get("kp", 21)
            if k == kp: add(10, "global_load_dword v22, v23, s[56:57] sc1", ("tv", "ap"))
            if k == kp + 1:
                assert len(SET) < 12
                add(19, *S.spin("st", 22, 23, 56, 16, ("wv", "ap"), two=True))
                for q in range(2): add(20 + q, f"buffer_load_dword v{vG[q]}, v29, s[{S.sG}:{S.sG+3}], s39 offen offset:{64*q} sc1", ("tv", "G"))
                for mb in range(4):
                    add(22 + 3 * mb, f"buffer_load_dwordx4 {v(ATR+4*mb,4)}, v{vAT}, s[{S.sAT}:{S.sAT+3}], s38 offen sc1", "s_add_u32 s38, s38, 65536")
            if k in (23, 27):
                q = 3 if k == 23 else 1
                for i in range(8): add(17 + 2 * i, f"ds_write_b128 v{vXW}, {v(ACC+32*q+4*i,4)} offset:{1024*i}")
            if k == 24:
                for i in range(8): add(1 + i, f"ds_read_b128 {v(XR+4*i,4)}, v{vXR_} offset:{1024*i}", ("tl", f"x{i}"))
            if k in (24, 25):
                sp = opt.get("xsp", 2)
                for i in range(8):
                    b = ACC + 64 + 4 * i; p = 12 + sp * i
                    L = [[("wl", f"x{i}")] * (p < 32) + [f"v_add_f32 v{b+r}, v{b+r}, v{XR+4*i+r}" for r in range(2)], [f"v_add_f32 v{b+r}, v{b+r}, v{XR+4*i+r}" for r in range(2, 4)],
                         [f"buffer_store_dwordx4 {v(b,4)}, v1, s[{S.sX}:{S.sX+3}], s100 offen offset:{1024*(i&3)} sc1"] + ["s_add_u32 s100, s100, 4096"] * (i == 3) + [("tv", "XS")]]
                    for j, x in enumerate(L):
                        if (p + j) // 32 == k - 24: add((p + j) % 32, *x)
            fk, fp = opt.get("flagpos", (27, 8))
            if k == fk:
                add(fp, ("wv", "XS"), "s_mov_b64 exec, 1", f"global_store_dword v{vFo}, v25, s[56:57] sc1", "s_mov_b64 exec, -1")
            if k == 27: add(opt.get("ppos", 30), f"global_load_dword v22, v{vFp}, s[56:57] sc1")
            BG = SET if SET else SELL
            if k == 23: assert not SET
            for i in range(1, 32):
                if i not in fill and BG and (k >= opt.get("kbg", 16) or len(SET) > NSET - 4) and not (BG is SELL and k < 25):
                    add(i, BG.pop(0))
                    while BG and isinstance(fill[i][-1], tuple) or (BG and isinstance(BG[0], tuple) and BG[0][0] == "tv"): add(i, BG.pop(0))
            for i, (fi, st, mb, nb) in enumerate(mf):
                c = v(acc(mb, nb), 4) if (mb, nb) in seen else "0"
                seen.add((mb, nb))
                o(f"v_mfma_f32_16x16x32_bf16 {v(acc(mb,nb),4)}, {a(fa(k&1,fi),4)}, {S.fh(st,nb)}, {c}")
                S.emit([x for x in fill.get(i, []) if not any(isinstance(x, str) and x.startswith(p) for p in opt.get("g2drop", []))])
            if k == 23: S.stamp(6)
        S.stamp(7)
        o("s_waitcnt lgkmcnt(0)\ns_barrier")
        for i in range(8): o(f"ds_read_b128 {v(XR+4*i,4)}, v{vXR_} offset:{1024*i}"); o(("tl", f"y{i}"))
        assert not SELL
        S.emit(S.spin("sp", 22, vFp, 56, 1, "s_waitcnt vmcnt(0)"))
        P2 = 96
        for i in range(8):
            o(f"buffer_load_dwordx4 {v(P2+4*i,4)}, v1, s[{S.sX}:{S.sX+3}], s101 offen offset:{1024*(i&3)} sc1"); o(("tv", f"p{i}"))
            if i == 3: o("s_add_u32 s101, s101, 4096")
        S.stamp(8)
        o("s_waitcnt lgkmcnt(0)")
        for i in range(8):
            b = ACC + 4 * i
            for r in range(4): o(f"v_add_f32 v{b+r}, v{b+r}, v{XR+4*i+r}")
            for r in range(4): o(f"v_mul_f32 v{b+r}, v{OMG[i>>2]}, v{b+r}")
        o("s_nop 1")
        for nb in range(2):
            for mb in range(4):
                o(f"v_mfma_f32_16x16x32_bf16 {v(acc(mb,nb),4)}, {v(ATR+4*mb,4)}, {v(SELR+4*nb,4)}, {v(acc(mb,nb),4)}")
        o("s_nop 7")
        for nb in range(2):
            for pr in range(2):
                b = acc(2 * pr, nb); d = XR + 4 * (2 * nb + pr); i = 4 * nb + 2 * pr
                o(("wv", f"p{i+1}"))
                for r in range(8): o(f"v_fma_f32 v{b+r}, v{P2+4*i+r}, v{OMG[nb]}, v{b+r}")
                for q in range(4): o(f"v_cvt_pk_bf16_f32 v{d+q}, v{b+2*q}, v{b+2*q+1}")
                o(f"s_nop 1\nv_permlane16_swap_b32 v{d}, v{d+2}\nv_permlane16_swap_b32 v{d+1}, v{d+3}")
                o(f"buffer_store_dwordx4 {v(d,4)}, v{vOut}, s[{S.sO}:{S.sO+3}], s{25+nb} offen offset:{64*pr}")
        if S.st:
            o("s_waitcnt vmcnt(0)"); S.stamp(9)
            o(f"""
            s_add_u32 s4, s6, {WS_STAMP}
            s_addc_u32 s5, s7, 0
            s_lshl_b32 s36, s2, 2
            s_add_u32 s36, s36, s24
            s_lshl_b32 s36, s36, 6
            v_mov_b32 v1, s36
            s_waitcnt lgkmcnt(0)
            """)
            for i in range(12): o(f"v_mov_b32 v{4+i}, s{60+2*min(i,9)}")
            for i in range(3): o(f"global_store_dwordx4 v1, {v(4+4*i,4)}, s[4:5] offset:{16*i}")
            if "dstamp" in opt:
                o(f"s_cmp_lg_u32 s36, {opt['dstamp'] * 256}\ns_cbranch_scc1 {name}_nd\nv_mov_b32 v1, 16")
                for i in range(1, 12): o(f"v_subrev_u32 v{4+i}, s60, v{4+i}")
                for i in range(3): o(f"global_store_dwordx4 v1, {v(4+4*i,4)}, s[98:99] offset:{16*i}")
                o(f"{name}_nd:")

def fused(o, name="fused_kernel", stamp=False, opt=None):
    opt = dict(opt or {}); opt["stamp"] = False; opt["ct"] = 1; opt.setdefault("pf", 3); opt.setdefault("pollblk", 8); opt.setdefault("NPW", 10); opt.setdefault("frate", 8); opt.setdefault("g1pf", 1); opt.setdefault("rotlate", 1); opt.setdefault("wdelay", 3); opt.setdefault("vm", 17); opt.setdefault("vmA", 21); opt.setdefault("lead", 4); opt.setdefault("wd0", 3)
    return gemm1(o, name, False, opt, F=Fused(o, name, opt))
```

```python
from asmlib import *

def stamp_begin(o):
    o("s_memtime s[60:61]\ns_memrealtime s[68:69]")
def stamp_mid1(o): o("s_memtime s[62:63]\ns_memrealtime s[72:73]")
def stamp_mid2(o): o("s_memtime s[64:65]\ns_memrealtime s[74:75]")
def stamp_end(o, sWave, ws_lo, off=0, nw_shift=2):
    o(f"""
    s_waitcnt vmcnt(0)
    s_memtime s[66:67]
    s_memrealtime s[70:71]
    s_waitcnt lgkmcnt(0)
    s_sub_u32 s70, s70, s68
    s_sub_u32 s62, s62, s60
    s_sub_u32 s64, s64, s60
    s_sub_u32 s66, s66, s60
    s_add_u32 s76, s{ws_lo}, {WS_STAMP + off}
    s_addc_u32 s77, s{ws_lo+1}, 0
    s_lshl_b32 s78, s2, {nw_shift}
    s_add_u32 s78, s78, s{sWave}
    s_lshl_b32 s78, s78, 5
    s_sub_u32 s72, s72, s68
    s_sub_u32 s74, s74, s68
    v_mov_b32 v8, s72
    v_mov_b32 v9, s74
    v_mov_b32 v10, s70
    v_mov_b32 v11, s68
    v_mov_b32 v2, s62
    v_mov_b32 v3, s64
    v_mov_b32 v4, s66
    s_getreg_b32 s79, hwreg(HW_REG_XCC_ID)
    s_getreg_b32 s80, hwreg(HW_REG_HW_ID)
    s_and_b32 s79, s79, 15
    s_lshl_b32 s80, s80, 4
    s_or_b32 s79, s79, s80
    v_mov_b32 v5, s79
    v_mov_b32 v6, s78
    global_store_dwordx4 v6, v[2:5], s[76:77]
    global_store_dwordx4 v6, v[8:11], s[76:77] offset:16
    """)

def gemm1(o, name="gemm1_kernel", stamp=False, opt=None, F=None):
    opt = opt or {}
    kernel_begin(o, name)
    XB = 65536
    accA = opt.get("accA", False)
    def acc(mb, nb):
        i = nb * 8 + mb
        if accA: return ("a", 4 * i)
        if i < 56: return ("v", 32 + 4 * i)
        return ("a", 128 + 4 * (i - 56))
    def accs(mb, nb):
        k, b = acc(mb, nb); return rng(k, b, 4)
    fk = "v" if accA else "a"
    fo = 32 if accA else 0
    def fa(set_, mb): return fo + set_ * 64 + mb * 4
    def fb(set_, nb): return fo + set_ * 64 + 32 + nb * 4
    vW = [2, 3, 4, 5]
    vX = [6, 7]
    vWd = [8, 9, 10, 11]
    vXd = [12, 13, 14, 15]
    vS = 1
    sX, sWs, sH = 8, 12, 20
    sWave, sTT, sFT = 24, 25, 26
    sWoff, sXoff, sXoff2 = 27, 28, 29
    sWm0, sXm0 = 30, 31
    sCnt, sXd, sXs, sRs = 32, 33, 34, 35
    sXe, sNeg, sPos = 44, 45, 46
    sRot, sTx, sTw, sTmp = 47, 48, 49, 50
    rotm = opt.get('rot', 1); rl = opt.get('rotlate', 0)
    if opt.get("afirst", 1): o(f"s_cmp_ge_u32 s2, 256\ns_cbranch_scc1 {name}_end\ns_sub_u32 s2, s2, 32\ns_and_b32 s2, s2, 255")
    o(f"""
    s_cmp_ge_u32 s2, {opt.get("nwg", 224)}
    s_cbranch_scc1 {name}_aux
    s_load_dwordx2 s[4:5], s[0:1], {KA['u']}
    s_load_dwordx4 s[40:43], s[0:1], {KA['wg']}
    s_load_dwordx2 s[6:7], s[0:1], {KA['ws']}
    """)
    def ctouch(lbl, end, vd, va):
        o(f"""
        s_getpc_b64 s[80:81]
        {lbl}:
        v_lshlrev_b32 v{va}, 6, v0
        v_min_u32 v{va}, {end}-{lbl}, v{va}
        v_mov_b32 v{va+1}, s81
        v_add_co_u32 v{va}, vcc, s80, v{va}
        v_addc_co_u32 v{va+1}, vcc, 0, v{va+1}, vcc
        global_load_dword v{vd}, v[{va}:{va+1}], off
        """)
    if opt.get("ct1", 1): ctouch(f"{name}_pc1", f"{name}_lend", 16, 30)
    if stamp: stamp_begin(o)
    if F: F.stamp(0)
    o(f"""
    v_lshrrev_b32 v1, 6, v0
    v_and_b32 v0, 63, v0
    s_and_b32 s3, s2, 7
    v_readfirstlane_b32 s{sWave}, v1
    s_lshr_b32 s36, s2, 3
    s_and_b32 s37, s3, 1
    s_lshl_b32 s37, s37, 2
    s_and_b32 s38, s36, 3
    s_add_u32 s{sTT}, s37, s38
    s_lshr_b32 s37, s3, 1
    s_mul_i32 s37, s37, 7
    s_lshr_b32 s38, s36, 2
    s_add_u32 s{sFT}, s37, s38
    v_lshlrev_b32 v{vS}, 4, v0
    """)
    mix = opt.get("mix", 0)
    if mix == 1:
        mixv = "v_and_b32 v19, 128, v18\nv_add_u32 v18, v18, v19"
        mixs = f"s_and_b32 s39, s{sFT}, 1\ns_lshl_b32 s39, s39, 7\ns_lshl_b32 s38, s{sFT}, 8\ns_sub_u32 s38, s38, s39"
    elif mix == 7:
        mixv = f"v_and_b32 v19, 128, v18\nv_mul_u32_u24 v19, 13, v19\nv_add_u32 v18, v18, v19"
        mixs = f"s_cmp_ge_u32 s{sFT}, 14\ns_cselect_b32 s39, 14, 0\ns_add_u32 s38, s{sFT}, s39\ns_lshl_b32 s38, s38, 7"
    else:
        mixv = "s_nop 0"; mixs = f"s_lshl_b32 s38, s{sFT}, 8"
    o(f"""
    v_lshrrev_b32 v17, 4, v0
    v_and_b32 v18, 15, v0
    v_lshlrev_b32 v19, 2, v17
    v_xor_b32 v18, v18, v19
    v_lshlrev_b32 v18, 4, v18
    {mixv}
    v_mul_u32_u24 v19, 7168, v17
    v_add_u32 v18, v18, v19
    s_and_b32 s36, s{sWave}, 1
    s_mul_i32 s37, s36, {16*7168}
    {mixs}
    s_add_u32 s37, s37, s38
    v_add_u32 v{vWd[0]}, s37, v18
    v_xor_b32 v18, 32, v{vWd[0]}
    v_add_u32 v{vWd[1]}, {1*(28672-1024)}, v{vWd[0]}
    v_add_u32 v{vWd[2]}, {2*(28672-1024)}, v18
    v_add_u32 v{vWd[3]}, {3*(28672-1024)}, v18
    """)
    o(f"""
    v_lshrrev_b32 v18, 3, v0
    v_lshlrev_b32 v18, 11, v18
    v_and_b32 v19, 7, v0
    v_xor_b32 v19, v19, v17
    v_lshlrev_b32 v19, 4, v19
    v_add_u32 v18, v18, v19
    s_lshl_b32 s37, s{sTT}, 8
    s_lshl_b32 s38, s{sWave}, 6
    s_add_u32 s37, s37, s38
    s_lshl_b32 s37, s37, 11
    v_add_u32 v{vXd[0]}, s37, v18
    v_xor_b32 v18, 64, v{vXd[0]}
    v_add_u32 v{vXd[1]}, {8*2048-1024}, v18
    v_add_u32 v{vXd[2]}, {2*(8*2048-1024)}, v{vXd[0]}
    v_add_u32 v{vXd[3]}, {3*(8*2048-1024)}, v18
    """)
    o(f"""
    v_lshlrev_b32 v18, 11, v17
    v_bfe_u32 v19, v0, 2, 2
    v_lshlrev_b32 v20, 8, v19
    v_add_u32 v18, v18, v20
    v_lshlrev_b32 v19, 1, v19
    v_and_b32 v20, 1, v17
    v_xor_b32 v19, v19, v20
    s_lshl_b32 s37, s36, 2
    v_xor_b32 v19, s37, v19
    v_lshlrev_b32 v19, 5, v19
    v_add_u32 v18, v18, v19
    v_and_b32 v19, 3, v0
    v_lshlrev_b32 v19, 3, v19
    v_add_u32 v{vW[0]}, v18, v19
    """)
    for m in range(1, 4): o(f"v_xor_b32 v{vW[m]}, {32*m}, v{vW[0]}")
    o(f"""
    s_lshr_b32 s37, s{sWave}, 1
    s_lshl_b32 s37, s37, 14
    s_add_u32 s37, s37, {XB}
    v_and_b32 v18, 15, v0
    v_lshlrev_b32 v18, 7, v18
    v_add_u32 v18, s37, v18
    v_bfe_u32 v20, v0, 1, 3
    v_xor_b32 v19, v17, v20
    v_lshlrev_b32 v19, 4, v19
    v_add_u32 v{vX[0]}, v18, v19
    v_xor_b32 v{vX[1]}, 64, v{vX[0]}
    """)
    pst = F and opt.get("pst")
    if pst and opt.get("pmode", 1) < 4: F.stamp(1, True)
    o("s_waitcnt lgkmcnt(0)")
    if pst and opt.get("pmode", 1) < 4: F.stamp(2, True)
    srd(o, sX, 4, 2048 * 2048)
    o(f"""
    s_cmp_lt_u32 s{sWave}, 2
    s_cselect_b32 s40, s40, s42
    s_cselect_b32 s41, s41, s43
    """)
    srd(o, sWs, 40, 1024 * 7168)
    srd(o, sH, 6, WS_H_SIZE)
    o(f"""
    s_add_u32 s{sRot}, s{sTT}, s{sFT}
    s_and_b32 s{sRot}, s{sRot}, {rotm}
    s_mov_b32 s{sTx}, 0
    s_mov_b32 s{sTw}, 0
    s_lshl_b32 s{sXoff}, s{sRot if not rl else sTx}, 7
    s_mul_i32 s{sWoff}, s{sRot if not rl else sTx}, {64*7168}
    s_lshl_b32 s{sWm0}, s{sWave}, 12
    s_lshl_b32 s{sXm0}, s{sWave}, 13
    s_add_u32 s{sXm0}, s{sXm0}, {XB}
    """)
    advW0 = [f"s_add_u32 s{sWoff}, s{sWoff}, {32*7168}"]
    advW1 = [f"s_add_u32 s{sTw}, s{sTw}, 1", f"s_xor_b32 s{sTmp}, s{sTw}, s{sRot}", f"s_mul_i32 s{sWoff}, s{sTmp}, {64*7168}"]
    advX = [f"s_add_u32 s{sTx}, s{sTx}, 1", f"s_xor_b32 s{sTmp}, s{sTx}, s{sRot}", f"s_lshl_b32 s{sXoff}, s{sTmp}, 7"]
    def dmaW(j): return f"buffer_load_dwordx4 v{vWd[j]}, s[{sWs}:{sWs+3}], s{sWoff} offen offset:{1024*j} lds"
    def dmaX(j, half): return f"buffer_load_dwordx4 v{vXd[j]}, s[{sX}:{sX+3}], s{sXoff2 if half else sXoff} offen offset:{1024*j} lds"
    def grpW(slot):
        o(f"s_add_u32 m0, s{sWm0}, {slot*16384}")
        o("s_nop 0")
        for j in range(4): o(dmaW(j))
        for x in (advW1 if slot & 1 else advW0): o(x.replace(f", s{sRot}", ", 0") if rl and slot == 1 else x)
    def grpX(slot, half):
        o(f"s_add_u32 m0, s{sXm0}, {slot*32768 + half*4096}")
        o(f"s_add_u32 s{sXoff2}, s{sXoff}, 65536")
        for j in range(4): o(dmaX(j, half))
        if half:
            for x in advX: o(x.replace(f", s{sRot}", ", 0") if rl and slot == 0 else x)
    ZI = []
    for mb in range(8):
        for nb in range(8):
            k, b = acc(mb, nb)
            for r in range(4):
                ZI.append(f"v_mov_b32 v{b+r}, 0" if k == "v" else f"v_accvgpr_write_b32 a{b+r}, 0")
    pm = opt.get("pmode", 1)
    def zi(n):
        for _ in range(min(n, len(ZI))): o(ZI.pop(0))
    G = [lambda: grpX(0, 0), lambda: grpW(0), lambda: grpX(0, 1), lambda: grpW(1), lambda: grpX(1, 0), lambda: grpW(2), lambda: grpX(1, 1), lambda: grpW(3), lambda: grpX(2, 0)]
    pk = opt.get("pk", 6)
    if pk: ZI = []
    for i, g in enumerate(G[:pk] if pk else G):
        g(); o(("tv", f"g{i}"))
        if pm == 1 and i >= 2: zi(43)
        if pm == 2 and i == 2:
            if pst: F.stamp(3, True)
            zi(256)
            if pst: F.stamp(4, True); o("s_waitcnt vmcnt(8)"); F.stamp(5, True); o("s_waitcnt vmcnt(0)"); F.stamp(6, True)
        if pm == 3 and i == 2: zi(256)
        if pm == 4 and i >= 2: F.stamp(i - 1, True)
        if pm == 5 and i == 2:
            for q, w in enumerate((10, 8, 6, 4, 2, 0)): o(f"s_waitcnt vmcnt({w})"); F.stamp(q + 1, True)
    if pm == 4: o("s_waitcnt vmcnt(24)"); F.stamp(8, True)
    if pm in (4, 5): pst = 0
    npf1 = 0
    if pst and pm != 2: F.stamp(3, True)
    g1pf = F and opt.get("g1pf", 2)
    if g1pf == 1:
        o(f"""
        s_lshl_b32 s36, s2, 2
        s_add_u32 s36, s36, s{sWave}
        s_lshl_b32 s36, s36, 13
        v_lshrrev_b32 v18, 3, v0
        v_lshlrev_b32 v18, 7, v18
        s_add_u32 s84, s92, s36
        s_addc_u32 s85, s93, 0
        s_and_b32 s85, s85, 0xffff
        s_movk_i32 s86, 0x2000
        s_mov_b32 s87, 0x20000
        """)
    if g1pf == 1 and opt.get("wdelay"): o(f"v_subrev_u32 v18, {1024*opt['wdelay']}, v18")
    if g1pf == 3:
        lead = opt.get("lead", 8); wd0 = opt.get("wd0", 7)
        o(f"""
        s_lshr_b32 s36, s2, 5
        s_lshl_b32 s36, s36, 3
        s_add_u32 s36, s36, s{sTT}
        s_lshl_b32 s36, s36, 1
        s_and_b32 s37, s{sWave}, 1
        s_add_u32 s36, s36, s37
        s_lshl_b32 s36, s36, 3
        v_and_b32 v28, 7, v0
        v_add_u32 v29, s36, v28
        v_mul_u32_u24 v30, 4682, v29
        v_lshrrev_b32 v30, 16, v30
        v_lshlrev_b32 v29, 7, v29
        v_mul_u32_u24 v30, {7168 - 1792}, v30
        v_add_u32 v29, v29, v30
        s_bfe_u32 s37, s2, 0x20001
        s_mul_i32 s37, s37, 1792
        s_add_u32 s36, s37, {lead*64*7168}
        s_add_u32 s36, s40, s36
        s_addc_u32 s37, s41, 0
        v_mov_b32 v19, s37
        v_add_co_u32 v18, vcc, s36, v29
        v_addc_co_u32 v19, vcc, 0, v19, vcc
        s_and_b32 s36, s{sFT}, 15
        s_lshl_b32 s36, s36, 2
        s_add_u32 s36, s36, s{sWave}
        s_lshl_b32 s36, s36, 13
        s_lshl_b32 s37, s{sTT}, 19
        s_add_u32 s36, s36, s37
        s_add_u32 s36, s36, {lead*128}
        s_add_u32 s36, s4, s36
        s_addc_u32 s37, s5, 0
        v_and_b32 v29, 3, v0
        v_lshlrev_b32 v29, 11, v29
        v_mov_b32 v21, s37
        v_add_co_u32 v20, vcc, s36, v29
        v_addc_co_u32 v21, vcc, 0, v21, vcc
        s_lshl_b32 s36, s2, 2
        s_add_u32 s36, s36, s{sWave}
        s_lshl_b32 s36, s36, 13
        s_add_u32 s36, s92, s36
        s_addc_u32 s37, s93, 0
        v_lshlrev_b32 v29, 7, v28
        v_mov_b32 v23, s37
        v_add_co_u32 v22, vcc, s36, v29
        v_addc_co_u32 v23, vcc, 0, v23, vcc
        v_bfe_u32 v28, v0, 3, 2
        v_mov_b32 v24, {64*7168}
        v_mov_b32 v25, 0
        v_mov_b32 v26, 128
        v_mov_b32 v27, 1024
        v_cmp_eq_u32 vcc, 1, v28
        v_cndmask_b32 v18, v18, v20, vcc
        v_cndmask_b32 v19, v19, v21, vcc
        v_cndmask_b32 v24, v24, v26, vcc
        v_cmp_lt_u32 vcc, 1, v28
        v_cndmask_b32 v18, v18, v22, vcc
        v_cndmask_b32 v19, v19, v23, vcc
        v_cndmask_b32 v24, v24, v25, vcc
        v_cndmask_b32 v25, v25, v27, vcc
        v_mov_b32 v26, 0
        """)
        t0 = opt.get("l2t", None)
        if t0 is not None: o(f"""
        s_lshr_b32 s36, s2, 3
        s_lshl_b32 s36, s36, 2
        s_add_u32 s36, s36, s{sWave}
        s_lshl_b32 s36, s36, 2
        v_add_u32 v28, s36, v28
        v_sub_u32 v29, 1791, v28
        s_bitcmp1_b32 s2, 1
        s_cselect_b64 vcc, -1, 0
        s_cselect_b32 s38, {(-448*2048) & 0xffffffff}, {448*2048} if False else 0
        s_cselect_b32 s36, 1024, 0
        v_cndmask_b32 v28, v28, v29, vcc
        s_bfe_u32 s37, s2, 0x10002
        s_mul_i32 s37, s37, {1792*2048}
        s_add_u32 s36, s36, s37
        s_add_u32 s36, s92, s36
        s_addc_u32 s37, s93, 0
        v_and_b32 v29, 7, v0
        v_lshlrev_b32 v29, 7, v29
        v_lshl_add_u32 v29, v28, 11, v29
        v_mov_b32 v23, s37
        v_add_co_u32 v22, vcc, s36, v29
        v_addc_co_u32 v23, vcc, 0, v23, vcc
        v_mov_b32 v27, s38
        v_cmp_lt_u32 vcc, 31, v0
        v_cndmask_b32 v18, v18, v22, vcc
        v_cndmask_b32 v19, v19, v23, vcc
        v_cndmask_b32 v24, v24, v26, vcc
        v_cndmask_b32 v25, v25, v26, vcc
        v_cndmask_b32 v26, v26, v27, vcc
        """.replace(f"s_cselect_b32 s38, {(-448*2048) & 0xffffffff}, {448*2048} if False else 0", f"s_cselect_b32 s38, -1, 1\ns_mul_i32 s38, s38, {448*2048}"))
    TQ = dict(zip(opt.get("tord", "1x2d"), (18, 20, 22, 24)))
    ROT = [f"v_mov_b32 v{r}, v{r+2}" for r in range(18, 26)]
    TL = "global_load_dword v16, v[18:19], off"
    if g1pf == 2:
        r0 = opt.get("tr0", 128); nr = (1024 - r0) // 2
        o(f"""
        s_lshr_b32 s36, s2, 5
        s_lshl_b32 s36, s36, 3
        s_add_u32 s36, s36, s{sTT}
        s_lshl_b32 s36, s36, 1
        s_and_b32 s37, s{sWave}, 1
        s_add_u32 s36, s36, s37
        s_mul_i32 s36, s36, {4*7168}
        s_bfe_u32 s37, s2, 0x20001
        s_mul_i32 s37, s37, 1792
        s_add_u32 s36, s36, s37
        s_add_u32 s36, s36, {r0*7168}
        s_add_u32 s36, s40, s36
        s_addc_u32 s37, s41, 0
        v_and_b32 v28, 15, v0
        v_min_u32 v29, 13, v28
        v_lshlrev_b32 v29, 7, v29
        v_mul_u32_u24 v30, 7168, v17
        v_add_u32 v29, v29, v30
        v_mov_b32 v{TQ['1']+1}, s37
        v_add_co_u32 v{TQ['1']}, vcc, s36, v29
        v_addc_co_u32 v{TQ['1']+1}, vcc, 0, v{TQ['1']+1}, vcc
        v_add_co_u32 v{TQ['2']}, vcc, {nr*7168}, v{TQ['1']}
        v_addc_co_u32 v{TQ['2']+1}, vcc, 0, v{TQ['1']+1}, vcc
        s_and_b32 s36, s{sFT}, 15
        s_lshl_b32 s36, s36, 2
        s_add_u32 s36, s36, s{sWave}
        s_lshl_b32 s36, s36, 13
        s_lshl_b32 s37, s{sTT}, 19
        s_add_u32 s36, s36, s37
        s_add_u32 s36, s4, s36
        s_addc_u32 s37, s5, 0
        v_max_u32 v29, 3, v28
        v_lshlrev_b32 v29, 7, v29
        v_lshl_add_u32 v29, v17, 11, v29
        v_mov_b32 v{TQ['x']+1}, s37
        v_add_co_u32 v{TQ['x']}, vcc, s36, v29
        v_addc_co_u32 v{TQ['x']+1}, vcc, 0, v{TQ['x']+1}, vcc
        s_lshl_b32 s36, s2, 2
        s_add_u32 s36, s36, s{sWave}
        s_lshl_b32 s36, s36, 13
        s_add_u32 s36, s92, s36
        s_addc_u32 s37, s93, 0
        v_lshlrev_b32 v29, 7, v0
        v_mov_b32 v{TQ['d']+1}, s37
        v_add_co_u32 v{TQ['d']}, vcc, s36, v29
        v_addc_co_u32 v{TQ['d']+1}, vcc, 0, v{TQ['d']+1}, vcc
        v_mov_b32 v26, s36
        v_mov_b32 v27, s37
        """)
        if opt.get("tpro", 1):
            o(TL); npf1 = 1; opt.setdefault("vm", 17)
            for x in ROT: o(x)
    zi(256)
    def reads(set_, sl, ks2):
        Aa = []
        for mb in range(8):
            for r2 in range(2):
                Aa.append(f"ds_read_b64_tr_b16 {rng(fk, fa(set_, mb)+2*r2, 2)}, v{vW[mb&3]} offset:{sl*16384 + (mb>>2)*8192 + r2*1024}")
        Bb = [f"ds_read_b128 {rng(fk, fb(set_, nb), 4)}, v{vX[ks2]} offset:{nb*2048}" for nb in range(8)]
        L = []
        for i in range(8): L += Aa[2*i:2*i+2] + [Bb[i]]
        return L
    o(f"""
    s_mov_b32 s{sCnt}, 0
    s_add_u32 s{sXs}, s{sXm0}, {2*32768}
    s_add_u32 s{sXe}, s{sXm0}, {3*32768}
    s_mov_b32 s{sNeg}, {(-65536) & 0xffffffff}
    s_mov_b32 s{sPos}, 32768
    s_mov_b32 s{sRs}, 0
    """)
    if pst and pm != 2: F.stamp(4, True); o("s_waitcnt vmcnt(32)"); F.stamp(5, True)
    o(("wv", "g2") if pk else f"s_waitcnt vmcnt({24 + npf1})")
    if pst and pm != 2: F.stamp(6, True)
    o("s_barrier")
    if pst: F.stamp(7, True)
    if stamp: stamp_mid1(o)
    if F: F.stamp(1)
    for r in reads(0, 0, 0): o(r)
    order = []
    if opt.setdefault("order", "nb") == "snake":
        for mb in range(8):
            for nb in (range(8) if mb % 2 == 0 else range(7, -1, -1)): order.append((mb, nb))
    elif opt["order"] == "mb":
        order = [(mb, nb) for mb in range(8) for nb in range(8)]
    elif opt["order"] == "nb":
        order = [(mb, nb) for nb in range(8) for mb in range(8)]
    elif opt["order"] == "diag":
        order = [((i + j) % 8, j) for i in range(8) for j in range(8)]
    def substep(set_, fill, vm=None):
        o("s_waitcnt lgkmcnt(0)")
        for i, (mb, nb) in enumerate(order):
            o(f"v_mfma_f32_16x16x32_bf16 {accs(mb,nb)}, {rng(fk,fa(set_,mb),4)}, {rng(fk,fb(set_,nb),4)}, {accs(mb,nb)}")
            if i == 1:
                if vm != -1: o("s_waitcnt vmcnt(%d)" % (opt.get("vm", 16) if vm is None else vm))
                o("s_barrier")
            for ins in fill.get(i, []): o(ins)
    nodma = opt.get("nodma", False); nord = opt.get("noread", False)
    def mkfill(rd, dW, dX):
        f = {}
        def add(i, x): f.setdefault(i, []).append(x)
        for k, x in enumerate(rd):
            if not nord: add(4 + 2 * k, x)
        add(3, dW[0])
        for k, x in enumerate(dW[1:]):
            if not nodma and not opt.get("noW"): add(5 + 8 * k, x)
        add(33, dX[0])
        for k, x in enumerate(dX[1:]):
            if not nodma and not opt.get("noX"): add(35 + 8 * k, x)
        return f
    def dmW(slotoff): return [f"s_add_u32 m0, s{sWm0}, {slotoff}"] + [dmaW(j) for j in range(4)]
    def dmX(half): return [f"s_add_u32 m0, s{sXs}, {half*4096}"] + [dmaX(j, half) for j in range(4)]
    def ext(f, i, L): f.setdefault(i, []).extend(L)
    FA = f = mkfill(reads(1, 1, 1), dmW(0), dmX(1))
    ext(f, 31, [f"s_add_u32 s{sXoff2}, s{sXoff}, 65536", f"s_add_u32 s{sWoff}, s{sWoff}, {32*7168}"])
    ext(f, 60, advX[0:2]);
    ext(f, 52, [f"s_add_u32 s{sXs}, s{sXs}, 32768"])
    ext(f, 61, advX[2:] + [f"s_cmp_eq_u32 s{sXs}, s{sXe}", f"s_cselect_b32 s{sXs}, s{sXm0}, s{sXs}"])
    ext(f, 53, [f"s_add_u32 s{sRs}, s{sRs}, 1", f"s_cmp_eq_u32 s{sRs}, 3"])
    ext(f, 54, [f"s_cselect_b32 s{sXd}, s{sNeg}, s{sPos}", f"s_cselect_b32 s{sRs}, 0, s{sRs}"])
    for m in range(4): ext(f, 55 + m, [f"v_xor_b32 v{vW[m]}, 0x8000, v{vW[m]}"])
    ext(f, 62, [f"v_add_u32 v{vX[0]}, s{sXd}, v{vX[0]}", f"s_cmp_ge_u32 s{sCnt}, 13"])
    ext(f, 63, [f"v_add_u32 v{vX[1]}, s{sXd}, v{vX[1]}", f"s_cselect_b32 s{sX+2}, 0, s{sX+2}"])
    FB = f = mkfill(reads(0, 0, 0), dmW(16384), dmX(0))
    ext(f, 31, advW1[0:2]); ext(f, 37, advW1[2:] + [f"s_xor_b32 s{sWm0}, s{sWm0}, 0x8000"])
    if g1pf == 2:
        ext(f, 55, [TL])
        for i, x in enumerate(ROT): ext(f, 40 + 2 * i if False else 56 + i // 2, [x])
    if g1pf == 3:
        ext(f, 55, [TL])
        ext(f, 39, [f"s_cmp_lt_u32 s{sCnt}, {15 - lead}", "s_cselect_b32 s84, -1, 0"])
        ext(f, 41, [f"s_sub_u32 s85, s{sCnt}, {wd0}", "s_cmp_lt_u32 s85, 7", "s_cselect_b32 s85, -1, 0"])
        ext(f, 45, ["v_and_b32 v20, s84, v24"]); ext(f, 47, ["v_and_or_b32 v20, s85, v25, v20"])
        ext(f, 49, [f"s_sub_u32 s86, s{sCnt}, {t0 or 0}", "s_cmp_lt_u32 s86, 3", "s_cselect_b32 s86, -1, 0"])
        ext(f, 53, ["v_and_or_b32 v20, s86, v26, v20"]); ext(f, 54, ["v_ashrrev_i32 v21, 31, v20"])
        ext(f, 57, ["v_add_co_u32 v18, vcc, v18, v20"]); ext(f, 58, ["v_addc_co_u32 v19, vcc, v21, v19, vcc"])
    if g1pf == 1: ext(f, 55, ["buffer_load_dword v16, v18, s[84:87], 0 offen"]); ext(f, 57, ["v_add_u32 v18, 1024, v18"])
    ext(f, 62, [f"s_add_u32 s{sCnt}, s{sCnt}, 1", f"s_cmp_lt_u32 s{sCnt}, {15 if F else 16}"])
    ext(f, 63, [f"s_cbranch_scc1 {name}_loop"])
    if pk:
        def first(set_, F_, bar, tag, remap, extra, c0):
            g = {}; k = 0
            for i in sorted(F_):
                for x in F_[i]:
                    if x.startswith("s_cbranch"): continue
                    if x.startswith("ds_read"): p = bar + 2 + int(1.8 * k); k += 1
                    else: p = remap.get(i, i)
                    g.setdefault(p, []).append(x)
            o("s_waitcnt lgkmcnt(0)")
            for i, (mb, nb) in enumerate(order):
                o(f"v_mfma_f32_16x16x32_bf16 {accs(mb,nb)}, {rng(fk,fa(set_,mb),4)}, {rng(fk,fb(set_,nb),4)}, {0 if c0 else accs(mb,nb)}")
                if i == bar: o(("wv", tag)); o("s_barrier")
                for x in extra.get(i, []) + g.get(i, []): o(x)
        ex = {}; p = 1; o_ = o
        for i in range(pk, 9):
            o = A(); G[i](); L = [x.strip() for x in o.l]; o = o_
            for x in L:
                ex.setdefault(p, []).append(x)
                if x.startswith("buffer"): p += 2
            ex.setdefault(p, []).append(("tv", f"g{i}"))
        assert p < 27
        first(0, FA, opt.get("bA", 8), "g3", {3: 27, 5: 28, 13: 30, 21: 32, 29: 34, 31: 36, 33: 37, 35: 38, 43: 44, 51: 50}, ex, True)
        bB = opt.get("bB", 6)
        first(1, FB, bB, "g6", {5: bB + 1}, {}, False)
    o(".p2align 3")
    o.label(f"{name}_loop")
    substep(0, FA)
    substep(1, FB)
    o.label(f"{name}_lend")
    stm = opt.get("hst", "sc1") if F else ""
    F.G = F.pf()
    EP = []
    T = 2
    n = 0
    for nb in range(8):
        for pr in range(2):
            st = 24 + 4 * (n & 1); n += 1
            gk, gb = acc(2 * pr, nb); uk, ub = acc(4 + 2 * pr, nb)
            E = []
            if gk == "a":
                gt = 32 if accA else 32
                for r in range(8): E.append(f"v_accvgpr_read_b32 v{gt+r}, a{gb+r}")
                gb = gt
            if uk == "a":
                for r in range(8): E.append(f"v_accvgpr_read_b32 v{10+r}, a{ub+r}")
                ub = 10
            for p in range(4): E.append(f"v_pk_mul_f32 {v(T+2*p,2)}, {v(gb+2*p,2)}, s[38:39]")
            for r in range(8): E.append(f"v_exp_f32 v{T+r}, v{T+r}")
            for p in range(4): E.append(f"v_pk_mul_f32 {v(gb+2*p,2)}, {v(gb+2*p,2)}, {v(ub+2*p,2)}")
            for p in range(4): E.append(f"v_pk_add_f32 {v(T+2*p,2)}, {v(T+2*p,2)}, 1.0 op_sel_hi:[1,0]")
            for r in range(8): E.append(f"v_rcp_f32 v{T+r}, v{T+r}")
            E.append("s_nop 0")
            for p in range(4): E.append(f"v_pk_mul_f32 {v(gb+2*p,2)}, {v(gb+2*p,2)}, {v(T+2*p,2)}")
            for p in range(4): E.append(f"v_cvt_pk_bf16_f32 v{st+p}, v{gb+2*p}, v{gb+2*p+1}")
            E.append(f"buffer_store_dwordx4 {v(st,4)}, v{vS}, s[{sH}:{sH+3}], s36 offen offset:{pr*1024} {stm}")
            if F: E = F.epi_merge(n - 1, E)
            EP += E
        EP.append(f"s_add_u32 s36, s36, {112*1024}")
    def mid():
        if stamp: stamp_mid2(o)
        if pst: F.stamp(8, True)
        if F: F.stamp(2); F.g1_exit(sTT, sFT)
        o(f"""
    s_lshr_b32 s36, s{sWave}, 1
    s_lshl_b32 s36, s36, 3
    s_lshl_b32 s37, s{sTT}, 4
    s_add_u32 s36, s36, s37
    s_mul_i32 s36, s36, 112
    s_and_b32 s37, s{sWave}, 1
    s_mul_i32 s37, s37, {4 * mix if mix else 2}
    s_add_u32 s36, s36, s37
    {mixs}
    s_lshr_b32 s37, s38, 6
    s_add_u32 s36, s36, s37
    s_lshl_b32 s36, s36, 10
    s_mov_b32 s38, 0xbfb8aa3b
    s_mov_b32 s39, 0xbfb8aa3b
    s_nop 7
        """)
    ov = opt.get("ov", 3)
    if not ov:
        f = F.peel(0)
        for k, x in enumerate(reads(1, 1, 1)): f.setdefault(4 + 2 * k, []).insert(0, x)
        substep(0, f, 0)
        substep(1, F.peel(1), -1)
        mid()
    else:
        f = F.peel(0)
        for k, x in enumerate(reads(1, 1, 1)): f.setdefault(3 + k, []).insert(0, x)
        for p, L in F.peel(1).items(): f.setdefault(64 + p, []).extend(L)
        seq = [(0, 0), (0, 1), (0, 2), (0, 3), (1, 0), (1, 1), (0, 4), (1, 2), (0, 5), (1, 3), (0, 6), (0, 7), (1, 4), (1, 5), (1, 6), (1, 7)]
        o("s_waitcnt lgkmcnt(0)")
        e0 = opt.get("e0", 44); cr = 0.0
        for i in range(128):
            set_, nb = seq[i >> 3]; mb = i & 7
            if i == 32: o("s_waitcnt lgkmcnt(0)")
            o(f"v_mfma_f32_16x16x32_bf16 {accs(mb,nb)}, {rng(fk,fa(set_,mb),4)}, {rng(fk,fb(set_,nb),4)}, {accs(mb,nb)}")
            if i == 1: o("s_waitcnt vmcnt(0)")
            if i in (1, 33): o("s_barrier")
            for ins in f.get(i, []): o(ins)
            if i == 36: mid()
            if i >= e0:
                cr += ov
                while cr >= 1:
                    x = EP.pop(0)
                    if not any(isinstance(x, str) and x.startswith(p) for p in opt.get('ovdrop', [])): o(x)
                    if not isinstance(x, tuple): cr -= 1
        F.stamp(2)
    for x in EP: o(x)
    if F:
        F.phase2()
    if stamp: stamp_end(o, sWave, 6)
    o.label(f"{name}_end")
    o("s_endpgm")
    if F: F.late()
    o.label(f"{name}_aux")
    o(f"s_cmp_ge_u32 s2, 256\ns_cbranch_scc1 {name}_end2\ns_sub_u32 s3, s2, 224")
    from aux import aux_body
    if opt.get("ct2", 1): ctouch(f"{name}_pc2", f"{name}_end2", 57, 250)
    if stamp: stamp_begin(o)
    if F: F.stamp(0)
    aux_body(o, name, 3, opt, stmod='sc1' if F else '', F=F)
    if F: F.aux_exit()
    if stamp:
        stamp_end(o, 24, 6)
    o.label(f"{name}_end2")
    o("s_endpgm")
    if F: kernel_desc(o, name, 512, 256)
    elif accA: kernel_desc(o, name, 160 + 256, 160)
    else: kernel_desc(o, name, 256 + 160, 256)
    return f"; @launch kernel={name} grid=(256,1,1) block=(256,1,1) lds=163840"
```

```python
from asmlib import *

def stamp_begin(o):
    o("s_memtime s[60:61]\ns_memrealtime s[68:69]")
def stamp_mid1(o): o("s_memtime s[62:63]\ns_memrealtime s[72:73]")
def stamp_mid2(o): o("s_memtime s[64:65]\ns_memrealtime s[74:75]")
def stamp_end(o, sWave, ws_lo, off=0, nw_shift=2):
    o(f"""
    s_waitcnt vmcnt(0)
    s_memtime s[66:67]
    s_memrealtime s[70:71]
    s_waitcnt lgkmcnt(0)
    s_sub_u32 s70, s70, s68
    s_sub_u32 s62, s62, s60
    s_sub_u32 s64, s64, s60
    s_sub_u32 s66, s66, s60
    s_add_u32 s76, s{ws_lo}, {WS_STAMP + off}
    s_addc_u32 s77, s{ws_lo+1}, 0
    s_lshl_b32 s78, s2, {nw_shift}
    s_add_u32 s78, s78, s{sWave}
    s_lshl_b32 s78, s78, 5
    s_sub_u32 s72, s72, s68
    s_sub_u32 s74, s74, s68
    v_mov_b32 v8, s72
    v_mov_b32 v9, s74
    v_mov_b32 v10, s70
    v_mov_b32 v11, s68
    v_mov_b32 v2, s62
    v_mov_b32 v3, s64
    v_mov_b32 v4, s66
    s_getreg_b32 s79, hwreg(HW_REG_XCC_ID)
    s_getreg_b32 s80, hwreg(HW_REG_HW_ID)
    s_and_b32 s79, s79, 15
    s_lshl_b32 s80, s80, 4
    s_or_b32 s79, s79, s80
    v_mov_b32 v5, s79
    v_mov_b32 v6, s78
    global_store_dwordx4 v6, v[2:5], s[76:77]
    global_store_dwordx4 v6, v[8:11], s[76:77] offset:16
    """)

def gemm1(o, name="gemm1_kernel", stamp=False, opt=None, F=None):
    opt = opt or {}
    kernel_begin(o, name)
    XB = 65536
    accA = opt.get("accA", False)
    def acc(mb, nb):
        i = nb * 8 + mb
        if accA: return ("a", 4 * i)
        if i < 56: return ("v", 32 + 4 * i)
        return ("a", 128 + 4 * (i - 56))
    def accs(mb, nb):
        k, b = acc(mb, nb); return rng(k, b, 4)
    fk = "v" if accA else "a"
    fo = 32 if accA else 0
    def fa(set_, mb): return fo + set_ * 64 + mb * 4
    def fb(set_, nb): return fo + set_ * 64 + 32 + nb * 4
    vW = [2, 3, 4, 5]
    vX = [6, 7]
    vWd = [8, 9, 10, 11]
    vXd = [12, 13, 14, 15]
    vS = 1
    sX, sWs, sH = 8, 12, 20
    sWave, sTT, sFT = 24, 25, 26
    sWoff, sXoff, sXoff2 = 27, 28, 29
    sWm0, sXm0 = 30, 31
    sCnt, sXd, sXs, sRs = 32, 33, 34, 35
    sXe, sNeg, sPos = 44, 45, 46
    sRot, sTx, sTw, sTmp = 47, 48, 49, 50
    rotm = opt.get('rot', 1); rl = opt.get('rotlate', 0)
    if opt.get("afirst", 1): o(f"s_cmp_ge_u32 s2, 256\ns_cbranch_scc1 {name}_end\ns_sub_u32 s2, s2, 32\ns_and_b32 s2, s2, 255")
    o(f"""
    s_cmp_ge_u32 s2, {opt.get("nwg", 224)}
    s_cbranch_scc1 {name}_aux
    s_load_dwordx2 s[4:5], s[0:1], {KA['u']}
    s_load_dwordx4 s[40:43], s[0:1], {KA['wg']}
    s_load_dwordx2 s[6:7], s[0:1], {KA['ws']}
    """)
    def ctouch(lbl, end, vd, va):
        o(f"""
        s_getpc_b64 s[80:81]
        {lbl}:
        v_lshlrev_b32 v{va}, 6, v0
        v_min_u32 v{va}, {end}-{lbl}, v{va}
        v_mov_b32 v{va+1}, s81
        v_add_co_u32 v{va}, vcc, s80, v{va}
        v_addc_co_u32 v{va+1}, vcc, 0, v{va+1}, vcc
        global_load_dword v{vd}, v[{va}:{va+1}], off
        """)
    if opt.get("ct1", 1): ctouch(f"{name}_pc1", f"{name}_lend", 16, 30)
    if stamp: stamp_begin(o)
    if F: F.stamp(0)
    o(f"""
    v_lshrrev_b32 v1, 6, v0
    v_and_b32 v0, 63, v0
    s_and_b32 s3, s2, 7
    v_readfirstlane_b32 s{sWave}, v1
    s_lshr_b32 s36, s2, 3
    s_and_b32 s37, s3, 1
    s_lshl_b32 s37, s37, 2
    s_and_b32 s38, s36, 3
    s_add_u32 s{sTT}, s37, s38
    s_lshr_b32 s37, s3, 1
    s_mul_i32 s37, s37, 7
    s_lshr_b32 s38, s36, 2
    s_add_u32 s{sFT}, s37, s38
    v_lshlrev_b32 v{vS}, 4, v0
    """)
    mix = opt.get("mix", 0)
    if mix == 1:
        mixv = "v_and_b32 v19, 128, v18\nv_add_u32 v18, v18, v19"
        mixs = f"s_and_b32 s39, s{sFT}, 1\ns_lshl_b32 s39, s39, 7\ns_lshl_b32 s38, s{sFT}, 8\ns_sub_u32 s38, s38, s39"
    elif mix == 7:
        mixv = f"v_and_b32 v19, 128, v18\nv_mul_u32_u24 v19, 13, v19\nv_add_u32 v18, v18, v19"
        mixs = f"s_cmp_ge_u32 s{sFT}, 14\ns_cselect_b32 s39, 14, 0\ns_add_u32 s38, s{sFT}, s39\ns_lshl_b32 s38, s38, 7"
    else:
        mixv = "s_nop 0"; mixs = f"s_lshl_b32 s38, s{sFT}, 8"
    o(f"""
    v_lshrrev_b32 v17, 4, v0
    v_and_b32 v18, 15, v0
    v_lshlrev_b32 v19, 2, v17
    v_xor_b32 v18, v18, v19
    v_lshlrev_b32 v18, 4, v18
    {mixv}
    v_mul_u32_u24 v19, 7168, v17
    v_add_u32 v18, v18, v19
    s_and_b32 s36, s{sWave}, 1
    s_mul_i32 s37, s36, {16*7168}
    {mixs}
    s_add_u32 s37, s37, s38
    v_add_u32 v{vWd[0]}, s37, v18
    v_xor_b32 v18, 32, v{vWd[0]}
    v_add_u32 v{vWd[1]}, {1*(28672-1024)}, v{vWd[0]}
    v_add_u32 v{vWd[2]}, {2*(28672-1024)}, v18
    v_add_u32 v{vWd[3]}, {3*(28672-1024)}, v18
    """)
    o(f"""
    v_lshrrev_b32 v18, 3, v0
    v_lshlrev_b32 v18, 11, v18
    v_and_b32 v19, 7, v0
    v_xor_b32 v19, v19, v17
    v_lshlrev_b32 v19, 4, v19
    v_add_u32 v18, v18, v19
    s_lshl_b32 s37, s{sTT}, 8
    s_lshl_b32 s38, s{sWave}, 6
    s_add_u32 s37, s37, s38
    s_lshl_b32 s37, s37, 11
    v_add_u32 v{vXd[0]}, s37, v18
    v_xor_b32 v18, 64, v{vXd[0]}
    v_add_u32 v{vXd[1]}, {8*2048-1024}, v18
    v_add_u32 v{vXd[2]}, {2*(8*2048-1024)}, v{vXd[0]}
    v_add_u32 v{vXd[3]}, {3*(8*2048-1024)}, v18
    """)
    o(f"""
    v_lshlrev_b32 v18, 11, v17
    v_bfe_u32 v19, v0, 2, 2
    v_lshlrev_b32 v20, 8, v19
    v_add_u32 v18, v18, v20
    v_lshlrev_b32 v19, 1, v19
    v_and_b32 v20, 1, v17
    v_xor_b32 v19, v19, v20
    s_lshl_b32 s37, s36, 2
    v_xor_b32 v19, s37, v19
    v_lshlrev_b32 v19, 5, v19
    v_add_u32 v18, v18, v19
    v_and_b32 v19, 3, v0
    v_lshlrev_b32 v19, 3, v19
    v_add_u32 v{vW[0]}, v18, v19
    """)
    for m in range(1, 4): o(f"v_xor_b32 v{vW[m]}, {32*m}, v{vW[0]}")
    o(f"""
    s_lshr_b32 s37, s{sWave}, 1
    s_lshl_b32 s37, s37, 14
    s_add_u32 s37, s37, {XB}
    v_and_b32 v18, 15, v0
    v_lshlrev_b32 v18, 7, v18
    v_add_u32 v18, s37, v18
    v_bfe_u32 v20, v0, 1, 3
    v_xor_b32 v19, v17, v20
    v_lshlrev_b32 v19, 4, v19
    v_add_u32 v{vX[0]}, v18, v19
    v_xor_b32 v{vX[1]}, 64, v{vX[0]}
    """)
    pst = F and opt.get("pst")
    if pst and opt.get("pmode", 1) < 4: F.stamp(1, True)
    o("s_waitcnt lgkmcnt(0)")
    if pst and opt.get("pmode", 1) < 4: F.stamp(2, True)
    srd(o, sX, 4, 2048 * 2048)
    o(f"""
    s_cmp_lt_u32 s{sWave}, 2
    s_cselect_b32 s40, s40, s42
    s_cselect_b32 s41, s41, s43
    """)
    srd(o, sWs, 40, 1024 * 7168)
    srd(o, sH, 6, WS_H_SIZE)
    o(f"""
    s_add_u32 s{sRot}, s{sTT}, s{sFT}
    s_and_b32 s{sRot}, s{sRot}, {rotm}
    s_mov_b32 s{sTx}, 0
    s_mov_b32 s{sTw}, 0
    s_lshl_b32 s{sXoff}, s{sRot if not rl else sTx}, 7
    s_mul_i32 s{sWoff}, s{sRot if not rl else sTx}, {64*7168}
    s_lshl_b32 s{sWm0}, s{sWave}, 12
    s_lshl_b32 s{sXm0}, s{sWave}, 13
    s_add_u32 s{sXm0}, s{sXm0}, {XB}
    """)
    advW0 = [f"s_add_u32 s{sWoff}, s{sWoff}, {32*7168}"]
    advW1 = [f"s_add_u32 s{sTw}, s{sTw}, 1", f"s_xor_b32 s{sTmp}, s{sTw}, s{sRot}", f"s_mul_i32 s{sWoff}, s{sTmp}, {64*7168}"]
    advX = [f"s_add_u32 s{sTx}, s{sTx}, 1", f"s_xor_b32 s{sTmp}, s{sTx}, s{sRot}", f"s_lshl_b32 s{sXoff}, s{sTmp}, 7"]
    def dmaW(j): return f"buffer_load_dwordx4 v{vWd[j]}, s[{sWs}:{sWs+3}], s{sWoff} offen offset:{1024*j} lds"
    def dmaX(j, half): return f"buffer_load_dwordx4 v{vXd[j]}, s[{sX}:{sX+3}], s{sXoff2 if half else sXoff} offen offset:{1024*j} lds"
    def grpW(slot):
        o(f"s_add_u32 m0, s{sWm0}, {slot*16384}")
        o("s_nop 0")
        for j in range(4): o(dmaW(j))
        for x in (advW1 if slot & 1 else advW0): o(x.replace(f", s{sRot}", ", 0") if rl and slot == 1 else x)
    def grpX(slot, half):
        o(f"s_add_u32 m0, s{sXm0}, {slot*32768 + half*4096}")
        o(f"s_add_u32 s{sXoff2}, s{sXoff}, 65536")
        for j in range(4): o(dmaX(j, half))
        if half:
            for x in advX: o(x.replace(f", s{sRot}", ", 0") if rl and slot == 0 else x)
    ZI = []
    for mb in range(8):
        for nb in range(8):
            k, b = acc(mb, nb)
            for r in range(4):
                ZI.append(f"v_mov_b32 v{b+r}, 0" if k == "v" else f"v_accvgpr_write_b32 a{b+r}, 0")
    pm = opt.get("pmode", 1)
    def zi(n):
        for _ in range(min(n, len(ZI))): o(ZI.pop(0))
    G = [lambda: grpX(0, 0), lambda: grpW(0), lambda: grpX(0, 1), lambda: grpW(1), lambda: grpX(1, 0), lambda: grpW(2), lambda: grpX(1, 1), lambda: grpW(3), lambda: grpX(2, 0)]
    pk = opt.get("pk", 6)
    if pk: ZI = []
    for i, g in enumerate(G[:pk] if pk else G):
        g(); o(("tv", f"g{i}"))
        if pm == 1 and i >= 2: zi(43)
        if pm == 2 and i == 2:
            if pst: F.stamp(3, True)
            zi(256)
            if pst: F.stamp(4, True); o("s_waitcnt vmcnt(8)"); F.stamp(5, True); o("s_waitcnt vmcnt(0)"); F.stamp(6, True)
        if pm == 3 and i == 2: zi(256)
        if pm == 4 and i >= 2: F.stamp(i - 1, True)
        if pm == 5 and i == 2:
            for q, w in enumerate((10, 8, 6, 4, 2, 0)): o(f"s_waitcnt vmcnt({w})"); F.stamp(q + 1, True)
    if pm == 4: o("s_waitcnt vmcnt(24)"); F.stamp(8, True)
    if pm in (4, 5): pst = 0
    npf1 = 0
    if pst and pm != 2: F.stamp(3, True)
    g1pf = F and opt.get("g1pf", 2)
    if g1pf == 1:
        o(f"""
        s_lshl_b32 s36, s2, 2
        s_add_u32 s36, s36, s{sWave}
        s_lshl_b32 s36, s36, 13
        v_lshrrev_b32 v18, 3, v0
        v_lshlrev_b32 v18, 7, v18
        s_add_u32 s84, s92, s36
        s_addc_u32 s85, s93, 0
        s_and_b32 s85, s85, 0xffff
        s_movk_i32 s86, 0x2000
        s_mov_b32 s87, 0x20000
        """)
    tlb = opt.get("tlb", None) if g1pf == 1 else None
    if tlb is not None: o(f"""
        s_lshr_b32 s36, s2, 3
        s_lshl_b32 s36, s36, 2
        s_add_u32 s36, s36, s{sWave}
        s_lshl_b32 s36, s36, 3
        v_lshrrev_b32 v20, 3, v0
        v_add_u32 v20, s36, v20
        v_and_b32 v21, 63, v20
        v_and_b32 v22, 127, v20
        v_min_u32 v22, 111, v22
        v_add_u32 v23, 320, v20
        v_cmp_lt_u32 vcc, 447, v20
        v_cndmask_b32 v20, v20, v23, vcc
        v_lshlrev_b32 v20, 16, v20
        v_lshlrev_b32 v21, 16, v21
        v_lshlrev_b32 v22, 16, v22
        """)
    if g1pf == 1 and opt.get("wdelay"): o(f"v_subrev_u32 v18, {1024*opt['wdelay']}, v18")
    if g1pf == 3:
        lead = opt.get("lead", 8); wd0 = opt.get("wd0", 7)
        o(f"""
        s_lshr_b32 s36, s2, 5
        s_lshl_b32 s36, s36, 3
        s_add_u32 s36, s36, s{sTT}
        s_lshl_b32 s36, s36, 1
        s_and_b32 s37, s{sWave}, 1
        s_add_u32 s36, s36, s37
        s_lshl_b32 s36, s36, 3
        v_and_b32 v28, 7, v0
        v_add_u32 v29, s36, v28
        v_mul_u32_u24 v30, 4682, v29
        v_lshrrev_b32 v30, 16, v30
        v_lshlrev_b32 v29, 7, v29
        v_mul_u32_u24 v30, {7168 - 1792}, v30
        v_add_u32 v29, v29, v30
        s_bfe_u32 s37, s2, 0x20001
        s_mul_i32 s37, s37, 1792
        s_add_u32 s36, s37, {lead*64*7168}
        s_add_u32 s36, s40, s36
        s_addc_u32 s37, s41, 0
        v_mov_b32 v19, s37
        v_add_co_u32 v18, vcc, s36, v29
        v_addc_co_u32 v19, vcc, 0, v19, vcc
        s_and_b32 s36, s{sFT}, 15
        s_lshl_b32 s36, s36, 2
        s_add_u32 s36, s36, s{sWave}
        s_lshl_b32 s36, s36, 13
        s_lshl_b32 s37, s{sTT}, 19
        s_add_u32 s36, s36, s37
        s_add_u32 s36, s36, {lead*128}
        s_add_u32 s36, s4, s36
        s_addc_u32 s37, s5, 0
        v_and_b32 v29, 3, v0
        v_lshlrev_b32 v29, 11, v29
        v_mov_b32 v21, s37
        v_add_co_u32 v20, vcc, s36, v29
        v_addc_co_u32 v21, vcc, 0, v21, vcc
        s_lshl_b32 s36, s2, 2
        s_add_u32 s36, s36, s{sWave}
        s_lshl_b32 s36, s36, 13
        s_add_u32 s36, s92, s36
        s_addc_u32 s37, s93, 0
        v_lshlrev_b32 v29, 7, v28
        v_mov_b32 v23, s37
        v_add_co_u32 v22, vcc, s36, v29
        v_addc_co_u32 v23, vcc, 0, v23, vcc
        v_bfe_u32 v28, v0, 3, 2
        v_mov_b32 v24, {64*7168}
        v_mov_b32 v25, 0
        v_mov_b32 v26, 128
        v_mov_b32 v27, 1024
        v_cmp_eq_u32 vcc, 1, v28
        v_cndmask_b32 v18, v18, v20, vcc
        v_cndmask_b32 v19, v19, v21, vcc
        v_cndmask_b32 v24, v24, v26, vcc
        v_cmp_lt_u32 vcc, 1, v28
        v_cndmask_b32 v18, v18, v22, vcc
        v_cndmask_b32 v19, v19, v23, vcc
        v_cndmask_b32 v24, v24, v25, vcc
        v_cndmask_b32 v25, v25, v27, vcc
        v_mov_b32 v26, 0
        """)
        t0 = opt.get("l2t", None)
        if t0 is not None: o(f"""
        s_lshr_b32 s36, s2, 3
        s_lshl_b32 s36, s36, 2
        s_add_u32 s36, s36, s{sWave}
        s_lshl_b32 s36, s36, 2
        v_add_u32 v28, s36, v28
        v_sub_u32 v29, 1791, v28
        s_bitcmp1_b32 s2, 1
        s_cselect_b64 vcc, -1, 0
        s_cselect_b32 s38, {(-448*2048) & 0xffffffff}, {448*2048} if False else 0
        s_cselect_b32 s36, 1024, 0
        v_cndmask_b32 v28, v28, v29, vcc
        s_bfe_u32 s37, s2, 0x10002
        s_mul_i32 s37, s37, {1792*2048}
        s_add_u32 s36, s36, s37
        s_add_u32 s36, s92, s36
        s_addc_u32 s37, s93, 0
        v_and_b32 v29, 7, v0
        v_lshlrev_b32 v29, 7, v29
        v_lshl_add_u32 v29, v28, 11, v29
        v_mov_b32 v23, s37
        v_add_co_u32 v22, vcc, s36, v29
        v_addc_co_u32 v23, vcc, 0, v23, vcc
        v_mov_b32 v27, s38
        v_cmp_lt_u32 vcc, 31, v0
        v_cndmask_b32 v18, v18, v22, vcc
        v_cndmask_b32 v19, v19, v23, vcc
        v_cndmask_b32 v24, v24, v26, vcc
        v_cndmask_b32 v25, v25, v26, vcc
        v_cndmask_b32 v26, v26, v27, vcc
        """.replace(f"s_cselect_b32 s38, {(-448*2048) & 0xffffffff}, {448*2048} if False else 0", f"s_cselect_b32 s38, -1, 1\ns_mul_i32 s38, s38, {448*2048}"))
    TQ = dict(zip(opt.get("tord", "1x2d"), (18, 20, 22, 24)))
    ROT = [f"v_mov_b32 v{r}, v{r+2}" for r in range(18, 26)]
    TL = "global_load_dword v16, v[18:19], off"
    if g1pf == 2:
        r0 = opt.get("tr0", 128); nr = (1024 - r0) // 2
        o(f"""
        s_lshr_b32 s36, s2, 5
        s_lshl_b32 s36, s36, 3
        s_add_u32 s36, s36, s{sTT}
        s_lshl_b32 s36, s36, 1
        s_and_b32 s37, s{sWave}, 1
        s_add_u32 s36, s36, s37
        s_mul_i32 s36, s36, {4*7168}
        s_bfe_u32 s37, s2, 0x20001
        s_mul_i32 s37, s37, 1792
        s_add_u32 s36, s36, s37
        s_add_u32 s36, s36, {r0*7168}
        s_add_u32 s36, s40, s36
        s_addc_u32 s37, s41, 0
        v_and_b32 v28, 15, v0
        v_min_u32 v29, 13, v28
        v_lshlrev_b32 v29, 7, v29
        v_mul_u32_u24 v30, 7168, v17
        v_add_u32 v29, v29, v30
        v_mov_b32 v{TQ['1']+1}, s37
        v_add_co_u32 v{TQ['1']}, vcc, s36, v29
        v_addc_co_u32 v{TQ['1']+1}, vcc, 0, v{TQ['1']+1}, vcc
        v_add_co_u32 v{TQ['2']}, vcc, {nr*7168}, v{TQ['1']}
        v_addc_co_u32 v{TQ['2']+1}, vcc, 0, v{TQ['1']+1}, vcc
        s_and_b32 s36, s{sFT}, 15
        s_lshl_b32 s36, s36, 2
        s_add_u32 s36, s36, s{sWave}
        s_lshl_b32 s36, s36, 13
        s_lshl_b32 s37, s{sTT}, 19
        s_add_u32 s36, s36, s37
        s_add_u32 s36, s4, s36
        s_addc_u32 s37, s5, 0
        v_max_u32 v29, 3, v28
        v_lshlrev_b32 v29, 7, v29
        v_lshl_add_u32 v29, v17, 11, v29
        v_mov_b32 v{TQ['x']+1}, s37
        v_add_co_u32 v{TQ['x']}, vcc, s36, v29
        v_addc_co_u32 v{TQ['x']+1}, vcc, 0, v{TQ['x']+1}, vcc
        s_lshl_b32 s36, s2, 2
        s_add_u32 s36, s36, s{sWave}
        s_lshl_b32 s36, s36, 13
        s_add_u32 s36, s92, s36
        s_addc_u32 s37, s93, 0
        v_lshlrev_b32 v29, 7, v0
        v_mov_b32 v{TQ['d']+1}, s37
        v_add_co_u32 v{TQ['d']}, vcc, s36, v29
        v_addc_co_u32 v{TQ['d']+1}, vcc, 0, v{TQ['d']+1}, vcc
        v_mov_b32 v26, s36
        v_mov_b32 v27, s37
        """)
        if opt.get("tpro", 1):
            o(TL); npf1 = 1; opt.setdefault("vm", 17)
            for x in ROT: o(x)
    zi(256)
    def reads(set_, sl, ks2):
        Aa = []
        for mb in range(8):
            for r2 in range(2):
                Aa.append(f"ds_read_b64_tr_b16 {rng(fk, fa(set_, mb)+2*r2, 2)}, v{vW[mb&3]} offset:{sl*16384 + (mb>>2)*8192 + r2*1024}")
        Bb = [f"ds_read_b128 {rng(fk, fb(set_, nb), 4)}, v{vX[ks2]} offset:{nb*2048}" for nb in range(8)]
        L = []
        for i in range(8): L += Aa[2*i:2*i+2] + [Bb[i]]
        return L
    o(f"""
    s_mov_b32 s{sCnt}, 0
    s_add_u32 s{sXs}, s{sXm0}, {2*32768}
    s_add_u32 s{sXe}, s{sXm0}, {3*32768}
    s_mov_b32 s{sNeg}, {(-65536) & 0xffffffff}
    s_mov_b32 s{sPos}, 32768
    s_mov_b32 s{sRs}, 0
    """)
    if pst and pm != 2: F.stamp(4, True); o("s_waitcnt vmcnt(32)"); F.stamp(5, True)
    o(("wv", "g2") if pk else f"s_waitcnt vmcnt({24 + npf1})")
    if pst and pm != 2: F.stamp(6, True)
    o("s_barrier")
    if pst: F.stamp(7, True)
    if stamp: stamp_mid1(o)
    if F: F.stamp(1)
    for r in reads(0, 0, 0): o(r)
    order = []
    if opt.setdefault("order", "nb") == "snake":
        for mb in range(8):
            for nb in (range(8) if mb % 2 == 0 else range(7, -1, -1)): order.append((mb, nb))
    elif opt["order"] == "mb":
        order = [(mb, nb) for mb in range(8) for nb in range(8)]
    elif opt["order"] == "nb":
        order = [(mb, nb) for nb in range(8) for mb in range(8)]
    elif opt["order"] == "diag":
        order = [((i + j) % 8, j) for i in range(8) for j in range(8)]
    def substep(set_, fill, vm=None):
        o("s_waitcnt lgkmcnt(0)")
        for i, (mb, nb) in enumerate(order):
            o(f"v_mfma_f32_16x16x32_bf16 {accs(mb,nb)}, {rng(fk,fa(set_,mb),4)}, {rng(fk,fb(set_,nb),4)}, {accs(mb,nb)}")
            if i == 1:
                if vm != -1: o("s_waitcnt vmcnt(%d)" % (opt.get("vm", 16) if vm is None else vm))
                o("s_barrier")
            for ins in fill.get(i, []): o(ins)
    nodma = opt.get("nodma", False); nord = opt.get("noread", False)
    def mkfill(rd, dW, dX):
        f = {}
        def add(i, x): f.setdefault(i, []).append(x)
        for k, x in enumerate(rd):
            if not nord: add(4 + 2 * k, x)
        add(3, dW[0])
        for k, x in enumerate(dW[1:]):
            if not nodma and not opt.get("noW"): add(5 + 8 * k, x)
        add(33, dX[0])
        for k, x in enumerate(dX[1:]):
            if not nodma and not opt.get("noX"): add(35 + 8 * k, x)
        return f
    def dmW(slotoff): return [f"s_add_u32 m0, s{sWm0}, {slotoff}"] + [dmaW(j) for j in range(4)]
    def dmX(half): return [f"s_add_u32 m0, s{sXs}, {half*4096}"] + [dmaX(j, half) for j in range(4)]
    def ext(f, i, L): f.setdefault(i, []).extend(L)
    FA = f = mkfill(reads(1, 1, 1), dmW(0), dmX(1))
    ext(f, 31, [f"s_add_u32 s{sXoff2}, s{sXoff}, 65536", f"s_add_u32 s{sWoff}, s{sWoff}, {32*7168}"])
    ext(f, 60, advX[0:2]);
    ext(f, 52, [f"s_add_u32 s{sXs}, s{sXs}, 32768"])
    ext(f, 61, advX[2:] + [f"s_cmp_eq_u32 s{sXs}, s{sXe}", f"s_cselect_b32 s{sXs}, s{sXm0}, s{sXs}"])
    ext(f, 53, [f"s_add_u32 s{sRs}, s{sRs}, 1", f"s_cmp_eq_u32 s{sRs}, 3"])
    ext(f, 54, [f"s_cselect_b32 s{sXd}, s{sNeg}, s{sPos}", f"s_cselect_b32 s{sRs}, 0, s{sRs}"])
    for m in range(4): ext(f, 55 + m, [f"v_xor_b32 v{vW[m]}, 0x8000, v{vW[m]}"])
    ext(f, 62, [f"v_add_u32 v{vX[0]}, s{sXd}, v{vX[0]}", f"s_cmp_ge_u32 s{sCnt}, 13"])
    ext(f, 63, [f"v_add_u32 v{vX[1]}, s{sXd}, v{vX[1]}", f"s_cselect_b32 s{sX+2}, 0, s{sX+2}"])
    FB = f = mkfill(reads(0, 0, 0), dmW(16384), dmX(0))
    ext(f, 31, advW1[0:2]); ext(f, 37, advW1[2:] + [f"s_xor_b32 s{sWm0}, s{sWm0}, 0x8000"])
    if g1pf == 2:
        ext(f, 55, [TL])
        for i, x in enumerate(ROT): ext(f, 40 + 2 * i if False else 56 + i // 2, [x])
    if g1pf == 3:
        ext(f, 55, [TL])
        ext(f, 39, [f"s_cmp_lt_u32 s{sCnt}, {15 - lead}", "s_cselect_b32 s84, -1, 0"])
        ext(f, 41, [f"s_sub_u32 s85, s{sCnt}, {wd0}", "s_cmp_lt_u32 s85, 7", "s_cselect_b32 s85, -1, 0"])
        ext(f, 45, ["v_and_b32 v20, s84, v24"]); ext(f, 47, ["v_and_or_b32 v20, s85, v25, v20"])
        ext(f, 49, [f"s_sub_u32 s86, s{sCnt}, {t0 or 0}", "s_cmp_lt_u32 s86, 3", "s_cselect_b32 s86, -1, 0"])
        ext(f, 53, ["v_and_or_b32 v20, s86, v26, v20"]); ext(f, 54, ["v_ashrrev_i32 v21, 31, v20"])
        ext(f, 57, ["v_add_co_u32 v18, vcc, v18, v20"]); ext(f, 58, ["v_addc_co_u32 v19, vcc, v21, v19, vcc"])
    if tlb is not None:
        TT = {"w": "global_load_dword v16, v20, s[6:7]", "o": "global_load_dword v16, v21, s[96:97]", "d": "global_load_dword v16, v22, s[92:93]"}
        ext(f, 47, ["\n".join([f"s_cmp_lg_u32 s{sCnt}, {tlb}", f"s_cbranch_scc1 {name}_ntlb"] + [TT[c] for c in opt.get("tlbs", "wod")] + [f"{name}_ntlb:"])])
    if g1pf == 1: ext(f, 55, ["buffer_load_dword v16, v18, s[84:87], 0 offen"]); ext(f, 57, ["v_add_u32 v18, 1024, v18"])
    ext(f, 62, [f"s_add_u32 s{sCnt}, s{sCnt}, 1", f"s_cmp_lt_u32 s{sCnt}, {15 if F else 16}"])
    ext(f, 63, [f"s_cbranch_scc1 {name}_loop"])
    if pk:
        def first(set_, F_, bar, tag, remap, extra, c0):
            g = {}; k = 0
            for i in sorted(F_):
                for x in F_[i]:
                    if x.startswith("s_cbranch") or "_ntlb" in x: continue
                    if x.startswith("ds_read"): p = bar + 2 + int(1.8 * k); k += 1
                    else: p = remap.get(i, i)
                    g.setdefault(p, []).append(x)
            o("s_waitcnt lgkmcnt(0)")
            for i, (mb, nb) in enumerate(order):
                o(f"v_mfma_f32_16x16x32_bf16 {accs(mb,nb)}, {rng(fk,fa(set_,mb),4)}, {rng(fk,fb(set_,nb),4)}, {0 if c0 else accs(mb,nb)}")
                if i == bar: o(("wv", tag)); o("s_barrier")
                for x in extra.get(i, []) + g.get(i, []): o(x)
        ex = {}; p = 1; o_ = o
        for i in range(pk, 9):
            o = A(); G[i](); L = [x.strip() for x in o.l]; o = o_
            for x in L:
                ex.setdefault(p, []).append(x)
                if x.startswith("buffer"): p += 2
            ex.setdefault(p, []).append(("tv", f"g{i}"))
        assert p < 27
        first(0, FA, opt.get("bA", 8), "g3", {3: 27, 5: 28, 13: 30, 21: 32, 29: 34, 31: 36, 33: 37, 35: 38, 43: 44, 51: 50}, ex, True)
        bB = opt.get("bB", 6)
        first(1, FB, bB, "g6", {5: bB + 1}, {}, False)
    o(".p2align 3")
    o.label(f"{name}_loop")
    substep(0, FA, opt.get("vmA"))
    substep(1, FB)
    o.label(f"{name}_lend")
    stm = opt.get("hst", "sc1") if F else ""
    F.G = F.pf()
    EP = []
    T = 2
    n = 0
    for nb in range(8):
        for pr in range(2):
            st = 24 + 4 * (n & 1); n += 1
            gk, gb = acc(2 * pr, nb); uk, ub = acc(4 + 2 * pr, nb)
            E = []
            if gk == "a":
                gt = 32 if accA else 32
                for r in range(8): E.append(f"v_accvgpr_read_b32 v{gt+r}, a{gb+r}")
                gb = gt
            if uk == "a":
                for r in range(8): E.append(f"v_accvgpr_read_b32 v{10+r}, a{ub+r}")
                ub = 10
            for p in range(4): E.append(f"v_pk_mul_f32 {v(T+2*p,2)}, {v(gb+2*p,2)}, s[38:39]")
            for r in range(8): E.append(f"v_exp_f32 v{T+r}, v{T+r}")
            for p in range(4): E.append(f"v_pk_mul_f32 {v(gb+2*p,2)}, {v(gb+2*p,2)}, {v(ub+2*p,2)}")
            for p in range(4): E.append(f"v_pk_add_f32 {v(T+2*p,2)}, {v(T+2*p,2)}, 1.0 op_sel_hi:[1,0]")
            for r in range(8): E.append(f"v_rcp_f32 v{T+r}, v{T+r}")
            E.append("s_nop 0")
            for p in range(4): E.append(f"v_pk_mul_f32 {v(gb+2*p,2)}, {v(gb+2*p,2)}, {v(T+2*p,2)}")
            for p in range(4): E.append(f"v_cvt_pk_bf16_f32 v{st+p}, v{gb+2*p}, v{gb+2*p+1}")
            E.append(f"buffer_store_dwordx4 {v(st,4)}, v{vS}, s[{sH}:{sH+3}], s36 offen offset:{pr*1024} {stm}")
            if F: E = F.epi_merge(n - 1, E)
            EP += E
        EP.append(f"s_add_u32 s36, s36, {112*1024}")
    def mid():
        if stamp: stamp_mid2(o)
        if pst: F.stamp(8, True)
        if F: F.stamp(2); F.g1_exit(sTT, sFT)
        o(f"""
    s_lshr_b32 s36, s{sWave}, 1
    s_lshl_b32 s36, s36, 3
    s_lshl_b32 s37, s{sTT}, 4
    s_add_u32 s36, s36, s37
    s_mul_i32 s36, s36, 112
    s_and_b32 s37, s{sWave}, 1
    s_mul_i32 s37, s37, {4 * mix if mix else 2}
    s_add_u32 s36, s36, s37
    {mixs}
    s_lshr_b32 s37, s38, 6
    s_add_u32 s36, s36, s37
    s_lshl_b32 s36, s36, 10
    s_mov_b32 s38, 0xbfb8aa3b
    s_mov_b32 s39, 0xbfb8aa3b
    s_nop 7
        """)
    ov = opt.get("ov", 3)
    if not ov:
        f = F.peel(0)
        for k, x in enumerate(reads(1, 1, 1)): f.setdefault(4 + 2 * k, []).insert(0, x)
        substep(0, f, 0)
        substep(1, F.peel(1), -1)
        mid()
    else:
        f = F.peel(0)
        for k, x in enumerate(reads(1, 1, 1)): f.setdefault(3 + k, []).insert(0, x)
        for p, L in F.peel(1).items(): f.setdefault(64 + p, []).extend(L)
        seq = [(0, 0), (0, 1), (0, 2), (0, 3), (1, 0), (1, 1), (0, 4), (1, 2), (0, 5), (1, 3), (0, 6), (0, 7), (1, 4), (1, 5), (1, 6), (1, 7)]
        o("s_waitcnt lgkmcnt(0)")
        e0 = opt.get("e0", 44); cr = 0.0
        for i in range(128):
            set_, nb = seq[i >> 3]; mb = i & 7
            if i == 32: o("s_waitcnt lgkmcnt(0)")
            o(f"v_mfma_f32_16x16x32_bf16 {accs(mb,nb)}, {rng(fk,fa(set_,mb),4)}, {rng(fk,fb(set_,nb),4)}, {accs(mb,nb)}")
            if i == 1: o("s_waitcnt vmcnt(0)")
            if i in (1, 33): o("s_barrier")
            for ins in f.get(i, []): o(ins)
            if i == 36: mid()
            if i >= e0:
                cr += ov
                while cr >= 1:
                    x = EP.pop(0)
                    if not any(isinstance(x, str) and x.startswith(p) for p in opt.get('ovdrop', [])): o(x)
                    if not isinstance(x, tuple): cr -= 1
        F.stamp(2)
    for x in EP: o(x)
    if F:
        F.phase2()
    if stamp: stamp_end(o, sWave, 6)
    o.label(f"{name}_end")
    o("s_endpgm")
    if F: F.late()
    o.label(f"{name}_aux")
    o(f"s_cmp_ge_u32 s2, 256\ns_cbranch_scc1 {name}_end2\ns_sub_u32 s3, s2, 224")
    from aux import aux_body
    if opt.get("ct2", 1): ctouch(f"{name}_pc2", f"{name}_end2", 57, 250)
    if stamp: stamp_begin(o)
    if F: F.stamp(0)
    aux_body(o, name, 3, opt, stmod='sc1' if F else '', F=F)
    if F: F.aux_exit()
    if stamp:
        stamp_end(o, 24, 6)
    o.label(f"{name}_end2")
    o("s_endpgm")
    if F: kernel_desc(o, name, 512, 256)
    elif accA: kernel_desc(o, name, 160 + 256, 160)
    else: kernel_desc(o, name, 256 + 160, 256)
    return f"; @launch kernel={name} grid=(256,1,1) block=(256,1,1) lds=163840"
```

```python
from asmlib import *
from ssm import WS_UT
LOG2E = 0x3fb8aa3b
INV2PI = 0x3e22f983
RS = 512
BLK = 16 * RS
TOFF = 60 * RS + 16
XOFF = 4 * BLK
AWSTR = XOFF + 4096
GOFF = 4 * AWSTR

class Em:
    def __init__(self, o): self.o = o; self.n = 0; self.tags = {}
    def __call__(self, ins):
        if isinstance(ins, tuple):
            k = ins[0]
            if k == "tag": self.tags[ins[1]] = self.n
            elif k == "wait":
                c = self.n - self.tags[ins[1]]
                self.o(f"s_waitcnt lgkmcnt({min(c, 14)})")
            return
        self.o(ins)
        if ins.startswith("ds_"): self.n += 1

def merge(A_, B_, start=0, step=None):
    if not A_: return list(B_)
    out = []; nb = len(B_); na = len(A_) - start
    done = 0
    for i, x in enumerate(A_):
        out.append(x)
        if i >= start:
            want = min(nb, ((i - start + 1) * nb + na - 1) // na if step is None else int((i - start + 1) * step))
            while done < want: out.append(B_[done]); done += 1
    out += B_[done:]
    return out

def gather_setup(sB, GAd, SL, t1, t2, sC):
    vG01, vG2, vG3h, vG3l = GAd
    L = f"""v_sub_u32 v{t1}, 575, v0
    v_lshrrev_b32 v{t1}, 1, v{t1}
    v_lshl_add_u32 v{vG01}, v{t1}, 2, s{sB}
    v_lshlrev_b32 v{t1}, 2, v0
    v_sub_u32 v{t1}, 1020, v{t1}
    v_add_u32 v{vG2}, s{sB}, v{t1}
    v_cmp_gt_u32 vcc, 32, v0
    v_lshlrev_b32 v{t1}, 3, v0
    v_lshlrev_b32 v{t2}, 4, v0
    v_sub_u32 v{t1}, 764, v{t1}
    v_sub_u32 v{t2}, 1016, v{t2}
    v_cndmask_b32 v{t1}, v{t2}, v{t1}, vcc
    v_add_u32 v{vG3h}, s{sB}, v{t1}
    v_cndmask_b32 v{t2}, 12, 8, vcc
    v_sub_u32 v{vG3l}, v{vG3h}, v{t2}
    v_cndmask_b32 v{t1}, 0, -1, vcc
    v_cmp_gt_u32 vcc, 31, v0
    v_bfe_i32 v{t2}, v0, 0, 1""".split("\n")
    L = [x.strip() for x in L]
    def csel(d, m, tv, fv): return [f"v_and_b32 v{d}, {tv ^ fv}, v{m}", f"v_xor_b32 v{d}, {fv}, v{d}"]
    for k, tv in enumerate([0x01000302, 0x01000100]): L += csel(SL + 4 + k, t1, tv, 0x03020504)
    for k, tv in enumerate([0x03020504, 0x01000100, 0x05040504]): L += csel(SL + 7 + k, t1, tv, 0x05040706)
    L += [f"v_cndmask_b32 v{t1}, 0, -1, vcc"]
    L += csel(SL + 0, t2, 0x03020302, 0x05040504) + csel(SL + 1, t2, 0x01000100, 0x03020302)
    L += csel(SL + 2, t2, 0x01000100, 0x03020504) + csel(SL + 3, t2, 0x01000302, 0x05040504)
    L += csel(SL + 6, t1, 0x05040504, 0x03020504)
    for r, c in zip(sC, [0x03020504, 0x03020302, 0x01000100, 0x05040504, 0x01000302]): L.append(f"s_mov_b32 s{r}, {c}")
    return L

def aux_body(o, name, sJ, opt=None, stmod="", F=None):
    opt = opt or {}
    ct = opt.get("ct", 0); nks = 2 if ct else 8
    sWave, sBase, sCh, sKo, sKo2, sXo, sUo, sGWo = 24, 26, 27, 28, 29, 30, 31, 32
    sX, sK, sU, sGW, sG = 8, 12, 16, 20, 84
    o(f"""
    s_load_dwordx8 s[40:47], s[0:1], {KA['A_re']}
    s_load_dwordx8 s[48:55], s[0:1], {KA['C_re']}
    s_load_dwordx2 s[4:5], s[0:1], {KA['u']}
    s_load_dwordx4 s[88:91], s[0:1], {KA['wd']}
    s_load_dwordx2 s[6:7], s[0:1], {KA['ws']}
    v_lshrrev_b32 v1, 6, v0
    v_and_b32 v0, 63, v0
    s_lshl_b32 s25, s{sJ}, 2
    v_readfirstlane_b32 s{sWave}, v1
    v_lshlrev_b32 v10, 2, v0
    v_lshlrev_b32 v12, 4, v0
    s_add_u32 s25, s25, s{sWave}
    s_mul_i32 s{sKo2}, s25, -6
    s_add_u32 s{sKo2}, s{sKo2}, 890
    s_add_u32 s38, s25, 896
    s_lshl_b32 s38, s38, 1
    s_mul_i32 s25, s25, 7
    s_mul_i32 s{sBase}, s{sWave}, {AWSTR}
    s_lshl_b32 s36, s25, 8
    s_lshl_b32 s37, s25, 1
    s_lshl_b32 s{sKo}, s25, 11
    s_lshl_b32 s{sKo2}, s{sKo2}, 8
    v_add_u32 v10, s36, v10
    v_and_b32 v11, 7, v0
    v_lshl_add_u32 v11, v11, 1, s37
    v_writelane_b32 v11, s38, 7
    s_mov_b32 s{sCh}, 0
    s_mov_b32 s56, {LOG2E}
    s_mov_b32 s57, {INV2PI}
    """)
    vStW, vStR, vT0, vT1a, vT1b, vT2, vL0, vDs = 13, 14, 15, 16, 17, 18, 19, 1
    vXd, vXtr, vXg, vUst, vGWa, vPf = 20, 21, 22, 23, 24, 25
    g, j_, t1, t2 = 26, 27, 28, 29
    SW = 30
    vStR2, vG01, vG2, vG3h, vG3l = 38, 39, 40, 41, 42
    RD = [vStR, vStR2, 43, 59]
    SL = 44
    vDt, vDtL, vDtP = 54, 55, 56
    GWR = 60; XR = 72; XU = 88
    KA_ = 92
    GB = 104
    OB = 116
    PK = [136, 140, 144, 148]
    PFD = 57
    POOL = list(range(152, 256, 4))
    aFR = 0; aG = 128; aTR = 144
    sDt, sDtL, sDtP, sDs = 58, 59, 82, 83
    sSel = [33 + 0]
    ldp = [f"global_load_dword v{2+k}, v10, s[{40+2*k}:{41+2*k}]" for k in range(6)]
    o(f"""
    v_lshrrev_b32 v{t1}, 2, v0
    v_lshlrev_b32 v{vXd}, 11, v{t1}
    v_and_b32 v{t2}, 3, v0
    v_lshl_add_u32 v{vXd}, v{t2}, 4, v{vXd}
    s_lshl_b32 s{sXo}, s{sJ}, 17
    s_lshl_b32 s36, s{sWave}, 9
    s_add_u32 s{sXo}, s{sXo}, s36
    s_mov_b32 s{sGWo}, s36
    v_lshrrev_b32 v{g}, 4, v0
    v_and_b32 v{j_}, 15, v0
    v_lshlrev_b32 v{vGWa}, 4, v{g}
    s_waitcnt lgkmcnt(0)
    """)
    o("global_load_ushort v8, v11, s[52:53]\nglobal_load_ushort v9, v11, s[54:55]")
    for x in ldp: o(x)
    srd(o, sX, 4, 2048 * 2048)
    srd(o, sGW, 90, 2048)
    def slice_ld():
        L = [f"s_add_u32 m0, s{sBase}, {XOFF}", f"s_add_u32 s33, s{sXo}, {16*2048 - 1024}"]
        L.append(f"buffer_load_dwordx4 v{vXd}, s[{sX}:{sX+3}], s{sXo} offen lds")
        L.append(f"s_add_u32 s34, s{sXo}, {32*2048 - 2048}")
        L.append(f"buffer_load_dwordx4 v{vXd}, s[{sX}:{sX+3}], s33 offen offset:1024 lds")
        L.append(f"s_add_u32 s33, s{sXo}, {48*2048 - 3072}")
        L.append(f"buffer_load_dwordx4 v{vXd}, s[{sX}:{sX+3}], s34 offen offset:2048 lds")
        L.append(f"s_add_u32 s{sXo}, s{sXo}, 64")
        L.append(f"buffer_load_dwordx4 v{vXd}, s[{sX}:{sX+3}], s33 offen offset:3072 lds")
        L.append(f"buffer_load_dwordx4 {v(GWR,4)}, v{vGWa}, s[{sGW}:{sGW+3}], s{sGWo} offen")
        L.append(f"s_add_u32 s{sGWo}, s{sGWo}, 64")
        return L
    for x in slice_ld(): o(x)
    o(f"s_add_u32 s4, s6, {WS_K}\ns_addc_u32 s5, s7, 0"); srd(o, sK, 4, 1024 * 8192)
    o(f"s_add_u32 s4, s6, {WS_UT}\ns_addc_u32 s5, s7, 0"); srd(o, sU, 4, 1024 * 4096)
    o(f"s_add_u32 s4, s6, {WS_G}\ns_addc_u32 s5, s7, 0"); srd(o, sG, 4, 2048 * 4)
    o(f"""
    s_add_u32 s4, s6, {WS_FLAG}
    s_addc_u32 s5, s7, 0
    s_lshl_b32 s36, s{sJ}, 2
    s_add_u32 s36, s36, s{sWave}
    s_lshl_b32 s37, s36, 10
    v_add_u32 v{t1}, s37, v12
    v_mov_b32 v{XU}, 0
    v_mov_b32 v{XU+1}, 0
    v_mov_b32 v{XU+2}, 0
    v_mov_b32 v{XU+3}, 0
    global_store_dwordx4 v{t1}, {v(XU,4)}, s[4:5] {stmod}
    s_mul_i32 s37, s36, {56*1024}
    v_lshlrev_b32 v{vPf}, 7, v0
    s_add_u32 s88, s88, s37
    s_addc_u32 s89, s89, 0
    s_and_b32 s89, s89, 0xffff
    s_mov_b32 s90, {56*1024}
    s_mov_b32 s91, 0x20000
    s_movk_i32 s95, 0x2000
    """)
    o(f"""
    v_lshlrev_b32 v{t1}, 3, v0
    v_add_u32 v{vStW}, s{sBase}, v{t1}
    v_and_b32 v{t2}, 7, v{j_}
    v_lshlrev_b32 v{t2}, 1, v{t2}
    v_xor_b32 v{t2}, v{t2}, v{g}
    v_lshlrev_b32 v{t1}, 9, v{j_}
    v_lshl_add_u32 v{t1}, v{t2}, 4, v{t1}
    v_add_u32 v{vStR}, s{sBase}, v{t1}
    v_xor_b32 v{RD[1]}, 64, v{vStR}
    v_xor_b32 v{RD[2]}, 128, v{vStR}
    v_xor_b32 v{RD[3]}, 192, v{vStR}
    s_add_u32 s39, s{sBase}, {TOFF}
    v_lshrrev_b32 v{t1}, 1, v{g}
    v_lshlrev_b32 v{t1}, 8, v{t1}
    v_and_b32 v{t2}, 1, v{g}
    v_lshl_add_u32 v{t1}, v{t2}, 3, v{t1}
    v_lshl_add_u32 v{t1}, v{j_}, 4, v{t1}
    v_add_u32 v{vT0}, s39, v{t1}
    v_lshlrev_b32 v{t1}, 7, v{g}
    v_add_u32 v{t1}, s39, v{t1}
    v_cmp_gt_u32 vcc, 2, v{g}
    v_lshlrev_b32 v{t2}, 2, v{j_}
    v_lshlrev_b32 v{vT1b}, 3, v{j_}
    v_cndmask_b32 v{t2}, v{t2}, v{vT1b}, vcc
    v_add_u32 v{vT1a}, v{t1}, v{t2}
    v_add_u32 v{vT1a}, 512, v{vT1a}
    v_cndmask_b32 v{t2}, 64, 4, vcc
    v_add_u32 v{vT1b}, v{vT1a}, v{t2}
    v_and_b32 v{t2}, 1, v{g}
    v_lshlrev_b32 v{t2}, 8, v{t2}
    v_lshl_add_u32 v{vT2}, v{j_}, 1, v{t2}
    v_lshrrev_b32 v{t2}, 1, v{g}
    v_lshl_add_u32 v{vT2}, v{t2}, 5, v{vT2}
    v_add_u32 v{vT2}, s39, v{vT2}
    v_add_u32 v{vT2}, 1024, v{vT2}
    v_cmp_eq_u32 vcc, 0, v0
    v_mov_b32 v{t1}, s{sBase}
    v_mov_b32 v{t2}, 0
    v_cndmask_b32 v{vL0}, 0, -1, vcc
    ds_write_b32 v{t1}, v{t2} offset:{TOFF-4}
    v_mov_b32 v{PK[0]}, 0x3f80
    v_mov_b32 v{PK[0]+1}, 0x3f80
    ds_write_b64 v{vStW}, {v(PK[0],2)} offset:{BLK}
    """)
    o(f"""
    s_add_u32 s36, s{sBase}, {XOFF}
    v_bfe_u32 v{t1}, v0, 2, 2
    v_lshl_add_u32 v{t1}, v{g}, 3, v{t1}
    v_lshlrev_b32 v{t1}, 6, v{t1}
    v_and_b32 v{t2}, 1, v0
    v_lshl_add_u32 v{t1}, v{t2}, 3, v{t1}
    v_bfe_u32 v{t2}, v0, 1, 1
    v_lshl_add_u32 v{t1}, v{t2}, 11, v{t1}
    v_add_u32 v{vXtr}, s36, v{t1}
    v_lshl_add_u32 v{t1}, v{j_}, 6, v{vGWa}
    v_add_u32 v{vXg}, s36, v{t1}
    v_and_b32 v{t1}, 7, v0
    v_lshl_add_u32 v{vUst}, v{t1}, 12, v{vGWa}
    v_bfe_u32 v{t1}, v0, 3, 1
    v_lshl_add_u32 v{vUst}, v{t1}, 6, v{vUst}
    s_lshl_b32 s{sUo}, s{sWave}, 20
    s_lshl_b32 s36, s{sJ}, 7
    s_add_u32 s{sUo}, s{sUo}, s36
    """)
    if opt.get("pf", 0) == 3:
        o(f"""
        s_getpc_b64 s[88:89]
        {name}_pc:
        s_sub_u32 s88, s88, {name}_pc-{name}_loop
        s_subb_u32 s89, s89, 0
        s_lshr_b32 s36, s{sJ}, 3
        s_lshl_b32 s36, s36, 2
        s_add_u32 s36, s36, s{sWave}
        s_lshl_b32 s36, s36, 12
        v_lshl_add_u32 v{t1}, v0, 6, s36
        v_min_u32 v{t1}, {name}_aux-{name}_loop, v{t1}
        v_mov_b32 v{GB+1}, s89
        v_add_co_u32 v{GB}, vcc, s88, v{t1}
        v_addc_co_u32 v{GB+1}, vcc, 0, v{GB+1}, vcc
        """)
    for k in range(8): o(f"v_xor_b32 v{SW+k}, {32*k}, v{vStW}")
    for r in range(16): o(f"v_accvgpr_write_b32 a{aG+r}, 0")
    sC = [35, 38, 80, 81, 94]
    if ct: o(f"v_add_u32 v{vG01}, s{sBase}, v12")
    else:
        for x in gather_setup(39, [vG01, vG2, vG3h, vG3l], SL, t1, t2, sC): o(x)
    o(f"""
    s_waitcnt vmcnt({6 + 5 + 1})
    v_lshlrev_b32 v{vDt}, 16, v8
    v_mul_f32 v{vDt}, s56, v{vDt}
    v_exp_f32 v{vDt}, v{vDt}
    v_lshlrev_b32 v9, 16, v9
    v_cvt_pk_bf16_f32 v{vDt}, v{vDt}, v{vDt}
    v_lshlrev_b32 v{vDt}, 16, v{vDt}
    v_mul_f32 v{vDtL}, s56, v{vDt}
    v_mul_f32 v{vDtP}, s57, v{vDt}
    """)

    def gen_head():
        L = []; free = list(POOL); R = {}
        def al(n): R[n] = free.pop(0); return R[n]
        Z = al("Z"); Bv = al("B"); Cv = al("C")
        L += f"""v_readlane_b32 s{sDtL}, v{vDtL}, s{sCh}
        v_readlane_b32 s{sDtP}, v{vDtP}, s{sCh}
        v_readlane_b32 s{sDt}, v{vDt}, s{sCh}
        v_readlane_b32 s{sDs}, v9, s{sCh}
        v_lshlrev_b32 v{Z}, 16, v2
        v_and_b32 v{Z+2}, 0xffff0000, v2
        v_lshlrev_b32 v{Z+1}, 16, v3
        v_and_b32 v{Z+3}, 0xffff0000, v3
        v_lshlrev_b32 v{Bv}, 16, v4
        v_and_b32 v{Bv+2}, 0xffff0000, v4
        v_mul_f32 v{Z}, s{sDtL}, v{Z}
        v_mul_f32 v{Z+1}, s{sDtP}, v{Z+1}
        v_mul_f32 v{Z+2}, s{sDtL}, v{Z+2}
        v_mul_f32 v{Z+3}, s{sDtP}, v{Z+3}
        v_lshlrev_b32 v{Bv+1}, 16, v5
        v_and_b32 v{Bv+3}, 0xffff0000, v5
        v_lshlrev_b32 v{Cv}, 16, v6
        v_and_b32 v{Cv+2}, 0xffff0000, v6
        v_lshlrev_b32 v{Cv+1}, 16, v7
        v_and_b32 v{Cv+3}, 0xffff0000, v7
        s_cmp_eq_u32 s{sCh}, 6
        s_cselect_b32 s36, s{sKo2}, 256
        s_cmp_lt_u32 s{sCh}, 7
        s_cselect_b32 s36, s36, 0
        v_add_u32 v10, s36, v10
        v_mul_f32 v{Bv}, s{sDt}, v{Bv}
        v_mul_f32 v{Bv+1}, s{sDt}, v{Bv+1}
        v_mul_f32 v{Bv+2}, s{sDt}, v{Bv+2}
        v_mul_f32 v{Bv+3}, s{sDt}, v{Bv+3}
        v_and_b32 v{vDs}, s{sDs}, v{vL0}""".split("\n")
        L = [x.strip() for x in L]
        D = []
        ds = [("G8", 3), ("E1", 0), ("H1", 7), ("E1024", 10)]
        for n, e in ds: al(n); al(n + "t")
        for n, e in ds:
            if e:
                for h in range(4): D.append(f"v_ldexp_f32 v{R[n+'t']+h}, v{Z+h}, {e}")
        for n, e in ds:
            for h in (0, 2): D.append(f"v_fract_f32 v{R[n+'t']+h+1}, v{(R[n+'t'] if e else Z)+h+1}")
        for n, e in ds:
            for h in (0, 2): D.append(f"v_exp_f32 v{R[n+'t']+h}, v{(R[n+'t'] if e else Z)+h}")
        for n, e in ds:
            for h in (0, 2): D += [f"v_cos_f32 v{R[n]+h}, v{R[n+'t']+h+1}", f"v_sin_f32 v{R[n]+h+1}, v{R[n+'t']+h+1}"]
        L += merge(D, ldp, 0, 0.5)
        W = al("Y0")
        for h in (0, 2): L.append(f"v_pk_mul_f32 {v(W+h,2)}, {v(Bv+h,2)}, {v(Cv+h,2)} op_sel:[0,0] op_sel_hi:[1,0] neg_hi:[1,0]")
        for n, e in ds[:2]:
            for h in (0, 2): L.append(f"v_pk_mul_f32 {v(R[n]+h,2)}, {v(R[n]+h,2)}, {v(R[n+'t']+h,2)} op_sel_hi:[1,0]" + (" neg_hi:[1,0]" if n == "G8" else ""))
        for h in (0, 2): L.append(f"v_pk_fma_f32 {v(W+h,2)}, {v(Bv+h,2)}, {v(Cv+h,2)}, {v(W+h,2)} op_sel:[1,1,0] op_sel_hi:[0,1,1] neg_lo:[1,0,0] neg_hi:[1,0,0]")
        for n, e in ds[2:]:
            for h in (0, 2): L.append(f"v_pk_mul_f32 {v(R[n]+h,2)}, {v(R[n]+h,2)}, {v(R[n+'t']+h,2)} op_sel_hi:[1,0]")
        for n in ["Z", "B", "C"] + [n + "t" for n, e in ds]: free.append(R.pop(n))
        return L, R, free
    row = {f"Y{k}": k for k in range(16)}
    row.update({f"E{e}": 16 + e for e in range(1, 8)}); row.update({f"u{e}": 24 + e for e in range(1, 8)}); row["H1"] = 24
    row.update({"H2": 32, "H3": 36, "H4": 40, "H5": 42, "H6": 44, "H7": 46, "E1024": 48, "w8": 52})
    row.update({f"b{h}{e}": 32 + 4 * (h - 2) + e for h in (2, 3) for e in (1, 2, 3)}); row.update({f"c{h}": 41 + 2 * (h - 4) for h in (4, 5, 6, 7)})
    row.update({f"w{h}": 48 + (h >> 1) + 8 * (h & 1) for h in range(1, 8)})
    N_ = None
    ops = [("G16", "G8", "G8", N_), ("E2", "E1", "E1", N_), ("G32", "G16", "G16", N_), ("H2", "H1", "H1", N_), ("G64", "G32", "G32", N_),
           ("u1", "E1", "H1", "E1"), ("Y1", "Y0", "G8", N_), ("Y8", "Y0", "G64", "Y0"), ("E4", "E2", "E2", N_), ("u2", "E2", "H1", "E2"),
           ("Y2", "Y0", "G16", N_), ("Y9", "Y1", "G64", "Y1"), ("Y4", "Y0", "G32", N_), ("Y10", "Y2", "G64", "Y2"), ("Y3", "Y1", "G16", N_),
           ("Y12", "Y4", "G64", "Y4"), ("Y5", "Y1", "G32", N_), ("Y11", "Y3", "G64", "Y3"), ("Y6", "Y2", "G32", N_), ("Y13", "Y5", "G64", "Y5"),
           ("Y7", "Y3", "G32", N_), ("Y14", "Y6", "G64", "Y6"), ("E3", "E2", "E1", N_), ("Y15", "Y7", "G64", "Y7"), ("E5", "E4", "E1", N_),
           ("u4", "E4", "H1", "E4"), ("E6", "E4", "E2", N_), ("u3", "E3", "H1", "E3"), ("E7", "E4", "E3", N_), ("u5", "E5", "H1", "E5"),
           ("H3", "H2", "H1", N_), ("u6", "E6", "H1", "E6"), ("=H1", N_, N_, ""), ("u7", "E7", "H1", "E7"), ("b21", "H2", "E2", N_), ("H4", "H2", "H2", "H2"),
           ("w8", "E1024", "E1024", ""), ("c4", "H4", "E4", "b21"), ("H5", "H4", "H1", N_), ("H6", "H4", "H2", "H3"), ("b22", "H2", "E4", "H5"),
           ("c5", "H5", "E4", N_), ("b23", "H2", "E6", "c5"), ("b31", "H3", "E2", N_), ("c6", "H6", "E4", "b31"), ("H7", "H4", "H3", N_),
           ("b32", "H3", "E4", "H7"), ("c7", "H7", "E4", N_), ("b33", "H3", "E6", "c7"), ("w2", "E1024", "H2", N_), ("w1", "E1024", "H1", "E1024"),
           ("w3", "E1024", "H3", "w2"), ("w4", "E1024", "H4", N_), ("w5", "E1024", "H5", "w4"), ("w6", "E1024", "H6", N_), ("w7", "E1024", "H7", "w6")]
    wr = [x[0].lstrip("=") for x in ops if x[3] is not None] + [x[3] for x in ops if x[3]]
    assert sorted(wr) == sorted(row), set(row) ^ set(wr)
    pos = {x[0]: i for i, x in enumerate(ops)}
    for i, x in enumerate(ops):
        for s_ in x[1:3]:
            if s_ in pos: assert pos[s_] <= i - 2, x
        if x[3]: assert pos.get(x[3], -1) < i and (row[x[3]] - row[x[0]]) % 8 == 0, x
    last = {}
    for i, x in enumerate(ops):
        nm = x[0].lstrip("=")
        last[nm] = max(last.get(nm, -1), i + 2 if x[3] is not None else i + 1)
        if x[3]: last[x[3]] = max(last.get(x[3], -1), i + 1)
        for s_ in x[1:3]:
            if s_: last[s_] = max(last.get(s_, -1), i + 1)
    def gen_body(R, free):
        L = []; N = len(ops); pkc = 0; pkof = {}; pend = []; rdat = {"Y15": 0, "u7": 1, "b33": 2}
        for k in range(N + 3):
            if k < N and ops[k][1]:
                n, a_, b_, _ = ops[k]; R[n] = free.pop(0); d = R[n]
                for h in (0, 2): L.append(f"v_pk_mul_f32 {v(d+h,2)}, {v(R[a_]+h,2)}, {v(R[b_]+h,2)} op_sel:[0,0] op_sel_hi:[1,0]")
            if 0 <= k - 3 < N and ops[k-3][3] is not None:
                r0 = row[ops[k-3][0].lstrip("=")]; p = pkof[k-3]
                if ops[k-3][3]: L.append(f"ds_write2st64_b64 v{SW+(r0&7)}, {v(p,2)}, {v(p+2,2)} offset0:{r0} offset1:{row[ops[k-3][3]]}")
                else: L.append(f"ds_write_b64 v{SW+(r0&7)}, {v(p,2)} offset:{r0*RS}")
            if 0 <= k - 1 < N and ops[k-1][1]:
                n, a_, b_, _ = ops[k-1]; d = R[n]
                for h in (0, 2): L.append(f"v_pk_fma_f32 {v(d+h,2)}, {v(R[a_]+h,2)}, {v(R[b_]+h,2)}, {v(d+h,2)} op_sel:[1,1,0] op_sel_hi:[0,1,1] neg_lo:[1,0,0]")
            if 0 <= k - 1 < N and ops[k-1][3] is not None:
                p = PK[pkc & 3]; pkc += 1; pkof[k-1] = p
                if ops[k-1][3]:
                    x = R[ops[k-1][3]]
                    L += [f"v_cvt_pk_bf16_f32 v{p+2}, v{x}, v{x+1}", f"v_cvt_pk_bf16_f32 v{p+3}, v{x+2}, v{x+3}"]
            if 0 <= k - 2 < N and ops[k-2][3] is not None:
                x = R[ops[k-2][0].lstrip("=")]; p = pkof[k-2]
                L += [f"v_cvt_pk_bf16_f32 v{p}, v{x}, v{x+1}", f"v_cvt_pk_bf16_f32 v{p+1}, v{x+2}, v{x+3}"]
            for n in [n for n in R if last[n] == k]: free.append(R.pop(n))
            if 0 <= k - 3 < N and ops[k-3][0] in rdat: pend += rd_blk(rdat[ops[k-3][0]])
            for _ in range(2 if k > N - 8 else 1):
                if pend: L.append(pend.pop(0))
        L += pend + [("tag", "fr2")]
        return L
    def rd_blk(blk): return [f"ds_read_b128 {a(aFR+32*blk+4*ks,4)}, v{RD[ks&3]} offset:{blk*BLK + 256*(ks>>2)}" for ks in range(8)]
    def frag_reads():
        L = rd_blk(3) + [("tag", "fr")]
        L += [f"v_mov_b32 v{KA_}, v{vDs}", f"v_mov_b32 v{KA_+1}, 0", f"v_mov_b32 v{KA_+2}, 0", f"v_mov_b32 v{KA_+3}, 0"]
        return L
    def tail_mfma():
        L = []
        def mf(blk, ks):
            c = v(KA_+4*blk, 4) if (ks or blk == 0) else "0"
            return f"v_mfma_f32_16x16x32_bf16 {v(KA_+4*blk,4)}, {a(aFR+32*(blk+1)+4*ks,4)}, {a(aFR+4*ks,4)}, {c}"
        L.append(("wait", "fr2"))
        for ks in range(4): L += [mf(0, ks), mf(1, ks)]
        L.append(("wait", "fr"))
        for ks in range(4): L += [mf(2, 2 * ks), mf(0, 4 + ks), mf(2, 2 * ks + 1), mf(1, 4 + ks)]
        return L
    def tail_rest():
        L = [f"v_cvt_pk_bf16_f32 v{KA_+2*q}, v{KA_+2*q}, v{KA_+2*q+1}" for q in (2, 3, 4, 5)]
        L += [f"v_cvt_pk_bf16_f32 v{KA_}, v{KA_}, v{KA_+1}", f"v_cvt_pk_bf16_f32 v{KA_+1}, v{KA_+2}, v{KA_+3}"]
        L += [f"ds_write_b32 v{vT1a}, v{KA_+4}", f"ds_write_b32 v{vT1b}, v{KA_+6}",
              f"ds_write_b16 v{vT2}, v{KA_+8}", f"ds_write_b16_d16_hi v{vT2}, v{KA_+8} offset:64",
              f"ds_write_b16 v{vT2}, v{KA_+10} offset:128", f"ds_write_b16_d16_hi v{vT2}, v{KA_+10} offset:192",
              f"ds_write_b64 v{vT0}, {v(KA_,2)}"]
        if ct:
            L += [f"ds_read_b128 {v(OB,4)}, v{vG01} offset:{TOFF-16}", f"ds_read_b128 {v(OB+4,4)}, v{vG01} offset:{TOFF-16+1024}", ("tag", "g"), ("tag", "pad"), ("tag", "pad"), ("wait", "g")]
            L += [f"buffer_store_dwordx4 {v(OB+4*k,4)}, v12, s[{sK}:{sK+3}], s{sKo} offen offset:{1024*k} {stmod}" for k in range(2)]
            return L + [f"s_add_u32 s{sKo}, s{sKo}, 2048"]
        L += [f"ds_read2_b32 {v(GB,2)}, v{vG01} offset0:32 offset1:33", f"ds_read2_b32 {v(GB+2,2)}, v{vG01} offset0:0 offset1:1",
              f"ds_read2_b32 {v(GB+4,2)}, v{vG2} offset0:0 offset1:1", f"ds_read2_b32 {v(GB+10,2)}, v{vG3h} offset0:0 offset1:1",
              f"ds_read2_b32 {v(GB+8,2)}, v{vG3l} offset0:1 offset1:2", f"ds_read_b32 v{GB+7}, v{vG3l}", ("tag", "g"), ("tag", "pad"), ("tag", "pad"), ("wait", "g")]
        def st(ob, c, kb): return f"buffer_store_dwordx4 {v(ob,4)}, v12, s[{sK}:{sK+3}], s{sKo2 if c else sKo} offen offset:{1024*kb} {stmod}"
        def pm(d, e, sel): return f"v_perm_b32 v{d}, v{e+1}, v{e}, {sel}"
        for kb in (0, 1):
            L += [pm(OB+4*kb+j, GB+2*kb, f"v{SL+q}") for j, q in enumerate((0, 2, 1, 1))] + [st(OB+4*kb, 0, kb)]
        L += [pm(OB+8+j, GB+4, f"s{sC[q]}") for j, q in enumerate((0, 1, 2, 2))] + [st(OB+8, 0, 2)]
        L += [pm(OB+12+j, GB+10-j, f"v{SL+4+q}") for j, q in enumerate((0, 1, 0, 2))] + [st(OB+12, 0, 3)]
        L += [pm(OB+16+j, GB+10-j, f"v{SL+7+q}") for j, q in enumerate((0, 1, 0, 2))] + [st(OB+16, 1, 3)]
        for kb in (0, 1): L += [pm(OB+4*kb+1, GB+2*kb, f"v{SL+3}"), st(OB+4*kb, 1, kb)]
        L += [pm(OB+8, GB+4, f"s{sC[3]}"), pm(OB+10, GB+4, f"s{sC[4]}"), st(OB+8, 1, 2)]
        L += [f"s_add_u32 s{sKo}, s{sKo}, 8192", f"s_add_u32 s{sKo2}, s{sKo2}, 8192"]
        return L
    lf = opt.get('lf', 1)
    def slice_work(more):
        L = []
        for blk in range(2):
            for th in range(2):
                for r2 in range(2):
                    L.append(f"ds_read_b64_tr_b16 {a(aTR+(blk*2+th)*4+2*r2,2)}, v{vXtr} offset:{blk*32 + th*16 + r2*256}")
        L.append(("tag", "tr"))
        for q in range(4): L.append(f"ds_read_b128 {v(XR+4*q,4)}, v{vXg} offset:{1024*q}")
        L.append(("tag", "xr"))
        L += [("tag", "pad"), ("tag", "pad"), ("wait", "xr")]
        for q in range(4): L.append(f"v_mfma_f32_16x16x32_bf16 {a(aG+4*q,4)}, {v(XR+4*q,4)}, {v(GWR,4)}, {a(aG+4*q,4)}")
        if lf: L += slice_ld()
        for blk in range(2):
            for th in range(2):
                L.append(f"buffer_store_dwordx4 {a(aTR+(blk*2+th)*4,4)}, v{vUst}, s[{sU}:{sU+3}], s{sUo} offen {stmod}")
                L.append(f"s_add_u32 s{sUo}, s{sUo}, {8*4096}")
        if not lf: L += slice_ld()
        return L
    def pf():
        if not opt.get("pf", 0): return []
        if opt["pf"] == 3: return [f"global_load_dword v{vPf}, {v(GB,2)}, off", "global_load_dword v57, v58, s[98:99] sc1"]
        if opt["pf"] == 2:
            return [f"buffer_load_dword v{PFD}, v{vPf}, s[88:91], 0 offen", f"buffer_load_dword v{PFD+1}, v{vPf}, s[88:91], 0 offen offset:64", f"v_add_u32 v{vPf}, 8192, v{vPf}"]
        return [f"buffer_load_dword v{PFD}, v{vPf}, s[88:91], 0 offen", f"buffer_load_dword v{PFD+1}, v{vPf}, s[88:91], s95 offen", f"v_add_u32 v{vPf}, 16384, v{vPf}"]
    em = Em(o)
    o("s_waitcnt vmcnt(6)")
    Hd, R, free = gen_head()
    B0 = gen_body(R, free); z0 = opt.get("z0", 2); pf0 = [pf()[0]]
    if z0 == 2: B0 = merge(B0, ["s_waitcnt vmcnt(7)"] + slice_work(True) + pf0, int(len(B0) * opt.get("s0", 0.4)))
    for x in Hd + B0 + frag_reads(): em(x)
    o(f"s_mov_b32 s{sCh}, 1\ns_waitcnt vmcnt({10 if z0 == 2 else 0})")
    if opt.get("ast"): F.stamp(1, True)
    if z0 == 1:
        for x in slice_work(True) + pf0: em(x)
    F.aux_zero()
    if opt.get("stamp"):
        from gemm1b import stamp_mid1, stamp_mid2
        stamp_mid1(o)
    if opt.get("ast"): F.stamp(3, True)
    o.label(f"{name}_aloop")
    if opt.get("ast"): o("s_mov_b32 s74, s72\ns_mov_b32 s72, s70\ns_memrealtime s[70:71]\ns_waitcnt lgkmcnt(0)")
    npf = [0, 2, 2, 0][opt.get("pf", 0)]
    o(f"s_waitcnt vmcnt({nks + 4 + 5 + npf})")
    Hd, R, free = gen_head()
    S = merge(Hd[:-14], tail_mfma(), 4) + Hd[-14:]
    B = gen_body(R, free)
    T = tail_rest() + [f"s_waitcnt vmcnt({6 + nks + npf + 4 * lf})"] + slice_work(True) + ["\n".join([f"s_cmp_lg_u32 s{sCh}, {opt.get('pfit', 6)}", f"s_cbranch_scc1 {name}_npf"] + pf() + [f"{name}_npf:"])]
    if opt.get("kl", 1):
        ks = [x for x in T if isinstance(x, str) and (x.startswith("buffer_store_dwordx4 v") or x.startswith(f"s_add_u32 s{sKo},"))]
        assert len(ks) == 3
        T = [x for x in T if x not in ks]
        j = min(k for k, x in enumerate(T) if isinstance(x, str) and x.startswith("buffer_store"))
        T = T[:j] + ks + T[j:]
    M = merge(B, T, 0, len(T) / (opt.get("tcomp", 0.6) * len(B)))
    sp = int(len(M) * opt.get("sigpos", 0.9))
    while isinstance(M[sp], tuple) or M[sp].startswith("s_"): sp += 1
    S += M[:sp] + [f"s_cmp_lg_u32 s{sCh}, 7\ns_cbranch_scc1 {name}_nsig", F.aux_sig(), f"{name}_nsig:"] + M[sp:]
    S += frag_reads() + [f"s_add_u32 s{sCh}, s{sCh}, 1", f"s_cmp_lt_u32 s{sCh}, 8", f"s_cbranch_scc1 {name}_aloop"]
    def keep(x):
        if isinstance(x, tuple): return not (x[0] == 'wait' and 'wait' in opt.get('ax_drop', []))
        for pat in opt.get("ax_drop", []):
            if x.startswith(pat): return False
        return True
    for x in S:
        if keep(x): em(x)
    if opt.get("stamp"): stamp_mid2(o)
    if opt.get("ast"): F.stamp(4, True)
    o(f"s_lshl_b32 s36, s{sKo2}, 3\ns_add_u32 s{sKo}, s{sKo}, s36\ns_sub_u32 s{sKo}, s{sKo}, 2048")
    for x in tail_mfma() + ["s_nop 7"] + tail_rest(): em(x)
    F.aux_pre()
    o(f"""
    s_nop 7
    s_lshl_b32 s36, s{sWave}, 8
    s_add_u32 s36, s36, {GOFF}
    v_add_u32 v{t1}, s36, v{vGWa}
    """)
    for q in range(4): o(f"ds_write_b128 v{t1}, {a(aG+4*q,4)} offset:{64*q}")
    o(f"""
    v_lshlrev_b32 v{t2}, 2, v0
    v_add_u32 v{t1}, {GOFF}, v{t2}
    s_waitcnt lgkmcnt(0)
    s_barrier
    ds_read_b32 v{XU}, v{t1}
    ds_read_b32 v{XU+1}, v{t1} offset:256
    ds_read_b32 v{XU+2}, v{t1} offset:512
    ds_read_b32 v{XU+3}, v{t1} offset:768
    s_mov_b32 s38, 0xbfb8aa3b
    s_lshl_b32 s36, s{sJ}, 8
    s_waitcnt lgkmcnt(0)
    v_add_f32 v{XU}, v{XU}, v{XU+1}
    v_add_f32 v{XU+2}, v{XU+2}, v{XU+3}
    v_add_f32 v{XU}, v{XU}, v{XU+2}
    v_cvt_pk_bf16_f32 v{XU}, v{XU}, v{XU}
    v_lshlrev_b32 v{XU}, 16, v{XU}
    v_mul_f32 v{XU}, s38, v{XU}
    v_exp_f32 v{XU}, v{XU}
    s_nop 0
    v_add_f32 v{XU}, 1.0, v{XU}
    v_rcp_f32 v{XU}, v{XU}
    s_nop 0
    v_cvt_pk_bf16_f32 v{XU}, v{XU}, v{XU}
    v_lshlrev_b32 v{XU}, 16, v{XU}
    buffer_store_dword v{XU}, v{t2}, s[{sG}:{sG+3}], s36 offen {stmod}
    """)
```
